```python
import torch

def _softmax(x, axis=-1):
    return torch.softmax(x, dim=axis)
def _gelu(x):
    return torch.nn.functional.gelu(x, approximate="tanh")
def _silu(x):
    return torch.nn.functional.silu(x)
def _sigmoid(x):
    return torch.sigmoid(x)
def _layernorm(x, axis=-1, eps=1e-5):
    m = x.mean(dim=axis, keepdim=True)
    v = x.var(dim=axis, keepdim=True, unbiased=False)
    return (x - m) / torch.sqrt(v + eps)
def _scatter_add(tgt, idx, src, axis=0):
    return tgt.clone().index_add_(axis, idx, src)
def _segment_sum(src, seg, n):
    out = torch.zeros((n,) + src.shape[1:], dtype=src.dtype)
    return out.index_add_(0, seg, src)
def _pad(x, pw):
    flat = tuple(v for pair in reversed(pw) for v in pair)
    return torch.nn.functional.pad(x, flat)

kernel_name = 'gated_mix__linear_attn_block__glu_gated_swiglu__prompt'

def setup_inputs():

    _w = (lambda a: (lambda t: t.to(torch.bfloat16) if t.is_floating_point() else t)(torch.as_tensor(a)))
    def _A_setup():
        B, S, D = 1, 2048, 448
        return {
            "x": _w((lambda *s: torch.randn(*s, dtype=torch.bfloat16) * 0.05)(B, S, D)),
            "wqkv": _w((lambda *s: torch.randn(*s, dtype=torch.bfloat16) * 0.8)(D, 3 * D)),
            "wo": _w((lambda *s: torch.randn(*s, dtype=torch.bfloat16) * 0.05)(D, D)),
        }
    _A_in = _A_setup()

    def _B_setup():
        B, S, D, F = 1, 2048, 448, 1792
        return {
            "x": _w((lambda *s: torch.randn(*s, dtype=torch.bfloat16) * 0.05)(B, S, D)),
            "w1": _w((lambda *s: torch.randn(*s, dtype=torch.bfloat16) * 1.6)(D, F) * (2.0 / D) ** 0.5),
            "w3": _w((lambda *s: torch.randn(*s, dtype=torch.bfloat16) * 1.6)(D, F) * (2.0 / D) ** 0.5),
            "w2": _w((lambda *s: torch.randn(*s, dtype=torch.bfloat16) * 1.6)(F, D) * (2.0 / F) ** 0.5),
        }
    _B_in = _B_setup()

    return {
        "A_x": _A_in["x"],
        "A_wqkv": _A_in["wqkv"],
        "A_wo": _A_in["wo"],
        "B_x": _B_in["x"],
        "B_w1": _B_in["w1"],
        "B_w3": _B_in["w3"],
        "B_w2": _B_in["w2"],
        "gate_w": _w((lambda *s: torch.randn(*s, dtype=torch.bfloat16) * 0.05)(448) * 16.0),
    }

def reference(A_x, A_wqkv, A_wo, B_x, B_w1, B_w3, B_w2, gate_w):
    def _A_ref(x, wqkv, wo):
        B, S, D = x.shape
        H = 16; Dh = D // H
        qkv = (lambda x, *d: x.permute(*d))((x @ wqkv).reshape(B, S, 3, H, Dh), 2, 0, 3, 1, 4)
        q, k, v = qkv[0], qkv[1], qkv[2]
        phi = lambda t: torch.where(t > 0, t + 1, torch.exp(t)) + 1e-6
        pq, pk = phi(q), phi(k)
        kv = torch.einsum("bhsd,bhse->bhde", pk, v)
        z = torch.einsum("bhsd->bhd", pk)
        num = torch.einsum("bhqd,bhde->bhqe", pq, kv)
        den = torch.einsum("bhqd,bhd->bhq", pq, z)[..., None] + 1e-6
        o = num / den
        return (lambda x, *d: x.permute(*d))(o, 0, 2, 1, 3).reshape(B, S, D) @ wo

    def _B_ref(x, w1, w3, w2):
        gate = torch.einsum("bsd,df->bsf", x, w1)
        up = torch.einsum("bsd,df->bsf", x, w3)
        h = _silu(gate) * up
        out = torch.einsum("bsf,fd->bsd", h, w2)
        return out

    x = A_x
    g = _sigmoid((x * gate_w).sum(-1, keepdims=True))
    a = _A_ref(x, A_wqkv, A_wo)
    b = _B_ref(x, B_w1, B_w3, B_w2)
    return g * a + (1 - g) * b
```

```python
import sys

NAME = "gated_mix__linear_attn_block__glu_gated_swiglu__prompt"

WS_H    = 0x000000
WS_PQ   = 0x700000
WS_KVP  = 0x900000
WS_KVF  = 0xB00000
WS_G    = 0xB10000
WS_SIZE = 0xB20000

class Asm:
    def __init__(self):
        self.lines = []
        self.vm = []
    def e(self, s):
        self.lines.append("    " + s)
    def c(self, s):
        self.lines.append("    ; " + s)
    def label(self, l):
        self.lines.append(l + ":")
    def vmem(self, s, tag):
        self.e(s)
        self.vm.append(tag)
    def wait_vm(self, tag, extra=""):
        idx = None
        for i, t in enumerate(self.vm):
            if t == tag:
                idx = i
        if idx is None:
            if extra:
                self.e("s_waitcnt " + extra)
            return
        n = len(self.vm) - 1 - idx
        assert n <= 63, n
        self.e("s_waitcnt vmcnt(%d) %s" % (n, extra))
        self.vm = self.vm[idx + 1:]
    def wait_vm_all(self, extra=""):
        self.e("s_waitcnt vmcnt(0) %s" % extra)
        self.vm = []
    def nop(self, n):
        while n > 0:
            k = min(n, 16)
            self.e("s_nop %d" % (k - 1))
            n -= k

def vr(b, n=1):
    return "v%d" % b if n == 1 else "v[%d:%d]" % (b, b + n - 1)
def ar(b, n=1):
    return "a%d" % b if n == 1 else "a[%d:%d]" % (b, b + n - 1)
def sr(b, n=1):
    return "s%d" % b if n == 1 else "s[%d:%d]" % (b, b + n - 1)

def srd(A, d, base, size):
    A.e("s_mov_b32 s%d, s%d" % (d, base))
    A.e("s_and_b32 s%d, s%d, 0xffff" % (d + 1, base + 1))
    A.e("s_mov_b32 s%d, 0x%x" % (d + 2, size))
    A.e("s_mov_b32 s%d, 0x00020000" % (d + 3))

LOG2E = 0x3fb8aa3b
NLOG2E = 0xbfb8aa3b
EPS = 0x358637bd

STAGE = 28672
NSTG = 4
OFF_X = 0
OFF_QKV = 8192
OFF_G4 = 14336
OFF_G2 = 18432
OFF_G1 = 20480
OFF_U4 = 21504
OFF_U2 = 25600
OFF_U1 = 27648
HI = 2 * STAGE

S_X, S_Q, S_G, S_U, S_W, S_GW, S_SP = 16, 20, 24, 28, 32, 36, 40
S_GRP, S_RB, S_WAVE, S_RH = 44, 45, 46, 47
S_T0, S_T1, S_T2, S_T3 = 48, 49, 50, 51
S_DST = 54
S_MSK = 60
S_NL2E = 62
S_ONE = 64
S_L2E = 66
S_EPS = 67
S_SO = 68
S_R0T = 69

V_LANE = 1
V_DOFF = 2
V_XA = 7
V_WA = 9
V_GATE = 17
V_T = 18
V_XF = 32
V_WF = 64
V_ACC = 112

def k1_lane_bits(A):
    A.e("v_and_b32 v%d, 63, v0" % V_LANE)
    A.e("v_lshrrev_b32 v%d, 6, v0" % V_T)
    A.e("s_nop 0")
    A.e("v_readfirstlane_b32 s%d, v%d" % (S_WAVE, V_T))

def emit_T2_doff(A, vdst, ld, s_colbytes, s_hh):
    t0, t1, t2 = V_T, V_T + 1, V_T + 2
    A.e("v_lshrrev_b32 v%d, 2, v%d" % (t0, V_LANE))
    A.e("s_lshl_b32 s%d, s%d, 4" % (S_T3, s_hh))
    A.e("v_add_u32 v%d, s%d, v%d" % (t0, S_T3, t0))
    A.e("v_mul_u32_u24 v%d, %d, v%d" % (t0, ld, t0))
    A.e("v_lshrrev_b32 v%d, 1, v%d" % (t1, V_LANE))
    A.e("v_lshrrev_b32 v%d, 5, v%d" % (t2, V_LANE))
    A.e("v_xor_b32 v%d, v%d, v%d" % (t1, t1, t2))
    A.e("v_and_b32 v%d, 1, v%d" % (t1, t1))
    A.e("v_lshlrev_b32 v%d, 5, v%d" % (t1, t1))
    A.e("v_and_b32 v%d, 1, v%d" % (t2, V_LANE))
    A.e("v_lshlrev_b32 v%d, 4, v%d" % (t2, t2))
    A.e("v_add3_u32 v%d, v%d, v%d, v%d" % (t0, t0, t1, t2))
    A.e("v_add_u32 v%d, s%d, v%d" % (vdst, s_colbytes, t0))

def emit_T4_doff_k1(A, vdst, ld, s_colbytes, s_oct):
    t0, t1, t2 = V_T, V_T + 1, V_T + 2
    A.e("v_lshrrev_b32 v%d, 3, v%d" % (t0, V_LANE))
    A.e("v_lshrrev_b32 v%d, 4, v%d" % (t1, V_LANE))
    A.e("v_and_b32 v%d, 1, v%d" % (t1, t1))
    A.e("s_and_b32 s%d, s%d, 1" % (S_T3, s_oct))
    A.e("s_lshl_b32 s%d, s%d, 1" % (S_T3, S_T3))
    A.e("v_or_b32 v%d, s%d, v%d" % (t1, S_T3, t1))
    A.e("v_lshrrev_b32 v%d, 1, v%d" % (t2, V_LANE))
    A.e("v_and_b32 v%d, 3, v%d" % (t2, t2))
    A.e("v_xor_b32 v%d, v%d, v%d" % (t1, t1, t2))
    A.e("v_lshlrev_b32 v%d, 5, v%d" % (t1, t1))
    A.e("s_lshl_b32 s%d, s%d, 3" % (S_T3, s_oct))
    A.e("v_add_u32 v%d, s%d, v%d" % (t0, S_T3, t0))
    A.e("v_mul_u32_u24 v%d, %d, v%d" % (t0, ld, t0))
    A.e("v_and_b32 v%d, 1, v%d" % (t2, V_LANE))
    A.e("v_lshlrev_b32 v%d, 4, v%d" % (t2, t2))
    A.e("v_add3_u32 v%d, v%d, v%d, v%d" % (t0, t0, t1, t2))
    A.e("v_add_u32 v%d, s%d, v%d" % (vdst, s_colbytes, t0))

def emit_T1_doff(A, vdst, ld, s_colbytes):
    t0, t1, t2 = V_T, V_T + 1, V_T + 2
    A.e("v_lshrrev_b32 v%d, 1, v%d" % (t0, V_LANE))
    A.e("v_and_b32 v%d, 19, v%d" % (t1, t0))
    A.e("v_and_b32 v%d, 4, v%d" % (t2, t0))
    A.e("v_lshlrev_b32 v%d, 1, v%d" % (t2, t2))
    A.e("v_or_b32 v%d, v%d, v%d" % (t1, t1, t2))
    A.e("v_and_b32 v%d, 8, v%d" % (t2, t0))
    A.e("v_lshrrev_b32 v%d, 1, v%d" % (t2, t2))
    A.e("v_or_b32 v%d, v%d, v%d" % (t1, t1, t2))
    A.e("v_mul_u32_u24 v%d, %d, v%d" % (t1, ld, t1))
    A.e("v_and_b32 v%d, 1, v%d" % (t2, V_LANE))
    A.e("v_lshlrev_b32 v%d, 4, v%d" % (t2, t2))
    A.e("v_add_u32 v%d, v%d, v%d" % (t1, t1, t2))
    A.e("v_add_u32 v%d, s%d, v%d" % (vdst, s_colbytes, t1))

def emit_raddr(A, vdst, kind, t):
    t0, t1, t2, t3 = V_T, V_T + 1, V_T + 2, V_T + 3
    A.e("v_lshrrev_b32 v%d, 4, v%d" % (t0, V_LANE))
    A.e("v_lshrrev_b32 v%d, 2, v%d" % (t1, V_LANE))
    A.e("v_and_b32 v%d, 3, v%d" % (t1, t1))
    A.e("v_and_b32 v%d, 3, v%d" % (t2, V_LANE))
    A.e("v_lshlrev_b32 v%d, 3, v%d" % (vdst, t2))
    A.e("v_and_b32 v%d, 1, v%d" % (t2, t0))
    if kind == "T2":
        A.e("v_lshrrev_b32 v%d, 1, v%d" % (t3, t0))
        A.e("v_lshl_add_u32 v%d, v%d, 10, v%d" % (vdst, t3, vdst))
        A.e("v_lshl_add_u32 v%d, v%d, 9, v%d" % (vdst, t2, vdst))
        A.e("v_lshl_add_u32 v%d, v%d, 6, v%d" % (vdst, t1, vdst))
        A.e("v_xor_b32 v%d, %d, v%d" % (t3, t, t2))
        A.e("v_lshl_add_u32 v%d, v%d, 5, v%d" % (vdst, t3, vdst))
    elif kind == "T4":
        A.e("v_lshl_add_u32 v%d, v%d, 10, v%d" % (vdst, t0, vdst))
        A.e("v_lshl_add_u32 v%d, v%d, 7, v%d" % (vdst, t1, vdst))
        A.e("v_lshrrev_b32 v%d, 1, v%d" % (t3, t1))
        A.e("v_lshl_or_b32 v%d, v%d, 1, v%d" % (t3, t2, t3))
        A.e("v_xor_b32 v%d, %d, v%d" % (t3, t, t3))
        A.e("v_lshl_add_u32 v%d, v%d, 5, v%d" % (vdst, t3, vdst))
    elif kind == "T1":
        A.e("v_lshl_or_b32 v%d, v%d, 2, v%d" % (t3, t2, t1))
        A.e("v_lshrrev_b32 v%d, 1, v%d" % (t0, t0))
        A.e("v_lshl_or_b32 v%d, v%d, 4, v%d" % (t3, t0, t3))
        A.e("v_lshl_add_u32 v%d, v%d, 5, v%d" % (vdst, t3, vdst))
    elif kind == "T4K2":
        A.e("v_lshrrev_b32 v%d, 1, v%d" % (t3, t0))
        A.e("v_lshl_add_u32 v%d, v%d, 10, v%d" % (vdst, t3, vdst))
        A.e("v_lshl_add_u32 v%d, v%d, 9, v%d" % (vdst, t2, vdst))
        A.e("v_lshl_add_u32 v%d, v%d, 7, v%d" % (vdst, t1, vdst))
        A.e("v_lshrrev_b32 v%d, 1, v%d" % (t3, t1))
        A.e("v_lshl_or_b32 v%d, v%d, 1, v%d" % (t3, t2, t3))
        A.e("v_xor_b32 v%d, %d, v%d" % (t3, t, t3))
        A.e("v_lshl_add_u32 v%d, v%d, 5, v%d" % (vdst, t3, vdst))
    else:
        raise ValueError(kind)

POFF = {"T2": 256, "T4": 512, "T1": 256, "T4K2": 2048}

def unpack2(A, dlo, dhi, src):
    A.e("v_lshlrev_b32 v%d, 16, v%d" % (dlo, src))
    A.e("v_and_b32 v%d, s%d, v%d" % (dhi, S_MSK, src))

def emit_phi4(A, src, dst, tmp):
    a = tmp
    b = tmp + 4
    for h in range(2):
        A.e("v_cvt_pk_bf16_f32 v%d, v%d, v%d" % (dst + h, src + 2 * h, src + 2 * h + 1))
    for h in range(2):
        unpack2(A, a + 2 * h, a + 2 * h + 1, dst + h)
    for i in range(4):
        A.e("v_mul_f32 v%d, s%d, v%d" % (b + i, S_L2E, a + i))
    for i in range(4):
        A.e("v_exp_f32 v%d, v%d" % (b + i, b + i))
    for i in range(4):
        A.e("v_cmp_lt_f32 vcc, 0, v%d" % (a + i))
        A.e("v_add_f32 v%d, 1.0, v%d" % (a + i, a + i))
        A.e("s_nop 0")
        A.e("v_cndmask_b32 v%d, v%d, v%d, vcc" % (a + i, b + i, a + i))
    for h in range(2):
        A.e("v_cvt_pk_bf16_f32 v%d, v%d, v%d" % (dst + h, a + 2 * h, a + 2 * h + 1))
    for h in range(2):
        unpack2(A, a + 2 * h, a + 2 * h + 1, dst + h)
    for i in range(4):
        A.e("v_add_f32 v%d, s%d, v%d" % (a + i, S_EPS, a + i))
    for h in range(2):
        A.e("v_cvt_pk_bf16_f32 v%d, v%d, v%d" % (dst + h, a + 2 * h, a + 2 * h + 1))

def emit_swiglu4(A, g, u, dst, tmp):
    G = tmp; U = tmp + 4; E = tmp + 8
    for h in range(2):
        A.e("v_cvt_pk_bf16_f32 v%d, v%d, v%d" % (E + h, g + 2 * h, g + 2 * h + 1))
        A.e("v_cvt_pk_bf16_f32 v%d, v%d, v%d" % (E + 2 + h, u + 2 * h, u + 2 * h + 1))
    for h in range(2):
        unpack2(A, G + 2 * h, G + 2 * h + 1, E + h)
        unpack2(A, U + 2 * h, U + 2 * h + 1, E + 2 + h)
    for h in range(2):
        A.e("v_pk_mul_f32 v[%d:%d], v[%d:%d], s[%d:%d]" % (E + 2 * h, E + 2 * h + 1, G + 2 * h, G + 2 * h + 1, S_NL2E, S_NL2E + 1))
    for i in range(4):
        A.e("v_exp_f32 v%d, v%d" % (E + i, E + i))
    A.e("s_nop 0")
    for h in range(2):
        A.e("v_pk_add_f32 v[%d:%d], v[%d:%d], s[%d:%d]" % (E + 2 * h, E + 2 * h + 1, E + 2 * h, E + 2 * h + 1, S_ONE, S_ONE + 1))
    for i in range(4):
        A.e("v_rcp_f32 v%d, v%d" % (E + i, E + i))
    A.e("s_nop 0")
    for h in range(2):
        A.e("v_pk_mul_f32 v[%d:%d], v[%d:%d], v[%d:%d]" % (G + 2 * h, G + 2 * h + 1, G + 2 * h, G + 2 * h + 1, E + 2 * h, E + 2 * h + 1))
    for h in range(2):
        A.e("v_cvt_pk_bf16_f32 v%d, v%d, v%d" % (E + h, G + 2 * h, G + 2 * h + 1))
    for h in range(2):
        unpack2(A, G + 2 * h, G + 2 * h + 1, E + h)
    for h in range(2):
        A.e("v_pk_mul_f32 v[%d:%d], v[%d:%d], v[%d:%d]" % (G + 2 * h, G + 2 * h + 1, G + 2 * h, G + 2 * h + 1, U + 2 * h, U + 2 * h + 1))
    for h in range(2):
        A.e("v_cvt_pk_bf16_f32 v%d, v%d, v%d" % (dst + h, G + 2 * h, G + 2 * h + 1))

def k1_consts(A):
    A.e("s_mov_b32 s%d, 0xffff0000" % S_MSK)
    A.e("s_mov_b32 s%d, 0x%x" % (S_NL2E, NLOG2E))
    A.e("s_mov_b32 s%d, 0x%x" % (S_NL2E + 1, NLOG2E))
    A.e("s_mov_b32 s%d, 1.0" % S_ONE)
    A.e("s_mov_b32 s%d, 1.0" % (S_ONE + 1))
    A.e("s_mov_b32 s%d, 0x%x" % (S_L2E, LOG2E))
    A.e("s_mov_b32 s%d, 0x%x" % (S_EPS, EPS))

def gen_k1(A):
    A.label("k1_kernel")
    A.e("s_cmp_ge_u32 s2, 256")
    A.e("s_cbranch_scc1 K1_END")
    A.e("s_load_dwordx4 s[4:7], s[0:1], 0")
    A.e("s_load_dwordx4 s[8:11], s[0:1], 32")
    A.e("s_load_dwordx2 s[12:13], s[0:1], 56")
    A.e("s_load_dwordx2 s[14:15], s[0:1], 80")
    k1_lane_bits(A)
    k1_consts(A)
    A.e("s_and_b32 s%d, s2, 7" % S_T0)
    A.e("s_lshr_b32 s%d, s2, 3" % S_T1)
    A.e("s_and_b32 s%d, s%d, 3" % (S_T2, S_T0))
    A.e("s_lshl_b32 s%d, s%d, 2" % (S_T2, S_T2))
    A.e("s_and_b32 s%d, s%d, 3" % (S_T3, S_T1))
    A.e("s_add_u32 s%d, s%d, s%d" % (S_GRP, S_T2, S_T3))
    A.e("s_lshr_b32 s%d, s%d, 2" % (S_T2, S_T0))
    A.e("s_lshl_b32 s%d, s%d, 3" % (S_T2, S_T2))
    A.e("s_lshr_b32 s%d, s%d, 2" % (S_T3, S_T1))
    A.e("s_add_u32 s%d, s%d, s%d" % (S_RB, S_T2, S_T3))
    A.e("s_and_b32 s%d, s%d, 1" % (S_RH, S_WAVE))
    A.e("s_lshl_b32 s%d, s%d, 3" % (S_R0T, S_RB))
    A.e("s_lshl_b32 s%d, s%d, 2" % (S_T0, S_RH))
    A.e("s_add_u32 s%d, s%d, s%d" % (S_R0T, S_R0T, S_T0))
    A.e("s_waitcnt lgkmcnt(0)")
    srd(A, S_X, 4, 2048 * 896)
    srd(A, S_Q, 6, 448 * 2688)
    srd(A, S_G, 8, 448 * 3584)
    srd(A, S_U, 10, 448 * 3584)
    srd(A, S_W, 14, WS_SIZE)
    srd(A, S_GW, 12, 896)
    A.e("s_cmp_eq_u32 s%d, 0" % S_RH)
    A.e("s_cselect_b32 s%d, s8, s10" % S_T0)
    A.e("s_cselect_b32 s%d, s9, s11" % S_T1)
    A.e("s_mov_b32 s%d, s%d" % (S_SP, S_T0))
    A.e("s_and_b32 s%d, s%d, 0xffff" % (S_SP + 1, S_T1))
    A.e("s_mov_b32 s%d, 0x%x" % (S_SP + 2, 448 * 3584))
    A.e("s_mov_b32 s%d, 0x00020000" % (S_SP + 3))

    A.c("gate loads")
    A.e("s_lshl_b32 s%d, s%d, 7" % (S_T0, S_RB))
    A.e("s_lshl_b32 s%d, s%d, 3" % (S_T1, S_GRP))
    A.e("s_add_u32 s%d, s%d, s%d" % (S_T0, S_T0, S_T1))
    A.e("s_add_u32 s%d, s%d, s%d" % (S_T0, S_T0, S_WAVE))
    A.e("s_mul_i32 s%d, s%d, 896" % (S_T1, S_T0))
    A.e("v_lshlrev_b32 v%d, 4, v%d" % (V_T, V_LANE))
    A.e("v_mov_b32 v%d, 0x7ffffff0" % (V_T + 1))
    A.e("v_cmp_gt_u32 vcc, 56, v%d" % V_LANE)
    A.e("s_nop 1")
    A.e("v_cndmask_b32 v%d, v%d, v%d, vcc" % (V_T, V_T + 1, V_T))
    GX = 96; GWV = 100
    A.vmem("buffer_load_dwordx4 v[%d:%d], v%d, s[%d:%d], s%d offen" % (GX, GX + 3, V_T, S_X, S_X + 3, S_T1), "gate")
    A.vmem("buffer_load_dwordx4 v[%d:%d], v%d, s[%d:%d], 0 offen" % (GWV, GWV + 3, V_T, S_GW, S_GW + 3), "gate")
    A.e("s_lshl_b32 s70, s%d, 2" % S_T0)

    A.c("x dma offset")
    t0, t1, t2 = V_T, V_T + 1, V_T + 2
    A.e("v_lshrrev_b32 v%d, 2, v%d" % (t0, V_LANE))
    A.e("s_lshl_b32 s%d, s%d, 7" % (S_T0, S_RB))
    A.e("s_lshl_b32 s%d, s%d, 4" % (S_T1, S_WAVE))
    A.e("s_add_u32 s%d, s%d, s%d" % (S_T0, S_T0, S_T1))
    A.e("v_add_u32 v%d, s%d, v%d" % (t0, S_T0, t0))
    A.e("v_mul_u32_u24 v%d, 896, v%d" % (t0, t0))
    A.e("v_lshrrev_b32 v%d, 4, v%d" % (t1, V_LANE))
    A.e("v_sub_u32 v%d, 4, v%d" % (t1, t1))
    A.e("v_xor_b32 v%d, v%d, v%d" % (t1, t1, V_LANE))
    A.e("v_and_b32 v%d, 3, v%d" % (t1, t1))
    A.e("v_lshl_add_u32 v%d, v%d, 4, v%d" % (V_DOFF, t1, t0))
    A.e("s_lshl_b32 s%d, s%d, 10" % (S_DST, S_WAVE))
    A.e("v_and_b32 v%d, 15, v%d" % (t0, V_LANE))
    A.e("s_lshl_b32 s%d, s%d, 6" % (S_T0, S_RH))
    A.e("v_add_u32 v%d, s%d, v%d" % (t0, S_T0, t0))
    A.e("v_lshlrev_b32 v%d, 6, v%d" % (t0, t0))
    A.e("v_lshrrev_b32 v%d, 2, v%d" % (t1, V_LANE))
    A.e("v_and_b32 v%d, 3, v%d" % (t1, t1))
    A.e("v_sub_u32 v%d, 4, v%d" % (t1, t1))
    A.e("v_lshrrev_b32 v%d, 4, v%d" % (t2, V_LANE))
    A.e("v_xor_b32 v%d, v%d, v%d" % (t1, t1, t2))
    A.e("v_and_b32 v%d, 3, v%d" % (t1, t1))
    A.e("v_lshl_add_u32 v%d, v%d, 4, v%d" % (V_XA, t1, t0))
    A.e("v_add_u32 v%d, %d, v%d" % (V_XA + 1, HI, V_XA))

    A.e("s_mul_i32 s71, s%d, 56" % S_GRP)
    A.e("s_mul_i32 s72, s%d, 224" % S_GRP)
    A.e("s_lshr_b32 s%d, s%d, 1" % (S_T0, S_WAVE))
    A.e("s_cmp_eq_u32 s%d, 1" % S_T0)
    A.e("s_cbranch_scc1 K1_D")
    A.e("s_cmp_eq_u32 s%d, 2" % S_T0)
    A.e("s_cbranch_scc1 K1_B")
    A.e("s_cmp_eq_u32 s%d, 3" % S_T0)
    A.e("s_cbranch_scc1 K1_C")
    base_vm = list(A.vm)
    for typ in ("A", "D", "B", "C"):
        A.vm = list(base_vm)
        A.label("K1_" + typ)
        gen_k1_type(A, typ)
        A.e("s_branch K1_END")
    A.label("K1_END")
    A.e("s_endpgm")

def gen_k1_type(A, typ):
    slots = [(S_X, 64)]
    if typ == "A":
        emit_T2_doff(A, V_DOFF + 1, 2688, 71, S_RH)
        A.e("s_lshl_b32 s%d, s%d, 10" % (S_T0, S_RH))
        A.e("s_add_u32 s%d, s%d, %d" % (S_DST + 1, S_T0, OFF_QKV))
        slots.append((S_Q, 32 * 2688))
        emit_raddr(A, V_WA, "T2", 0)
        emit_raddr(A, V_WA + 1, "T2", 1)
        nwa = 2
        tiles = [("q", 0, "T2", 0, OFF_QKV), ("q", 1, "T2", 1, OFF_QKV),
                 ("k", 0, "T2", 0, OFF_QKV + 2048), ("k", 1, "T2", 1, OFF_QKV + 2048),
                 ("v", 0, "T2", 0, OFF_QKV + 4096), ("v", 1, "T2", 1, OFF_QKV + 4096)]
    elif typ == "D":
        A.e("s_add_u32 s73, s71, 896")
        emit_T2_doff(A, V_DOFF + 1, 2688, 73, S_RH)
        A.e("s_lshl_b32 s%d, s%d, 10" % (S_T0, S_RH))
        A.e("s_add_u32 s%d, s%d, %d" % (S_DST + 1, S_T0, OFF_QKV + 2048))
        slots.append((S_Q, 32 * 2688))
        emit_raddr(A, V_WA, "T2", 0)
        emit_raddr(A, V_WA + 1, "T2", 1)
        emit_raddr(A, V_WA + 2, "T1", 0)
        nwa = 3
        tiles = [("g", 4, "T2", 0, OFF_G2), ("u", 4, "T2", 0, OFF_U2),
                 ("g", 5, "T2", 1, OFF_G2), ("u", 5, "T2", 1, OFF_U2),
                 ("g", 6, "T1", 2, OFF_G1), ("u", 6, "T1", 2, OFF_U1)]
    elif typ == "B":
        A.e("s_add_u32 s73, s71, 1792")
        emit_T2_doff(A, V_DOFF + 1, 2688, 73, S_RH)
        A.e("s_lshl_b32 s%d, s%d, 10" % (S_T0, S_RH))
        A.e("s_add_u32 s%d, s%d, %d" % (S_DST + 1, S_T0, OFF_QKV + 4096))
        slots.append((S_Q, 32 * 2688))
        for i in range(2):
            A.e("s_lshl_b32 s74, s%d, 1" % S_RH)
            A.e("s_add_u32 s74, s74, %d" % i)
            emit_T4_doff_k1(A, V_DOFF + 2 + i, 3584, 72, 74)
            A.e("s_lshl_b32 s%d, s74, 10" % S_T0)
            A.e("s_add_u32 s%d, s%d, %d" % (S_DST + 2 + i, S_T0, OFF_G4))
            slots.append((S_G, 32 * 3584))
        A.e("s_add_u32 s73, s72, 128")
        emit_T2_doff(A, V_DOFF + 4, 3584, 73, S_RH)
        A.e("s_lshl_b32 s%d, s%d, 10" % (S_T0, S_RH))
        A.e("s_add_u32 s%d, s%d, %d" % (S_DST + 4, S_T0, OFF_G2))
        slots.append((S_G, 32 * 3584))
        emit_raddr(A, V_WA, "T4", 0)
        emit_raddr(A, V_WA + 1, "T4", 1)
        nwa = 2
        tiles = [("g", 0, "T4", 0, OFF_G4), ("u", 0, "T4", 0, OFF_U4),
                 ("g", 1, "T4", 1, OFF_G4), ("u", 1, "T4", 1, OFF_U4)]
    else:
        for i in range(2):
            A.e("s_lshl_b32 s74, s%d, 1" % S_RH)
            A.e("s_add_u32 s74, s74, %d" % i)
            emit_T4_doff_k1(A, V_DOFF + 1 + i, 3584, 72, 74)
            A.e("s_lshl_b32 s%d, s74, 10" % S_T0)
            A.e("s_add_u32 s%d, s%d, %d" % (S_DST + 1 + i, S_T0, OFF_U4))
            slots.append((S_U, 32 * 3584))
        A.e("s_add_u32 s73, s72, 128")
        emit_T2_doff(A, V_DOFF + 3, 3584, 73, S_RH)
        A.e("s_lshl_b32 s%d, s%d, 10" % (S_T0, S_RH))
        A.e("s_add_u32 s%d, s%d, %d" % (S_DST + 3, S_T0, OFF_U2))
        slots.append((S_U, 32 * 3584))
        A.e("s_add_u32 s73, s72, 192")
        emit_T1_doff(A, V_DOFF + 4, 3584, 73)
        A.e("s_mul_i32 s%d, s%d, %d" % (S_T0, S_RH, OFF_U1 - OFF_G1))
        A.e("s_add_u32 s%d, s%d, %d" % (S_DST + 4, S_T0, OFF_G1))
        slots.append((S_SP, 32 * 3584))
        emit_raddr(A, V_WA, "T4", 2)
        emit_raddr(A, V_WA + 1, "T4", 3)
        nwa = 2
        tiles = [("g", 2, "T4", 0, OFF_G4), ("u", 2, "T4", 0, OFF_U4),
                 ("g", 3, "T4", 1, OFF_G4), ("u", 3, "T4", 1, OFF_U4)]
    for i in range(nwa):
        A.e("v_add_u32 v%d, %d, v%d" % (V_WA + 3 + i, HI, V_WA + i))

    def issue_dma(stage):
        slot = stage % NSTG
        for i, (s, stride) in enumerate(slots):
            A.e("s_add_u32 m0, s%d, %d" % (S_DST + i, slot * STAGE))
            A.e("s_mov_b32 s%d, %d" % (S_SO, stage * stride))
            A.vmem("buffer_load_dwordx4 v%d, s[%d:%d], s%d offen lds" % (V_DOFF + i, s, s + 3, S_SO), ("st", stage))

    def read_list(stage):
        slot = stage % NSTG
        st = stage & 1
        hi = 1 if slot >= 2 else 0
        base = (slot - 2 * hi) * STAGE
        out = []
        for rt in range(4):
            out.append("ds_read_b128 v[%d:%d], v%d offset:%d" % (V_XF + st * 16 + rt * 4, V_XF + st * 16 + rt * 4 + 3, V_XA + hi, base + OFF_X + rt * 1024))
        for ti, (nm, idx, kind, av, off) in enumerate(tiles):
            d = V_WF + st * 24 + ti * 4
            for p in range(2):
                out.append("ds_read_b64_tr_b16 v[%d:%d], v%d offset:%d" % (d + 2 * p, d + 2 * p + 1, V_WA + av + 3 * hi, base + off + p * POFF[kind]))
        return out

    for st in range(3):
        issue_dma(st)
    A.wait_vm("gate")
    GX = 96; GWV = 100
    T = V_T
    A.e("v_mov_b32 v%d, 0" % V_GATE)
    for d in range(4):
        unpack2(A, T, T + 1, GX + d)
        unpack2(A, T + 2, T + 3, GWV + d)
        A.e("v_pk_mul_f32 v[%d:%d], v[%d:%d], v[%d:%d]" % (T, T + 1, T, T + 1, T + 2, T + 3))
        A.e("v_cvt_pk_bf16_f32 v%d, v%d, v%d" % (T + 4, T, T + 1))
        unpack2(A, T, T + 1, T + 4)
        A.e("v_add_f32 v%d, v%d, v%d" % (V_GATE, V_GATE, T))
        A.e("v_add_f32 v%d, v%d, v%d" % (V_GATE, V_GATE, T + 1))
    A.e("s_nop 1")
    A.e("v_add_f32_dpp v%d, v%d, v%d quad_perm:[1,0,3,2] row_mask:0xf bank_mask:0xf" % (V_GATE, V_GATE, V_GATE))
    A.e("s_nop 1")
    A.e("v_add_f32_dpp v%d, v%d, v%d quad_perm:[2,3,0,1] row_mask:0xf bank_mask:0xf" % (V_GATE, V_GATE, V_GATE))
    A.e("s_nop 1")
    A.e("v_add_f32_dpp v%d, v%d, v%d row_half_mirror row_mask:0xf bank_mask:0xf" % (V_GATE, V_GATE, V_GATE))
    A.e("s_nop 1")
    A.e("v_add_f32_dpp v%d, v%d, v%d row_mirror row_mask:0xf bank_mask:0xf" % (V_GATE, V_GATE, V_GATE))
    A.e("s_nop 1")
    A.e("v_readlane_b32 s%d, v%d, 16" % (S_T0, V_GATE))
    A.e("v_readlane_b32 s%d, v%d, 32" % (S_T1, V_GATE))
    A.e("v_readlane_b32 s%d, v%d, 48" % (S_T2, V_GATE))
    A.e("s_nop 1")
    A.e("v_add_f32 v%d, s%d, v%d" % (V_GATE, S_T0, V_GATE))
    A.e("v_add_f32 v%d, s%d, v%d" % (V_GATE, S_T1, V_GATE))
    A.e("v_add_f32 v%d, s%d, v%d" % (V_GATE, S_T2, V_GATE))
    A.e("v_cvt_pk_bf16_f32 v%d, v%d, v%d" % (V_GATE, V_GATE, V_GATE))
    A.e("v_lshlrev_b32 v%d, 16, v%d" % (V_GATE, V_GATE))
    A.e("v_mul_f32 v%d, s%d, v%d" % (V_GATE, S_NL2E, V_GATE))
    A.e("v_exp_f32 v%d, v%d" % (V_GATE, V_GATE))
    A.e("s_nop 0")
    A.e("v_add_f32 v%d, 1.0, v%d" % (V_GATE, V_GATE))
    A.e("v_rcp_f32 v%d, v%d" % (V_GATE, V_GATE))
    A.e("s_nop 0")
    A.e("v_cvt_pk_bf16_f32 v%d, v%d, v%d" % (V_GATE, V_GATE, V_GATE))
    A.e("v_lshlrev_b32 v%d, 16, v%d" % (V_GATE, V_GATE))

    A.wait_vm(("st", 0))
    A.e("s_barrier")
    for r in read_list(0):
        A.e(r)
    NK = 14
    for s in range(NK):
        A.c("---- step %d ----" % s)
        if s + 1 < NK:
            A.wait_vm(("st", s + 1), "lgkmcnt(0)")
            A.e("s_barrier")
        else:
            A.e("s_waitcnt lgkmcnt(0)")
        if s + 3 < NK:
            issue_dma(s + 3)
        reads = read_list(s + 1) if s + 1 < NK else []
        st = s & 1
        mf = []
        for ti, (nm, idx, kind, av, off) in enumerate(tiles):
            for rt in range(4):
                acc = V_ACC + (ti * 4 + rt) * 4
                xf = V_XF + st * 16 + rt * 4
                wf = V_WF + st * 24 + ti * 4
                cin = "0" if s == 0 else "v[%d:%d]" % (acc, acc + 3)
                if nm in ("k", "v"):
                    a, b = xf, wf
                else:
                    a, b = wf, xf
                mf.append("v_mfma_f32_16x16x32_bf16 v[%d:%d], v[%d:%d], v[%d:%d], %s" % (acc, acc + 3, a, a + 3, b, b + 3, cin))
        ri = 0
        for m in mf:
            A.e(m)
            if ri < len(reads):
                A.e(reads[ri]); ri += 1
        while ri < len(reads):
            A.e(reads[ri]); ri += 1

    A.c("---- epilogue ----")
    A.nop(10)
    A.e("v_mov_b32 v%d, 0x7ffffff0" % (V_T + 1))
    A.e("v_mov_b32 v%d, %d" % (V_T, WS_G))
    A.e("v_cmp_eq_u32 vcc, 0, v%d" % V_LANE)
    A.e("s_nop 1")
    A.e("v_cndmask_b32 v%d, v%d, v%d, vcc" % (V_T, V_T + 1, V_T))
    A.vmem("buffer_store_dword v%d, v%d, s[%d:%d], s70 offen" % (V_GATE, V_T, S_W, S_W + 3), "out")
    VL16 = 16
    A.e("v_lshlrev_b32 v%d, 4, v%d" % (VL16, V_LANE))
    TMP = 32
    if typ == "A":
        M48, M12, ONE12 = 2, 3, 4
        A.e("v_cmp_gt_u32 vcc, 48, v%d" % V_LANE)
        A.e("s_nop 1")
        A.e("v_cndmask_b32 v%d, 0, -1, vcc" % M48)
        A.e("v_and_b32 v%d, 15, v%d" % (V_T, V_LANE))
        A.e("v_cmp_gt_u32 vcc, 12, v%d" % V_T)
        A.e("s_nop 1")
        A.e("v_cndmask_b32 v%d, 0, -1, vcc" % M12)
        A.e("v_mov_b32 v%d, 0x3f803f80" % (V_T + 1))
        A.e("v_cmp_eq_u32 vcc, 12, v%d" % V_T)
        A.e("s_nop 1")
        A.e("v_cndmask_b32 v%d, 0, v%d, vcc" % (ONE12, V_T + 1))
        QF = 48
        for rt in range(4):
            for dt in range(2):
                acc = V_ACC + ((0 + dt) * 4 + rt) * 4
                emit_phi4(A, acc, QF + rt * 4 + dt * 2, TMP)
            A.e("v_and_b32 v%d, v%d, v%d" % (QF + rt * 4 + 2, QF + rt * 4 + 2, M48))
            A.e("v_and_b32 v%d, v%d, v%d" % (QF + rt * 4 + 3, QF + rt * 4 + 3, M48))
            A.e("s_add_u32 s%d, s%d, %d" % (S_T0, S_R0T, rt))
            A.e("s_lshl_b32 s%d, s%d, 4" % (S_T0, S_T0))
            A.e("s_add_u32 s%d, s%d, s%d" % (S_T0, S_T0, S_GRP))
            A.e("s_lshl_b32 s%d, s%d, 10" % (S_T0, S_T0))
            A.e("s_add_u32 s%d, s%d, %d" % (S_T0, S_T0, WS_PQ))
            A.vmem("buffer_store_dwordx4 v[%d:%d], v%d, s[%d:%d], s%d offen" % (QF + rt * 4, QF + rt * 4 + 3, VL16, S_W, S_W + 3, S_T0), "out")
        KP, VP = 64, 80
        for dt in range(2):
            for rt in range(4):
                acc = V_ACC + ((2 + dt) * 4 + rt) * 4
                d = KP + dt * 8 + rt * 2
                emit_phi4(A, acc, d, TMP)
                if dt == 1:
                    A.e("v_and_b32 v%d, v%d, v%d" % (d, d, M12))
                    A.e("v_and_b32 v%d, v%d, v%d" % (d + 1, d + 1, M12))
        for et in range(2):
            for rt in range(4):
                acc = V_ACC + ((4 + et) * 4 + rt) * 4
                d = VP + et * 8 + rt * 2
                for h in range(2):
                    A.e("v_cvt_pk_bf16_f32 v%d, v%d, v%d" % (d + h, acc + 2 * h, acc + 2 * h + 1))
                    if et == 1:
                        A.e("v_and_or_b32 v%d, v%d, v%d, v%d" % (d + h, d + h, M12, ONE12))
        A.nop(2)
        KV = 96
        for blk in range(2):
            for dt in range(2):
                for et in range(2):
                    acc = KV + (dt * 2 + et) * 4
                    a = KP + dt * 8 + blk * 4
                    b = VP + et * 8 + blk * 4
                    cin = "0" if blk == 0 else "v[%d:%d]" % (acc, acc + 3)
                    A.e("v_mfma_f32_16x16x32_bf16 v[%d:%d], v[%d:%d], v[%d:%d], %s" % (acc, acc + 3, a, a + 3, b, b + 3, cin))
        A.nop(10)
        A.e("s_lshl_b32 s%d, s%d, 5" % (S_T0, S_GRP))
        A.e("s_lshl_b32 s%d, s%d, 1" % (S_T1, S_RB))
        A.e("s_add_u32 s%d, s%d, s%d" % (S_T0, S_T0, S_T1))
        A.e("s_add_u32 s%d, s%d, s%d" % (S_T0, S_T0, S_RH))
        A.e("s_lshl_b32 s%d, s%d, 12" % (S_T0, S_T0))
        A.e("s_add_u32 s%d, s%d, %d" % (S_T0, S_T0, WS_KVP))
        for t in range(4):
            A.vmem("buffer_store_dwordx4 v[%d:%d], v%d, s[%d:%d], s%d offen offset:%d" % (KV + t * 4, KV + t * 4 + 3, VL16, S_W, S_W + 3, S_T0, t * 1024), "out")
    else:
        npair = len(tiles) // 2
        HP = 48
        k = 0
        for p in range(npair):
            tidx = tiles[2 * p][1]
            A.e("s_mul_i32 s%d, s%d, 7" % (S_T1, S_GRP))
            A.e("s_add_u32 s%d, s%d, %d" % (S_T1, S_T1, tidx))
            A.e("s_and_b32 s%d, s%d, 1" % (S_T2, S_T1))
            A.e("s_lshl_b32 s%d, s%d, 3" % (S_T2, S_T2))
            A.e("s_lshr_b32 s%d, s%d, 1" % (S_T1, S_T1))
            A.e("s_lshl_b32 s%d, s%d, 10" % (S_T1, S_T1))
            A.e("s_add_u32 s%d, s%d, s%d" % (S_T1, S_T1, S_T2))
            for rt in range(4):
                g = V_ACC + ((2 * p) * 4 + rt) * 4
                u = V_ACC + ((2 * p + 1) * 4 + rt) * 4
                d = HP + (k % 8) * 2
                k += 1
                emit_swiglu4(A, g, u, d, TMP)
                A.e("s_add_u32 s%d, s%d, %d" % (S_T0, S_R0T, rt))
                A.e("s_mul_i32 s%d, s%d, %d" % (S_T0, S_T0, 56 * 1024))
                A.e("s_add_u32 s%d, s%d, s%d" % (S_T0, S_T0, S_T1))
                A.vmem("buffer_store_dwordx2 v[%d:%d], v%d, s[%d:%d], s%d offen" % (d, d + 1, VL16, S_W, S_W + 3, S_T0), "out")

K2_SW2, K2_SWO, K2_SWS, K2_SOUT, K2_SDBG = 16, 20, 24, 28, 32
K2_MT, K2_NT, K2_WAVE = 44, 45, 46
K2_LB = 47
K2_HB = 52
K2_PB = 53
K2_W2B = 54
K2_WOB = 55
K2_KVB = 56
RING = 8
DEPTH = 4
W_LANE = 1
W_DOFF = 2
W_L16 = 3
W_RA = 4
W_FLAG = 8
W_ZOFF = 9
W_G = 10
W_T = 12
W_BF = 32
NBUF = DEPTH + 1
W_AF = 112
W_KV = 144
W_O = 192
K2_NV = 232

def gen_k2(A):
    A.vm = []
    A.label("k2_kernel")
    A.e("s_cmp_ge_u32 s2, 240")
    A.e("s_cbranch_scc1 K2_END")
    A.e("s_load_dwordx2 s[4:5], s[0:1], 16")
    A.e("s_load_dwordx2 s[6:7], s[0:1], 48")
    A.e("s_load_dwordx4 s[8:11], s[0:1], 64")
    A.e("s_load_dwordx2 s[12:13], s[0:1], 80")
    A.e("v_and_b32 v%d, 63, v0" % W_LANE)
    A.e("v_lshrrev_b32 v%d, 6, v0" % W_T)
    A.e("s_nop 0")
    A.e("v_readfirstlane_b32 s%d, v%d" % (K2_WAVE, W_T))
    A.e("v_lshlrev_b32 v%d, 4, v%d" % (W_L16, W_LANE))
    k1_consts(A)
    A.e("s_waitcnt lgkmcnt(0)")
    srd(A, K2_SW2, 6, 1792 * 896)
    srd(A, K2_SWO, 4, 448 * 896)
    srd(A, K2_SWS, 12, WS_SIZE)
    srd(A, K2_SOUT, 8, 2048 * 896)
    srd(A, K2_SDBG, 10, 256)
    A.e("s_cmp_lt_u32 s2, 16")
    A.e("s_cbranch_scc1 K2_RED")
    A.e("s_sub_u32 s48, s2, 16")
    A.e("s_and_b32 s49, s48, 7")
    A.e("s_lshl_b32 s49, s49, 2")
    A.e("s_lshr_b32 s50, s48, 3")
    A.e("s_and_b32 s51, s50, 3")
    A.e("s_add_u32 s%d, s49, s51" % K2_MT)
    A.e("s_lshr_b32 s%d, s50, 2" % K2_NT)
    A.e("s_lshl_b32 s%d, s%d, 15" % (K2_LB, K2_WAVE))
    A.e("s_mul_i32 s48, s%d, %d" % (K2_MT, 4 * 56 * 1024))
    A.e("s_mul_i32 s49, s%d, %d" % (K2_WAVE, 14 * 1024))
    A.e("s_add_u32 s%d, s48, s49" % K2_HB)
    A.e("s_lshl_b32 s48, s%d, 16" % K2_MT)
    A.e("s_lshl_b32 s49, s%d, 12" % K2_WAVE)
    A.e("s_add_u32 s48, s48, s49")
    A.e("s_add_u32 s%d, s48, %d" % (K2_PB, WS_PQ))
    A.e("s_mul_i32 s48, s%d, %d" % (K2_WAVE, 448 * 896))
    A.e("s_lshl_b32 s49, s%d, 7" % K2_NT)
    A.e("s_add_u32 s%d, s48, s49" % K2_W2B)
    A.e("s_mul_i32 s48, s%d, %d" % (K2_WAVE, 112 * 896))
    A.e("s_add_u32 s%d, s48, s49" % K2_WOB)
    A.e("s_lshl_b32 s48, s%d, 13" % K2_WAVE)
    A.e("s_add_u32 s%d, s48, %d" % (K2_KVB, WS_KVF))
    t0, t1, t2 = W_T, W_T + 1, W_T + 2
    A.e("v_lshrrev_b32 v%d, 3, v%d" % (t0, W_LANE))
    A.e("v_lshrrev_b32 v%d, 4, v%d" % (t1, W_LANE))
    A.e("v_lshrrev_b32 v%d, 1, v%d" % (t2, W_LANE))
    A.e("v_xor_b32 v%d, v%d, v%d" % (t1, t1, t2))
    A.e("v_and_b32 v%d, 3, v%d" % (t1, t1))
    A.e("v_lshlrev_b32 v%d, 5, v%d" % (t1, t1))
    A.e("v_mul_u32_u24 v%d, 896, v%d" % (t0, t0))
    A.e("v_and_b32 v%d, 1, v%d" % (t2, W_LANE))
    A.e("v_lshlrev_b32 v%d, 4, v%d" % (t2, t2))
    A.e("v_add3_u32 v%d, v%d, v%d, v%d" % (W_DOFF, t0, t1, t2))
    global V_T, V_LANE
    sv = (V_T, V_LANE)
    V_T, V_LANE = W_T, W_LANE
    for t in range(4):
        emit_raddr(A, W_RA + t, "T4K2", t)
        A.e("v_add_u32 v%d, s%d, v%d" % (W_RA + t, K2_LB, W_RA + t))
    V_T, V_LANE = sv
    A.e("v_lshrrev_b32 v%d, 4, v%d" % (t0, W_LANE))
    A.e("v_lshlrev_b32 v%d, 8, v%d" % (t0, t0))
    A.e("v_add_u32 v%d, %d, v%d" % (W_ZOFF, 1024 + 12 * 16, t0))

    NS = 18
    def issue(step):
        slot = step % RING
        buf = step % NBUF
        if step < 14:
            srdw = K2_SW2; base = K2_W2B; rowoff = step * 32 * 896
        else:
            srdw = K2_SWO; base = K2_WOB; rowoff = (step - 14) * 28 * 896
        for o in range(4):
            A.e("s_add_u32 m0, s%d, %d" % (K2_LB, slot * 4096 + o * 1024))
            A.e("s_add_u32 s48, s%d, %d" % (base, rowoff + o * 8 * 896))
            A.vmem("buffer_load_dwordx4 v%d, s[%d:%d], s48 offen lds" % (W_DOFF, srdw, srdw + 3), ("st", step))
        for rt in range(4):
            d = W_BF + buf * 16 + rt * 4
            if step < 14:
                A.e("s_add_u32 s48, s%d, %d" % (K2_HB, rt * 56 * 1024 + step * 1024))
            else:
                A.e("s_add_u32 s48, s%d, %d" % (K2_PB, rt * 16 * 1024 + (step - 14) * 1024))
            A.vmem("buffer_load_dwordx4 v[%d:%d], v%d, s[%d:%d], s48 offen" % (d, d + 3, W_L16, K2_SWS, K2_SWS + 3), ("st", step))
    def reads(step):
        slot = step % RING
        st = step & 1
        out = []
        for t in range(4):
            d = W_AF + st * 16 + t * 4
            for p in range(2):
                out.append("ds_read_b64_tr_b16 v[%d:%d], v%d offset:%d" % (d + 2 * p, d + 2 * p + 1, W_RA + t, slot * 4096 + p * 2048))
        return out

    for s in range(DEPTH):
        issue(s)
    A.wait_vm(("st", 0))
    for r in reads(0):
        A.e(r)
    for s in range(NS):
        A.c("---- k2 step %d ----" % s)
        if s + DEPTH < NS:
            issue(s + DEPTH)
        if s == 6:
            A.e("v_mov_b32 v%d, 0" % W_T)
            A.vmem("buffer_load_dword v%d, v%d, s[%d:%d], 0 offen sc1" % (W_FLAG, W_T, K2_SDBG, K2_SDBG + 3), "flag")
            A.e("v_and_b32 v%d, 15, v%d" % (W_T + 1, W_LANE))
            A.e("v_lshlrev_b32 v%d, 2, v%d" % (W_T + 1, W_T + 1))
            A.e("s_lshl_b32 s48, s%d, 8" % K2_MT)
            A.e("s_lshl_b32 s49, s%d, 6" % K2_WAVE)
            A.e("s_add_u32 s48, s48, s49")
            A.e("s_add_u32 s48, s48, %d" % WS_G)
            A.vmem("buffer_load_dword v%d, v%d, s[%d:%d], s48 offen" % (W_G, W_T + 1, K2_SWS, K2_SWS + 3), "gate")
        if s == 11:
            A.wait_vm("gate")
            A.e("v_readfirstlane_b32 s48, v%d" % W_FLAG)
            A.e("s_cmp_ge_u32 s48, 16")
            A.e("s_cbranch_scc1 K2_FLAG_OK")
            A.label("K2_SPIN")
            A.e("s_sleep 8")
            A.e("v_mov_b32 v%d, 0" % W_T)
            A.e("buffer_load_dword v%d, v%d, s[%d:%d], 0 offen sc1" % (W_FLAG, W_T, K2_SDBG, K2_SDBG + 3))
            A.e("s_waitcnt vmcnt(0)")
            A.e("v_readfirstlane_b32 s48, v%d" % W_FLAG)
            A.e("s_cmp_lt_u32 s48, 16")
            A.e("s_cbranch_scc1 K2_SPIN")
            A.label("K2_FLAG_OK")
            for h in range(4):
                d = W_KV + h * 12
                A.e("s_add_u32 s48, s%d, %d" % (K2_KVB, h * 2048))
                A.vmem("buffer_load_dwordx4 v[%d:%d], v%d, s[%d:%d], s48 offen sc1" % (d, d + 3, W_L16, K2_SWS, K2_SWS + 3), "kv")
                A.vmem("buffer_load_dwordx4 v[%d:%d], v%d, s[%d:%d], s48 offen offset:1024 sc1" % (d + 4, d + 7, W_L16, K2_SWS, K2_SWS + 3), "kv")
                A.vmem("buffer_load_dwordx4 v[%d:%d], v%d, s[%d:%d], s48 offen sc1" % (d + 8, d + 11, W_ZOFF, K2_SWS, K2_SWS + 3), "kv")
        rd = []
        if s + 1 < NS:
            A.wait_vm(("st", s + 1), "lgkmcnt(0)")
            rd = reads(s + 1)
        else:
            A.e("s_waitcnt lgkmcnt(0)")
        st = s & 1
        buf = s % NBUF
        if s < 14:
            mf = []
            for t in range(4):
                for rt in range(4):
                    acc = (t * 4 + rt) * 4
                    a = W_AF + st * 16 + t * 4
                    b = W_BF + buf * 16 + rt * 4
                    cin = "0" if s == 0 else "a[%d:%d]" % (acc, acc + 3)
                    mf.append("v_mfma_f32_16x16x32_bf16 a[%d:%d], v[%d:%d], v[%d:%d], %s" % (acc, acc + 3, a, a + 3, b, b + 3, cin))
            ri = 0
            for m in mf:
                A.e(m)
                if ri < len(rd):
                    A.e(rd[ri]); ri += 1
        else:
            for r in rd:
                A.e(r)
            h = s - 14
            if h == 0:
                A.wait_vm("kv")
                A.e("v_cmp_gt_u32 vcc, 48, v%d" % W_LANE)
                A.e("s_nop 1")
                A.e("v_cndmask_b32 v%d, 0, -1, vcc" % (W_FLAG))
            kv = W_KV + h * 12
            for rt in range(4):
                b = W_BF + buf * 16 + rt * 4
                N0 = W_O; N1 = W_O + 4; DN = W_O + 8; OF = W_O + 12 + (rt & 1) * 4; T = W_O + 20
                A.e("v_mfma_f32_16x16x32_bf16 v[%d:%d], v[%d:%d], v[%d:%d], 0" % (N0, N0 + 3, kv, kv + 3, b, b + 3))
                A.e("v_mfma_f32_16x16x32_bf16 v[%d:%d], v[%d:%d], v[%d:%d], 0" % (N1, N1 + 3, kv + 4, kv + 7, b, b + 3))
                A.e("v_mfma_f32_16x16x32_bf16 v[%d:%d], v[%d:%d], v[%d:%d], 0" % (DN, DN + 3, kv + 8, kv + 11, b, b + 3))
                A.nop(9)
                A.e("v_cvt_pk_bf16_f32 v%d, v%d, v%d" % (T, DN, DN))
                A.e("v_lshlrev_b32 v%d, 16, v%d" % (T, T))
                A.e("v_add_f32 v%d, s%d, v%d" % (T, S_EPS, T))
                A.e("v_cvt_pk_bf16_f32 v%d, v%d, v%d" % (T, T, T))
                A.e("v_lshlrev_b32 v%d, 16, v%d" % (T, T))
                A.e("v_rcp_f32 v%d, v%d" % (T, T))
                for i in range(4):
                    A.e("v_cvt_pk_bf16_f32 v%d, v%d, v%d" % (OF + i, N0 + 2 * i, N0 + 2 * i + 1))
                A.e("v_mov_b32 v%d, v%d" % (T + 1, T))
                for i in range(4):
                    unpack2(A, T + 2, T + 3, OF + i)
                    A.e("v_pk_mul_f32 v[%d:%d], v[%d:%d], v[%d:%d]" % (T + 2, T + 3, T + 2, T + 3, T, T + 1))
                    A.e("v_cvt_pk_bf16_f32 v%d, v%d, v%d" % (OF + i, T + 2, T + 3))
                A.e("v_and_b32 v%d, v%d, v%d" % (OF + 2, OF + 2, W_FLAG))
                A.e("v_and_b32 v%d, v%d, v%d" % (OF + 3, OF + 3, W_FLAG))
                A.nop(2)
                for t in range(4):
                    acc = 64 + (t * 4 + rt) * 4
                    a = W_AF + st * 16 + t * 4
                    cin = "0" if h == 0 else "a[%d:%d]" % (acc, acc + 3)
                    A.e("v_mfma_f32_16x16x32_bf16 a[%d:%d], v[%d:%d], v[%d:%d], %s" % (acc, acc + 3, a, a + 3, OF, OF + 3, cin))
    A.c("---- k2 epilogue ----")
    A.nop(10)
    A.e("s_barrier")
    A.e("s_lshl_b32 s48, s%d, 13" % K2_WAVE)
    A.e("v_add_u32 v%d, s48, v%d" % (W_T, W_L16))
    for rt in range(4):
        A.e("s_cmp_eq_u32 s%d, %d" % (K2_WAVE, rt))
        A.e("s_cbranch_scc1 K2_SKIPW%d" % rt)
        A.e("v_add_u32 v%d, %d, v%d" % (W_T + 1, rt * 32768, W_T))
        for part in range(2):
            for t in range(4):
                acc = part * 64 + (t * 4 + rt) * 4
                A.e("ds_write_b128 v%d, a[%d:%d] offset:%d" % (W_T + 1, acc, acc + 3, part * 4096 + t * 1024))
        A.label("K2_SKIPW%d" % rt)
    A.e("s_waitcnt lgkmcnt(0)")
    A.e("s_barrier")
    for rt in range(4):
        A.e("s_cmp_lg_u32 s%d, %d" % (K2_WAVE, rt))
        A.e("s_cbranch_scc1 K2_SKIPM%d" % rt)
        for part in range(2):
            for t in range(4):
                acc = part * 64 + (t * 4 + rt) * 4
                for i in range(4):
                    A.e("v_accvgpr_read_b32 v%d, a%d" % (32 + (part * 4 + t) * 4 + i, acc + i))
        A.label("K2_SKIPM%d" % rt)
    A.e("s_lshl_b32 s48, s%d, 15" % K2_WAVE)
    A.e("v_add_u32 v%d, s48, v%d" % (W_T, W_L16))
    for src in range(4):
        A.e("s_cmp_eq_u32 s%d, %d" % (K2_WAVE, src))
        A.e("s_cbranch_scc1 K2_SKIPR%d" % src)
        for q in range(8):
            A.e("ds_read_b128 v[%d:%d], v%d offset:%d" % (64 + q * 4, 64 + q * 4 + 3, W_T, src * 8192 + q * 1024))
        A.e("s_waitcnt lgkmcnt(0)")
        for q in range(16):
            A.e("v_pk_add_f32 v[%d:%d], v[%d:%d], v[%d:%d]" % (32 + 2 * q, 33 + 2 * q, 32 + 2 * q, 33 + 2 * q, 64 + 2 * q, 65 + 2 * q))
        A.label("K2_SKIPR%d" % src)
    A.e("v_sub_f32 v%d, 1.0, v%d" % (W_T + 2, W_G))
    A.e("v_cvt_pk_bf16_f32 v%d, v%d, v%d" % (W_T + 2, W_T + 2, W_T + 2))
    A.e("v_lshlrev_b32 v%d, 16, v%d" % (W_T + 2, W_T + 2))
    A.e("v_mov_b32 v%d, v%d" % (W_T + 3, W_T + 2))
    A.e("v_mov_b32 v%d, v%d" % (W_T + 4, W_G))
    A.e("v_mov_b32 v%d, v%d" % (W_T + 5, W_G))
    A.e("v_and_b32 v%d, 15, v%d" % (W_T + 6, W_LANE))
    A.e("v_mul_u32_u24 v%d, 896, v%d" % (W_T + 6, W_T + 6))
    A.e("v_lshrrev_b32 v%d, 4, v%d" % (W_T + 7, W_LANE))
    A.e("v_lshl_add_u32 v%d, v%d, 3, v%d" % (W_T + 6, W_T + 7, W_T + 6))
    A.e("s_lshl_b32 s48, s%d, 6" % K2_MT)
    A.e("s_lshl_b32 s49, s%d, 4" % K2_WAVE)
    A.e("s_add_u32 s48, s48, s49")
    A.e("s_mul_i32 s48, s48, 896")
    A.e("s_lshl_b32 s49, s%d, 7" % K2_NT)
    A.e("s_add_u32 s48, s48, s49")
    X = 64
    for t in range(4):
        for h in range(2):
            bq = 32 + t * 4 + 2 * h
            aq = 48 + t * 4 + 2 * h
            A.e("v_cvt_pk_bf16_f32 v%d, v%d, v%d" % (X, bq, bq + 1))
            A.e("v_cvt_pk_bf16_f32 v%d, v%d, v%d" % (X + 1, aq, aq + 1))
            unpack2(A, X + 2, X + 3, X)
            unpack2(A, X + 4, X + 5, X + 1)
            A.e("v_pk_mul_f32 v[%d:%d], v[%d:%d], v[%d:%d]" % (X + 2, X + 3, X + 2, X + 3, W_T + 2, W_T + 3))
            A.e("v_pk_mul_f32 v[%d:%d], v[%d:%d], v[%d:%d]" % (X + 4, X + 5, X + 4, X + 5, W_T + 4, W_T + 5))
            A.e("v_cvt_pk_bf16_f32 v%d, v%d, v%d" % (X, X + 2, X + 3))
            A.e("v_cvt_pk_bf16_f32 v%d, v%d, v%d" % (X + 1, X + 4, X + 5))
            unpack2(A, X + 2, X + 3, X)
            unpack2(A, X + 4, X + 5, X + 1)
            A.e("v_pk_add_f32 v[%d:%d], v[%d:%d], v[%d:%d]" % (X + 2, X + 3, X + 2, X + 3, X + 4, X + 5))
            A.e("v_cvt_pk_bf16_f32 v%d, v%d, v%d" % (X + 8 + t * 2 + h, X + 2, X + 3))
        A.e("buffer_store_dwordx2 v[%d:%d], v%d, s[%d:%d], s48 offen offset:%d" % (X + 8 + t * 2, X + 9 + t * 2, W_T + 6, K2_SOUT, K2_SOUT + 3, t * 32))
    A.e("s_branch K2_END")

    A.label("K2_RED")
    A.vm = []
    A.e("s_lshl_b32 s48, s2, 17")
    A.e("s_lshl_b32 s49, s%d, 10" % K2_WAVE)
    A.e("s_add_u32 s48, s48, s49")
    A.e("s_add_u32 s48, s48, %d" % WS_KVP)
    for p in range(32):
        A.e("s_add_u32 s49, s48, %d" % (p * 4096))
        A.vmem("buffer_load_dwordx4 v[%d:%d], v%d, s[%d:%d], s49 offen" % (32 + p * 4, 35 + p * 4, W_L16, K2_SWS, K2_SWS + 3), ("p", p))
    A.wait_vm(("p", 1))
    A.e("v_pk_add_f32 v[32:33], v[32:33], v[36:37]")
    A.e("v_pk_add_f32 v[34:35], v[34:35], v[38:39]")
    for p in range(2, 32):
        A.wait_vm(("p", p))
        A.e("v_pk_add_f32 v[32:33], v[32:33], v[%d:%d]" % (32 + p * 4, 33 + p * 4))
        A.e("v_pk_add_f32 v[34:35], v[34:35], v[%d:%d]" % (34 + p * 4, 35 + p * 4))
    A.e("v_cvt_pk_bf16_f32 v20, v32, v33")
    A.e("v_cvt_pk_bf16_f32 v21, v34, v35")
    A.e("s_lshl_b32 s48, s2, 11")
    A.e("s_and_b32 s49, s%d, 1" % K2_WAVE)
    A.e("s_lshl_b32 s49, s49, 10")
    A.e("s_add_u32 s48, s48, s49")
    A.e("s_lshr_b32 s49, s%d, 1" % K2_WAVE)
    A.e("s_lshl_b32 s49, s49, 3")
    A.e("s_add_u32 s48, s48, s49")
    A.e("s_add_u32 s48, s48, %d" % WS_KVF)
    A.e("buffer_store_dwordx2 v[20:21], v%d, s[%d:%d], s48 offen sc1" % (W_L16, K2_SWS, K2_SWS + 3))
    A.e("s_waitcnt vmcnt(0)")
    A.e("s_barrier")
    A.e("s_cmp_lg_u32 s%d, 0" % K2_WAVE)
    A.e("s_cbranch_scc1 K2_END")
    A.e("v_mov_b32 v22, 0x7ffffff0")
    A.e("v_cmp_eq_u32 vcc, 0, v%d" % W_LANE)
    A.e("s_nop 1")
    A.e("v_cndmask_b32 v22, v22, 0, vcc")
    A.e("v_mov_b32 v23, 1")
    A.e("buffer_atomic_add v23, v22, s[%d:%d], 0 offen sc1" % (K2_SDBG, K2_SDBG + 3))
    A.e("s_waitcnt vmcnt(0)")
    A.label("K2_END")
    A.e("s_endpgm")

def main():
    out = []
    hdr = open("cdna_kernels/%s.s.ref" % NAME).read().splitlines()
    for l in hdr:
        if l.startswith(";") and "@launch" not in l:
            out.append(l)
        elif not l.startswith(";"):
            break
    out.append("; @launch kernel=k1_kernel grid=(256,1,1) block=(512,1,1) lds=%d" % (STAGE * NSTG))
    out.append("; @launch kernel=k2_kernel grid=(240,1,1) block=(256,1,1) lds=131072")
    out.append('.amdgcn_target "amdgcn-amd-amdhsa--gfx950"')
    out.append(".text")
    A = Asm()
    A.lines.append(".globl k1_kernel\n.p2align 8\n.type k1_kernel,@function")
    gen_k1(A)
    A.lines.append(".globl k2_kernel\n.p2align 8\n.type k2_kernel,@function")
    gen_k2(A)
    out += A.lines
    out.append('.section .rodata,"a"')
    for nm, nv, acc in (("k1_kernel", 208, 208), ("k2_kernel", K2_NV + 128, K2_NV)):
        out.append(".p2align 6")
        out.append(".amdhsa_kernel %s" % nm)
        out.append("  .amdhsa_next_free_vgpr %d" % nv)
        out.append("  .amdhsa_next_free_sgpr 96")
        out.append("  .amdhsa_accum_offset %d" % acc)
        out.append("  .amdhsa_group_segment_fixed_size 0")
        out.append("  .amdhsa_kernarg_size 88")
        out.append("  .amdhsa_user_sgpr_count 2")
        out.append("  .amdhsa_user_sgpr_kernarg_segment_ptr 1")
        out.append("  .amdhsa_system_sgpr_workgroup_id_x 1")
        out.append(".end_amdhsa_kernel")
    dst = sys.argv[1] if len(sys.argv) > 1 else "cdna_kernels/%s.s" % NAME
    open(dst, "w").write("\n".join(out) + "\n")

main()
```

```python
import sys

NAME = "gated_mix__linear_attn_block__glu_gated_swiglu__prompt"

WS_H    = 0x000000
WS_PQ   = 0x700000
WS_KVP  = 0x900000
WS_KVF  = 0xB00000
WS_G    = 0xB10000
WS_SIZE = 0xB20000

import os
STAMP = os.environ.get("STAMP") == "1"
EXP = os.environ.get("EXP", "")
DMAFLAGS = os.environ.get("DMAFLAGS", "")
STF = os.environ.get("STF", "")
PF2STEP = int(os.environ.get("PF2STEP", "8"))
WS_STAMP = 0xC00000
if STAMP:
    WS_SIZE = 0xD00000
class Asm:
    def __init__(self):
        self.lines = []
        self.vm = []
        self.nst = 0
        self.uid = 0
    def stamp(self, real=False):
        if not STAMP: return
        self.e("%s s[%d:%d]" % ("s_memrealtime" if real else "s_memtime", 76 + 2 * self.nst, 77 + 2 * self.nst))
        self.nst += 1
        assert self.nst <= 10
    def stamp_flush(self, srdw, s_wave, nwave, base):
        if not STAMP: return
        self.e("s_waitcnt lgkmcnt(0)")
        self.e("s_mul_i32 s48, s2, %d" % nwave)
        self.e("s_add_u32 s48, s48, s%d" % s_wave)
        self.e("s_lshl_b32 s48, s48, 6")
        self.e("s_add_u32 s48, s48, %d" % base)
        self.e("v_mov_b32 v20, 0")
        self.e("v_mov_b32 v21, s94")
        self.e("buffer_store_dword v21, v20, s[%d:%d], s48 offen offset:60" % (srdw, srdw + 3))
        for i in range(self.nst):
            self.e("v_mov_b32 v21, s%d" % (76 + 2 * i))
            self.e("buffer_store_dword v21, v20, s[%d:%d], s48 offen offset:%d" % (srdw, srdw + 3, 4 * i))
        self.nst = 0
    def e(self, s):
        self.lines.append("    " + s)
    def c(self, s):
        self.lines.append("    ; " + s)
    def label(self, l):
        self.lines.append(l + ":")
    def vmem(self, s, tag):
        self.e(s)
        self.vm.append(tag)
    def wait_vm(self, tag, extra=""):
        idx = None
        for i, t in enumerate(self.vm):
            if t == tag:
                idx = i
        if idx is None:
            if extra:
                self.e("s_waitcnt " + extra)
            return
        n = len(self.vm) - 1 - idx
        assert n <= 63, n
        self.e("s_waitcnt vmcnt(%d) %s" % (n, extra))
        self.vm = self.vm[idx + 1:]
    def wait_vm_all(self, extra=""):
        self.e("s_waitcnt vmcnt(0) %s" % extra)
        self.vm = []
    def nop(self, n):
        while n > 0:
            k = min(n, 16)
            self.e("s_nop %d" % (k - 1))
            n -= k

def vr(b, n=1):
    return "v%d" % b if n == 1 else "v[%d:%d]" % (b, b + n - 1)
def ar(b, n=1):
    return "a%d" % b if n == 1 else "a[%d:%d]" % (b, b + n - 1)
def sr(b, n=1):
    return "s%d" % b if n == 1 else "s[%d:%d]" % (b, b + n - 1)

def srd(A, d, base, size):
    A.e("s_mov_b32 s%d, s%d" % (d, base))
    A.e("s_and_b32 s%d, s%d, 0xffff" % (d + 1, base + 1))
    A.e("s_mov_b32 s%d, 0x%x" % (d + 2, size))
    A.e("s_mov_b32 s%d, 0x00020000" % (d + 3))

LOG2E = 0x3fb8aa3b
NLOG2E = 0xbfb8aa3b
EPS = 0x358637bd

WSTG = 20480
XBASE = 4 * WSTG
XSLOT = 16384
K1_LDS = XBASE + 2 * XSLOT
WHI = 2 * WSTG

S_X, S_W, S_GW = 16, 20, 24
S_R = 28
S_CG, S_RB, S_WAVE, S_RH = 48, 49, 50, 51
S_T0, S_T1, S_T2, S_T3 = 52, 53, 54, 55
S_PI, S_TYP = 56, 57
S_R0T = 58
S_GOFF = 59
S_MSK = 60
S_NL2E = 62
S_ONE = 64
S_L2E = 66
S_EPS = 67
S_SOFF = 68
S_STR = 4
S_XO = 73
S_E = 74
S_IDX = 75

V_LANE = 1
V_DOFF = 2
V_XD = 7
V_XA = 9
V_GATE = 11
V_WA = 12
V_T = 24
V_XF = 32
V_WF = 64
V_ACC = 112
V_DUMP = 208

def k1_consts(A):
    A.e("s_mov_b32 s%d, 0xffff0000" % S_MSK)
    A.e("s_mov_b32 s%d, 0x%x" % (S_NL2E, NLOG2E))
    A.e("s_mov_b32 s%d, 0x%x" % (S_NL2E + 1, NLOG2E))
    A.e("s_mov_b32 s%d, 1.0" % S_ONE)
    A.e("s_mov_b32 s%d, 1.0" % (S_ONE + 1))
    A.e("s_mov_b32 s%d, 0x%x" % (S_L2E, LOG2E))
    A.e("s_mov_b32 s%d, 0x%x" % (S_EPS, EPS))

def unpack2(A, dlo, dhi, src):
    A.e("v_lshlrev_b32 v%d, 16, v%d" % (dlo, src))
    A.e("v_and_b32 v%d, s%d, v%d" % (dhi, S_MSK, src))

def emit_raddr(A, vdst, kind, t):
    t0, t1, t2, t3 = V_T, V_T + 1, V_T + 2, V_T + 3
    ts = str(t)
    A.e("v_lshrrev_b32 v%d, 4, v%d" % (t0, V_LANE))
    A.e("v_lshrrev_b32 v%d, 2, v%d" % (t1, V_LANE))
    A.e("v_and_b32 v%d, 3, v%d" % (t1, t1))
    A.e("v_and_b32 v%d, 3, v%d" % (t2, V_LANE))
    A.e("v_lshlrev_b32 v%d, 3, v%d" % (vdst, t2))
    A.e("v_and_b32 v%d, 1, v%d" % (t2, t0))
    if kind == "T2":
        A.e("v_lshrrev_b32 v%d, 1, v%d" % (t3, t0))
        A.e("v_lshl_add_u32 v%d, v%d, 10, v%d" % (vdst, t3, vdst))
        A.e("v_lshl_add_u32 v%d, v%d, 9, v%d" % (vdst, t2, vdst))
        A.e("v_lshl_add_u32 v%d, v%d, 6, v%d" % (vdst, t1, vdst))
        A.e("v_xor_b32 v%d, %s, v%d" % (t3, ts, t2))
        A.e("v_lshl_add_u32 v%d, v%d, 5, v%d" % (vdst, t3, vdst))
    elif kind == "T4":
        A.e("v_lshl_add_u32 v%d, v%d, 10, v%d" % (vdst, t0, vdst))
        A.e("v_lshl_add_u32 v%d, v%d, 7, v%d" % (vdst, t1, vdst))
        A.e("v_lshrrev_b32 v%d, 1, v%d" % (t3, t1))
        A.e("v_lshl_or_b32 v%d, v%d, 1, v%d" % (t3, t2, t3))
        A.e("v_xor_b32 v%d, %s, v%d" % (t3, ts, t3))
        A.e("v_lshl_add_u32 v%d, v%d, 5, v%d" % (vdst, t3, vdst))
    elif kind == "T4K2":
        A.e("v_lshrrev_b32 v%d, 1, v%d" % (t3, t0))
        A.e("v_lshl_add_u32 v%d, v%d, 10, v%d" % (vdst, t3, vdst))
        A.e("v_lshl_add_u32 v%d, v%d, 9, v%d" % (vdst, t2, vdst))
        A.e("v_lshl_add_u32 v%d, v%d, 7, v%d" % (vdst, t1, vdst))
        A.e("v_lshrrev_b32 v%d, 1, v%d" % (t3, t1))
        A.e("v_lshl_or_b32 v%d, v%d, 1, v%d" % (t3, t2, t3))
        A.e("v_xor_b32 v%d, %s, v%d" % (t3, ts, t3))
        A.e("v_lshl_add_u32 v%d, v%d, 5, v%d" % (vdst, t3, vdst))
    else:
        raise ValueError(kind)

def emit_phi4(A, src, dst, tmp):
    a = tmp; b = tmp + 4
    for h in range(2):
        A.e("v_pk_mul_f32 v[%d:%d], v[%d:%d], s[%d:%d]" % (b + 2 * h, b + 2 * h + 1, src + 2 * h, src + 2 * h + 1, S_L2E2, S_L2E2 + 1))
    for i in range(4):
        A.e("v_min_f32 v%d, 0, v%d" % (b + i, b + i))
    for i in range(4):
        A.e("v_exp_f32 v%d, v%d" % (b + i, b + i))
    for i in range(4):
        A.e("v_max_f32 v%d, 0, v%d" % (a + i, src + i))
    for h in range(2):
        A.e("v_pk_add_f32 v[%d:%d], v[%d:%d], v[%d:%d]" % (a + 2 * h, a + 2 * h + 1, a + 2 * h, a + 2 * h + 1, b + 2 * h, b + 2 * h + 1))
    for h in range(2):
        A.e("v_pk_add_f32 v[%d:%d], v[%d:%d], s[%d:%d]" % (a + 2 * h, a + 2 * h + 1, a + 2 * h, a + 2 * h + 1, S_EPS2, S_EPS2 + 1))
    for h in range(2):
        A.e("v_cvt_pk_bf16_f32 v%d, v%d, v%d" % (dst + h, a + 2 * h, a + 2 * h + 1))

def emit_swiglu4(A, g, u, dst, tmp):
    E = tmp
    for h in range(2):
        A.e("v_pk_mul_f32 v[%d:%d], v[%d:%d], s[%d:%d]" % (E + 2 * h, E + 2 * h + 1, g + 2 * h, g + 2 * h + 1, S_NL2E, S_NL2E + 1))
    for i in range(4):
        A.e("v_exp_f32 v%d, v%d" % (E + i, E + i))
    for h in range(2):
        A.e("v_pk_mul_f32 v[%d:%d], v[%d:%d], v[%d:%d]" % (g + 2 * h, g + 2 * h + 1, g + 2 * h, g + 2 * h + 1, u + 2 * h, u + 2 * h + 1))
    for h in range(2):
        A.e("v_pk_add_f32 v[%d:%d], v[%d:%d], s[%d:%d]" % (E + 2 * h, E + 2 * h + 1, E + 2 * h, E + 2 * h + 1, S_ONE, S_ONE + 1))
    for i in range(4):
        A.e("v_rcp_f32 v%d, v%d" % (E + i, E + i))
    A.e("s_nop 0")
    for h in range(2):
        A.e("v_pk_mul_f32 v[%d:%d], v[%d:%d], v[%d:%d]" % (g + 2 * h, g + 2 * h + 1, g + 2 * h, g + 2 * h + 1, E + 2 * h, E + 2 * h + 1))
    for h in range(2):
        A.e("v_cvt_pk_bf16_f32 v%d, v%d, v%d" % (dst + h, g + 2 * h, g + 2 * h + 1))

S_L2E2 = 10
S_EPS2 = 12

def sel_srd(A, d, lo_a, lo_b, size_a, size_b):
    A.e("s_cselect_b32 s%d, s%d, s%d" % (d, lo_a, lo_b))
    A.e("s_cselect_b32 s%d, s%d, s%d" % (d + 1, lo_a + 1, lo_b + 1))
    if size_a == size_b:
        A.e("s_mov_b32 s%d, 0x%x" % (d + 2, size_a))
    else:
        A.e("s_mov_b32 s%d, 0x%x" % (S_T3, size_a))
        A.e("s_cselect_b32 s%d, s%d, 0x%x" % (d + 2, S_T3, size_b))
    A.e("s_and_b32 s%d, s%d, 0xffff" % (d + 1, d + 1))
    A.e("s_mov_b32 s%d, 0x00020000" % (d + 3))

SZQ = 448 * 2688
SZG = 448 * 3584

def gen_k1(A):
    A.label("k1_kernel")
    A.e("s_cmp_ge_u32 s2, 256")
    A.e("s_cbranch_scc1 K1_END")
    A.e("s_load_dwordx4 s[4:7], s[0:1], 0")
    A.e("s_load_dwordx4 s[8:11], s[0:1], 32")
    A.e("s_load_dwordx2 s[12:13], s[0:1], 56")
    A.e("s_load_dwordx2 s[14:15], s[0:1], 80")
    A.e("s_load_dwordx2 s[96:97], s[0:1], 48")
    A.e("s_load_dwordx2 s[98:99], s[0:1], 16")
    A.e("v_and_b32 v%d, 63, v0" % V_LANE)
    A.e("v_lshrrev_b32 v%d, 6, v0" % V_T)
    A.e("s_nop 0")
    A.e("v_readfirstlane_b32 s%d, v%d" % (S_WAVE, V_T))
    k1_consts(A)
    A.e("s_and_b32 s%d, s2, 7" % S_T0)
    A.e("s_lshr_b32 s%d, s2, 3" % S_IDX)
    A.e("s_and_b32 s%d, s%d, 3" % (S_T2, S_T0))
    A.e("s_lshl_b32 s%d, s%d, 2" % (S_T2, S_T2))
    A.e("s_and_b32 s%d, s%d, 3" % (S_T3, S_IDX))
    A.e("s_add_u32 s%d, s%d, s%d" % (S_CG, S_T2, S_T3))
    A.e("s_lshr_b32 s%d, s%d, 2" % (S_T2, S_T0))
    A.e("s_lshl_b32 s%d, s%d, 3" % (S_T2, S_T2))
    A.e("s_lshr_b32 s%d, s%d, 2" % (S_E, S_IDX))
    A.e("s_add_u32 s%d, s%d, s%d" % (S_RB, S_T2, S_E))
    A.e("s_and_b32 s%d, s%d, 1" % (S_RH, S_WAVE))
    A.e("s_and_b32 s%d, s%d, 1" % (S_TYP, S_CG))
    A.e("s_lshr_b32 s%d, s%d, 1" % (S_PI, S_CG))
    A.e("s_lshl_b32 s%d, s%d, 3" % (S_R0T, S_RB))
    A.e("s_lshl_b32 s%d, s%d, 2" % (S_T0, S_RH))
    A.e("s_add_u32 s%d, s%d, s%d" % (S_R0T, S_R0T, S_T0))
    A.e("s_waitcnt lgkmcnt(0)")
    srd(A, S_X, 4, 2048 * 896)
    srd(A, S_W, 14, WS_SIZE)
    srd(A, S_GW, 12, 896)
    A.e("s_lshl_b32 s%d, s%d, 7" % (S_T0, S_RB))
    A.e("s_lshl_b32 s%d, s%d, 3" % (S_T1, S_CG))
    A.e("s_add_u32 s%d, s%d, s%d" % (S_T0, S_T0, S_T1))
    A.e("s_add_u32 s%d, s%d, s%d" % (S_T0, S_T0, S_WAVE))
    A.e("s_mul_i32 s%d, s%d, 896" % (S_T1, S_T0))
    A.e("v_lshlrev_b32 v%d, 4, v%d" % (V_T, V_LANE))
    A.e("v_mov_b32 v%d, 0x7ffffff0" % (V_T + 1))
    A.e("v_cmp_gt_u32 vcc, 56, v%d" % V_LANE)
    A.e("s_nop 1")
    A.e("v_cndmask_b32 v%d, v%d, v%d, vcc" % (V_T, V_T + 1, V_T))
    A.vmem("buffer_load_dwordx4 v[96:99], v%d, s[%d:%d], s%d offen" % (V_T, S_X, S_X + 3, S_T1), "gate")
    A.vmem("buffer_load_dwordx4 v[100:103], v%d, s[%d:%d], 0 offen" % (V_T, S_GW, S_GW + 3), "gate")
    A.e("s_lshl_b32 s%d, s%d, 2" % (S_GOFF, S_T0))
    A.e("s_cmp_eq_u32 s%d, 0" % S_TYP)
    sel_srd(A, S_R + 0, 6, 8, SZQ, SZG)
    A.e("s_cmp_eq_u32 s%d, 0" % S_TYP)
    sel_srd(A, S_R + 4, 6, 8, SZQ, SZG)
    A.e("s_cmp_eq_u32 s%d, 0" % S_TYP)
    sel_srd(A, S_R + 8, 6, 10, SZQ, SZG)
    A.e("s_cmp_eq_u32 s%d, 0" % S_TYP)
    sel_srd(A, S_R + 12, 8, 10, SZG, SZG)
    A.e("s_lshr_b32 s%d, s%d, 1" % (S_T0, S_WAVE))
    A.e("s_and_b32 s%d, s%d, 1" % (S_T0, S_T0))
    A.e("s_xor_b32 s%d, s%d, 1" % (S_T0, S_T0))
    A.e("s_and_b32 s%d, s%d, s%d" % (S_T0, S_T0, S_TYP))
    A.e("s_cmp_eq_u32 s%d, 1" % S_T0)
    sel_srd(A, S_R + 16, 8, 10, SZG, SZG)
    t0, t1, t2 = V_T, V_T + 1, V_T + 2
    A.e("v_and_b32 v%d, 15, v%d" % (t0, V_LANE))
    A.e("v_lshrrev_b32 v%d, 1, v%d" % (t1, t0))
    A.e("v_lshrrev_b32 v%d, 4, v%d" % (t2, V_LANE))
    A.e("v_xor_b32 v%d, v%d, v%d" % (t1, t1, t2))
    A.e("s_lshl_b32 s%d, s%d, 6" % (S_T0, S_RH))
    A.e("v_add_u32 v%d, s%d, v%d" % (t0, S_T0, t0))
    A.e("v_lshlrev_b32 v%d, 7, v%d" % (t0, t0))
    A.e("v_lshl_add_u32 v%d, v%d, 4, v%d" % (t0, t1, t0))
    A.e("v_add_u32 v%d, %d, v%d" % (V_XA, XBASE, t0))
    A.e("v_xor_b32 v%d, 64, v%d" % (V_XA + 1, V_XA))
    A.e("s_cmp_ge_u32 s%d, 4" % S_WAVE)
    A.e("s_cbranch_scc1 K1_DMAW")
    A.e("s_cmp_eq_u32 s%d, 0" % S_TYP)
    A.e("s_cbranch_scc1 K1_QKV6")
    base_vm = list(A.vm)
    for var in ("FFN6", "QKV6"):
        A.vm = list(base_vm)
        A.label("K1_" + var)
        gen_k1_var(A, var)
        A.e("s_branch K1_END")
    A.vm = list(base_vm)
    A.label("K1_DMAW")
    k1_dma_setup(A)
    A.e("s_cmp_eq_u32 s%d, 0" % S_TYP)
    A.e("s_cbranch_scc1 K1_FFN4")
    A.e("s_cmp_lt_u32 s%d, 6" % S_WAVE)
    A.e("s_cbranch_scc1 K1_FFN4")
    base_vm = list(A.vm)
    for var in ("FFN4T2", "FFN4"):
        A.vm = list(base_vm)
        A.label("K1_" + var)
        gen_k1_var(A, var)
        A.e("s_branch K1_END")
    A.label("K1_END")
    A.e("s_endpgm")

def k1_dma_setup(A):
    t0, t1, t2, t3 = V_T, V_T + 1, V_T + 2, V_T + 3
    SJ = S_T2
    A.e("s_and_b32 s%d, s%d, 3" % (SJ, S_WAVE))
    A.e("v_lshrrev_b32 v%d, 3, v%d" % (t0, V_LANE))
    A.e("v_lshrrev_b32 v%d, 4, v%d" % (t1, V_LANE))
    A.e("v_and_b32 v%d, 1, v%d" % (t1, t1))
    A.e("s_and_b32 s%d, s%d, 1" % (S_T3, SJ))
    A.e("s_lshl_b32 s%d, s%d, 1" % (S_T3, S_T3))
    A.e("v_or_b32 v%d, s%d, v%d" % (t1, S_T3, t1))
    A.e("v_lshrrev_b32 v%d, 1, v%d" % (t2, V_LANE))
    A.e("v_and_b32 v%d, 3, v%d" % (t2, t2))
    A.e("v_xor_b32 v%d, v%d, v%d" % (t1, t1, t2))
    A.e("v_and_b32 v%d, 1, v%d" % (t2, V_LANE))
    A.e("v_lshlrev_b32 v%d, 4, v%d" % (t2, t2))
    A.e("s_lshl_b32 s%d, s%d, 3" % (S_T3, SJ))
    A.e("v_add_u32 v%d, s%d, v%d" % (t0, S_T3, t0))
    A.e("v_lshl_add_u32 v%d, v%d, 5, v%d" % (t3, t1, t2))
    A.e("v_lshrrev_b32 v%d, 1, v%d" % (t1, t1))
    A.e("v_lshlrev_b32 v%d, 3, v%d" % (t1, t1))
    A.e("v_sub_u32 v%d, v%d, v%d" % (t1, t3, t1))
    A.e("v_mul_u32_u24 v%d, 2688, v%d" % (t2, t0))
    A.e("v_add_u32 v%d, v%d, v%d" % (t1, t1, t2))
    A.e("v_mul_u32_u24 v%d, 3584, v%d" % (t2, t0))
    A.e("v_add_u32 v%d, v%d, v%d" % (t3, t3, t2))
    A.e("s_mul_i32 s%d, s%d, 112" % (S_T0, S_PI))
    A.e("s_mul_i32 s%d, s%d, 320" % (S_T1, S_PI))
    A.e("s_add_u32 s%d, s%d, 1024" % (S_T1, S_T1))
    A.e("s_cmp_eq_u32 s%d, 0" % S_TYP)
    A.e("s_cselect_b64 vcc, -1, 0")
    for r in range(3):
        A.e("v_add_u32 v%d, s%d, v%d" % (V_DOFF + r, S_T0, t1))
        A.e("v_add_u32 v%d, %d, v%d" % (V_DOFF + r, r * 896, V_DOFF + r))
        A.e("v_add_u32 v%d, s%d, v%d" % (t2, S_T1, t3))
        if r == 1:
            A.e("v_add_u32 v%d, 128, v%d" % (t2, t2))
        A.e("v_cndmask_b32 v%d, v%d, v%d, vcc" % (V_DOFF + r, t2, V_DOFF + r))
    A.e("s_lshl_b32 s%d, s%d, 7" % (S_T0, S_PI))
    A.e("v_add_u32 v%d, s%d, v%d" % (V_DOFF + 3, S_T0, t3))
    A.e("v_add_u32 v%d, s%d, v%d" % (t2, S_T1, t3))
    A.e("v_add_u32 v%d, 128, v%d" % (t2, t2))
    A.e("v_cndmask_b32 v%d, v%d, v%d, vcc" % (V_DOFF + 3, t2, V_DOFF + 3))
    A.e("v_add_u32 v%d, s%d, v%d" % (V_DOFF + 4, S_T0, t3))
    A.e("v_lshrrev_b32 v%d, 2, v%d" % (t0, V_LANE))
    A.e("s_and_b32 s%d, s%d, 1" % (S_T3, SJ))
    A.e("s_lshl_b32 s%d, s%d, 4" % (S_T3, S_T3))
    A.e("v_add_u32 v%d, s%d, v%d" % (t0, S_T3, t0))
    A.e("v_mul_u32_u24 v%d, 3584, v%d" % (t0, t0))
    A.e("v_lshrrev_b32 v%d, 1, v%d" % (t1, V_LANE))
    A.e("v_lshrrev_b32 v%d, 5, v%d" % (t2, V_LANE))
    A.e("v_xor_b32 v%d, v%d, v%d" % (t1, t1, t2))
    A.e("v_and_b32 v%d, 1, v%d" % (t1, t1))
    A.e("v_lshl_add_u32 v%d, v%d, 5, v%d" % (t0, t1, t0))
    A.e("v_and_b32 v%d, 1, v%d" % (t1, V_LANE))
    A.e("v_lshl_add_u32 v%d, v%d, 4, v%d" % (t0, t1, t0))
    A.e("v_add_u32 v%d, s%d, v%d" % (t0, S_T1, t0))
    A.e("v_add_u32 v%d, 256, v%d" % (t0, t0))
    A.e("v_cndmask_b32 v%d, v%d, v%d, vcc" % (V_DOFF + 4, t0, V_DOFF + 4))
    A.e("s_cmp_eq_u32 s%d, 0" % S_TYP)
    A.e("s_mov_b32 s%d, %d" % (S_T3, 32 * 2688))
    A.e("s_cselect_b32 s%d, s%d, %d" % (S_STR, S_T3, 32 * 3584))
    for r in range(5):
        A.e("s_mov_b32 s%d, 0" % (S_SOFF + r))
    A.e("v_lshrrev_b32 v%d, 3, v%d" % (t0, V_LANE))
    A.e("v_lshrrev_b32 v%d, 4, v%d" % (t1, V_LANE))
    A.e("v_and_b32 v%d, 7, v%d" % (t2, V_LANE))
    A.e("v_xor_b32 v%d, v%d, v%d" % (t1, t1, t2))
    A.e("v_mul_u32_u24 v%d, 896, v%d" % (t0, t0))
    A.e("v_lshl_add_u32 v%d, v%d, 4, v%d" % (V_XD, t1, t0))
    A.e("v_xor_b32 v%d, 64, v%d" % (V_XD + 1, V_XD))
    A.e("s_lshl_b32 s%d, s%d, 7" % (S_T0, S_RB))
    A.e("s_lshl_b32 s%d, s%d, 5" % (S_T1, SJ))
    A.e("s_add_u32 s%d, s%d, s%d" % (S_T0, S_T0, S_T1))
    A.e("s_mul_i32 s%d, s%d, 896" % (S_XO, S_T0))
    A.e("s_lshl_b32 s%d, s%d, 10" % (S_STR + 1, SJ))
    A.e("s_lshl_b32 s%d, s%d, 12" % (S_STR + 2, SJ))
    A.e("s_add_u32 s%d, s%d, %d" % (S_STR + 2, S_STR + 2, XBASE))

def k1_touch_setup(A):
    t0, t1, t2, t3 = V_T, V_T + 1, V_T + 2, V_T + 3
    A.e("v_lshrrev_b32 v%d, 3, v%d" % (t0, V_LANE))
    A.e("v_and_b32 v%d, 7, v%d" % (t1, V_LANE))
    A.e("v_mov_b32 v%d, 0x7ffffff0" % (V_T + 4))
    A.e("s_cmp_eq_u32 s%d, 3" % S_WAVE)
    A.e("s_cbranch_scc1 K1_TS_X%d" % A.uid)
    A.e("s_cmp_eq_u32 s%d, 0" % S_TYP)
    A.e("s_cbranch_scc0 K1_TS_F%d" % A.uid)
    A.e("s_cmp_eq_u32 s%d, 0" % S_WAVE)
    A.e("s_cbranch_scc0 K1_TS_PG%d" % A.uid)
    srd(A, S_R, 6, SZQ)
    A.e("v_lshrrev_b32 v%d, 1, v%d" % (t2, t1))
    A.e("v_mul_u32_u24 v%d, 896, v%d" % (t2, t2))
    A.e("v_and_b32 v%d, 1, v%d" % (t3, t1))
    A.e("v_mul_u32_u24 v%d, 116, v%d" % (t3, t3))
    A.e("v_mul_u32_u24 v%d, 2688, v%d" % (t0, t0))
    A.e("v_add3_u32 v%d, v%d, v%d, v%d" % (V_DOFF, t0, t2, t3))
    A.e("v_cmp_gt_u32 vcc, 6, v%d" % t1)
    A.e("s_mul_i32 s%d, s%d, 112" % (S_SOFF, S_PI))
    A.e("s_mul_i32 s%d, s%d, %d" % (S_T0, S_E, 8 * 2688))
    A.e("s_add_u32 s%d, s%d, s%d" % (S_SOFF, S_SOFF, S_T0))
    A.e("s_mov_b32 s%d, %d" % (S_STR, 64 * 2688))
    A.e("s_branch K1_TS_END%d" % A.uid)
    A.label("K1_TS_PG%d" % A.uid)
    A.e("s_cmp_eq_u32 s%d, 1" % S_WAVE)
    sel_srd(A, S_R, 8, 10, SZG, SZG)
    A.e("v_mul_u32_u24 v%d, 3584, v%d" % (V_DOFF, t0))
    A.e("v_cmp_gt_u32 vcc, 1, v%d" % t1)
    A.e("s_lshl_b32 s%d, s%d, 7" % (S_SOFF, S_PI))
    A.e("s_mul_i32 s%d, s%d, %d" % (S_T0, S_E, 8 * 3584))
    A.e("s_add_u32 s%d, s%d, s%d" % (S_SOFF, S_SOFF, S_T0))
    A.e("s_mov_b32 s%d, %d" % (S_STR, 64 * 3584))
    A.e("s_branch K1_TS_END%d" % A.uid)
    A.label("K1_TS_F%d" % A.uid)
    A.e("s_cmp_eq_u32 s%d, 0" % S_WAVE)
    sel_srd(A, S_R, 8, 10, SZG, SZG)
    A.e("v_lshlrev_b32 v%d, 7, v%d" % (t2, t1))
    A.e("v_min_u32 v%d, 316, v%d" % (t2, t2))
    A.e("v_mul_u32_u24 v%d, 3584, v%d" % (t0, t0))
    A.e("v_add_u32 v%d, v%d, v%d" % (V_DOFF, t0, t2))
    A.e("s_cmp_lt_u32 s%d, 2" % S_WAVE)
    A.e("s_cselect_b32 s%d, 4, 0" % S_T0)
    A.e("v_cmp_gt_u32 vcc, s%d, v%d" % (S_T0, t1))
    A.e("s_mul_i32 s%d, s%d, 320" % (S_SOFF, S_PI))
    A.e("s_add_u32 s%d, s%d, 1024" % (S_SOFF, S_SOFF))
    A.e("s_mul_i32 s%d, s%d, %d" % (S_T0, S_E, 8 * 3584))
    A.e("s_add_u32 s%d, s%d, s%d" % (S_SOFF, S_SOFF, S_T0))
    A.e("s_mov_b32 s%d, %d" % (S_STR, 64 * 3584))
    A.e("s_branch K1_TS_END%d" % A.uid)
    A.label("K1_TS_X%d" % A.uid)
    srd(A, S_R, 4, 2048 * 896)
    A.e("v_mul_u32_u24 v%d, 896, v%d" % (V_DOFF, V_LANE))
    A.e("v_cmp_gt_u32 vcc, 32, v%d" % V_LANE)
    A.e("s_lshl_b32 s%d, s%d, 7" % (S_T0, S_RB))
    A.e("s_and_b32 s%d, s%d, 3" % (S_T1, S_IDX))
    A.e("s_lshl_b32 s%d, s%d, 5" % (S_T1, S_T1))
    A.e("s_add_u32 s%d, s%d, s%d" % (S_T0, S_T0, S_T1))
    A.e("s_mul_i32 s%d, s%d, 896" % (S_SOFF, S_T0))
    A.e("s_mov_b32 s%d, 128" % S_STR)
    A.label("K1_TS_END%d" % A.uid)
    A.e("s_nop 1")
    A.e("v_cndmask_b32 v%d, v%d, v%d, vcc" % (V_DOFF, V_T + 4, V_DOFF))
    A.uid += 1

def k1_prefetch2(A):
    T = V_T
    srd(A, S_GW, 96, 1792 * 896)
    if "pf2chip" in EXP:
        A.e("s_lshl_b32 s%d, s2, 2" % S_T0)
        A.e("s_add_u32 s%d, s%d, s%d" % (S_T0, S_T0, S_WAVE))
        A.e("s_mul_i32 s%d, s%d, %d" % (S_T1, S_T0, 13 * 128))
        A.e("v_lshlrev_b32 v%d, 7, v%d" % (T, V_LANE))
        A.e("v_mov_b32 v%d, 0x7ffffff0" % (T + 1))
        A.e("v_cmp_gt_u32 vcc, 13, v%d" % V_LANE)
        A.e("s_nop 1")
        A.e("v_cndmask_b32 v%d, v%d, v%d, vcc" % (T + 2, T + 1, T))
        A.vmem("buffer_load_dword v%d, v%d, s[%d:%d], s%d offen" % (V_DUMP, T + 2, S_GW, S_GW + 3, S_T1), "pf")
        srd(A, S_R + 4, 98, 448 * 896)
        A.e("s_mul_i32 s%d, s%d, %d" % (S_T1, S_T0, 4 * 128))
        A.e("v_cmp_gt_u32 vcc, 4, v%d" % V_LANE)
        A.e("s_nop 1")
        A.e("v_cndmask_b32 v%d, v%d, v%d, vcc" % (T + 2, T + 1, T))
        A.vmem("buffer_load_dword v%d, v%d, s[%d:%d], s%d offen" % (V_DUMP + 2, T + 2, S_R + 4, S_R + 7, S_T1), "pf")
        return
    A.e("s_lshl_b32 s%d, s%d, 2" % (S_T0, S_IDX))
    A.e("s_add_u32 s%d, s%d, s%d" % (S_T0, S_T0, S_WAVE))
    A.e("s_mul_i32 s%d, s%d, %d" % (S_T1, S_T0, 98 * 128))
    A.e("v_lshlrev_b32 v%d, 7, v%d" % (T, V_LANE))
    A.vmem("buffer_load_dword v%d, v%d, s[%d:%d], s%d offen" % (V_DUMP, T, S_GW, S_GW + 3, S_T1), "pf")
    A.e("v_mov_b32 v%d, 0x7ffffff0" % (T + 1))
    A.e("v_cmp_gt_u32 vcc, 34, v%d" % V_LANE)
    A.e("s_nop 1")
    A.e("v_cndmask_b32 v%d, v%d, v%d, vcc" % (T + 2, T + 1, T))
    A.e("s_add_u32 s%d, s%d, %d" % (S_T1, S_T1, 64 * 128))
    A.vmem("buffer_load_dword v%d, v%d, s[%d:%d], s%d offen" % (V_DUMP + 1, T + 2, S_GW, S_GW + 3, S_T1), "pf")
    srd(A, S_R + 4, 98, 448 * 896)
    A.e("s_mul_i32 s%d, s%d, %d" % (S_T1, S_T0, 25 * 128))
    A.e("v_cmp_gt_u32 vcc, 25, v%d" % V_LANE)
    A.e("s_nop 1")
    A.e("v_cndmask_b32 v%d, v%d, v%d, vcc" % (T + 2, T + 1, T))
    A.vmem("buffer_load_dword v%d, v%d, s[%d:%d], s%d offen" % (V_DUMP + 2, T + 2, S_R + 4, S_R + 7, S_T1), "pf")

def gen_k1_var(A, var):
    dma = var.startswith("FFN4")
    nt = 6 if var.endswith("6") else 4
    poff = 256 if var == "FFN4T2" else 512
    if var == "QKV6":
        A.e("s_and_b32 s%d, s%d, 2" % (S_T0, S_WAVE))
        for i in range(2):
            A.e("s_add_u32 s%d, s%d, %d" % (S_T1, S_T0, i))
            emit_raddr(A, V_WA + i, "T4", "s%d" % S_T1)
        for m in (1, 2):
            for i in range(2):
                A.e("v_add_u32 v%d, %d, v%d" % (V_WA + 2 * m + i, m * 4096, V_WA + i))
    elif var == "FFN6":
        A.e("s_lshr_b32 s%d, s%d, 1" % (S_T0, S_WAVE))
        A.e("s_mul_i32 s%d, s%d, 3" % (S_T0, S_T0))
        for p in range(3):
            A.e("s_add_u32 s%d, s%d, %d" % (S_T1, S_T0, p))
            A.e("s_and_b32 s%d, s%d, 3" % (S_T2, S_T1))
            emit_raddr(A, V_WA + 2 * p, "T4", "s%d" % S_T2)
            A.e("s_lshr_b32 s%d, s%d, 2" % (S_T1, S_T1))
            A.e("s_lshl_b32 s%d, s%d, 12" % (S_T1, S_T1))
            A.e("v_add_u32 v%d, s%d, v%d" % (V_WA + 2 * p, S_T1, V_WA + 2 * p))
            A.e("v_add_u32 v%d, 8192, v%d" % (V_WA + 2 * p + 1, V_WA + 2 * p))
    elif var == "FFN4":
        A.e("s_and_b32 s%d, s%d, 2" % (S_T0, S_WAVE))
        A.e("s_lshl_b32 s%d, s%d, 1" % (S_T1, S_TYP))
        A.e("s_or_b32 s%d, s%d, s%d" % (S_T0, S_T0, S_T1))
        A.e("s_cmp_eq_u32 s%d, 0" % S_TYP)
        A.e("s_cselect_b32 s%d, 3, 1" % S_T3)
        A.e("s_lshl_b32 s%d, s%d, 12" % (S_T3, S_T3))
        A.e("s_cmp_eq_u32 s%d, 0" % S_TYP)
        A.e("s_cselect_b32 s%d, 1, 2" % S_T2)
        A.e("s_lshl_b32 s%d, s%d, 12" % (S_T2, S_T2))
        A.e("s_mov_b32 s%d, s%d" % (S_STR + 3, S_T2))
        A.e("s_mov_b32 s%d, s%d" % (S_STR + 4, S_T3))
        for p in range(2):
            A.e("s_add_u32 s%d, s%d, %d" % (S_T1, S_T0, p))
            emit_raddr(A, V_WA + 2 * p, "T4", "s%d" % S_T1)
            A.e("v_add_u32 v%d, s%d, v%d" % (V_WA + 2 * p, S_STR + 4, V_WA + 2 * p))
            A.e("v_add_u32 v%d, s%d, v%d" % (V_WA + 2 * p + 1, S_STR + 3, V_WA + 2 * p))
    else:
        for p in range(2):
            emit_raddr(A, V_WA + 2 * p, "T2", p)
            A.e("v_add_u32 v%d, 16384, v%d" % (V_WA + 2 * p, V_WA + 2 * p))
            A.e("v_add_u32 v%d, 2048, v%d" % (V_WA + 2 * p + 1, V_WA + 2 * p))
    for i in range(nt):
        A.e("v_add_u32 v%d, %d, v%d" % (V_WA + 6 + i, WHI, V_WA + i))
    if not dma:
        k1_touch_setup(A)

    def issue_w(stage):
        slot = stage % 4
        for r in range(5):
            A.e("s_add_u32 m0, s%d, %d" % (S_STR + 1, slot * WSTG + r * 4096))
            A.e("s_nop 0")
            A.vmem("buffer_load_dwordx4 v%d, s[%d:%d], s%d offen lds" % (V_DOFF + r, S_R + 4 * r, S_R + 4 * r + 3, S_SOFF + r), ("st", stage))
            if r < 3:
                A.e("s_add_u32 s%d, s%d, s%d" % (S_SOFF + r, S_SOFF + r, S_STR))
            else:
                A.e("s_add_u32 s%d, s%d, %d" % (S_SOFF + r, S_SOFF + r, 32 * 3584))
    def issue_x(d):
        for i in range(4):
            A.e("s_add_u32 m0, s%d, %d" % (S_STR + 2, (d % 2) * XSLOT + i * 1024))
            A.e("s_add_u32 s%d, s%d, %d" % (S_T0, S_XO, i * 8 * 896 + d * 128))
            A.vmem("buffer_load_dwordx4 v%d, s[%d:%d], s%d offen lds" % (V_XD + (i & 1), S_X, S_X + 3, S_T0), ("x", d))
    def touch(d):
        A.e("s_mul_i32 s%d, s%d, %d" % (S_T0, S_STR, d))
        A.e("s_add_u32 s%d, s%d, s%d" % (S_T0, S_T0, S_SOFF))
        A.vmem("buffer_load_dword v%d, v%d, s[%d:%d], s%d offen" % (V_DUMP + 3, V_DOFF, S_R, S_R + 3, S_T0), "pf")
    def read_list(stage):
        slot = stage % 4
        st = stage & 1
        hi = 1 if slot >= 2 else 0
        base = (slot - 2 * hi) * WSTG
        out = []
        d = stage // 2
        for rt in range(4):
            out.append("ds_read_b128 v[%d:%d], v%d offset:%d" % (V_XF + st * 16 + rt * 4, V_XF + st * 16 + rt * 4 + 3, V_XA + (stage & 1), (d % 2) * XSLOT + rt * 2048))
        for ti in range(nt):
            dd = V_WF + st * 24 + ti * 4
            for p in range(2):
                out.append("ds_read_b64_tr_b16 v[%d:%d], v%d offset:%d" % (dd + 2 * p, dd + 2 * p + 1, V_WA + ti + 6 * hi, base + p * poff))
        return out

    A.nst = 0
    A.stamp()
    if STAMP:
        A.e("s_memrealtime s[94:95]")
    NK = 14
    if dma:
        issue_x(0); issue_w(0); issue_w(1); issue_x(1); issue_w(2)
    else:
        if "nopf" not in EXP and "latepf" not in EXP:
            for d in (1, 2, 3):
                touch(d)
    A.wait_vm("gate")
    T = V_T
    A.e("v_mov_b32 v%d, 0" % V_GATE)
    for d in range(4):
        unpack2(A, T, T + 1, 96 + d)
        unpack2(A, T + 2, T + 3, 100 + d)
        A.e("v_pk_mul_f32 v[%d:%d], v[%d:%d], v[%d:%d]" % (T, T + 1, T, T + 1, T + 2, T + 3))
        A.e("v_cvt_pk_bf16_f32 v%d, v%d, v%d" % (T + 4, T, T + 1))
        unpack2(A, T, T + 1, T + 4)
        A.e("v_add_f32 v%d, v%d, v%d" % (V_GATE, V_GATE, T))
        A.e("v_add_f32 v%d, v%d, v%d" % (V_GATE, V_GATE, T + 1))
    for mod in ("quad_perm:[1,0,3,2]", "quad_perm:[2,3,0,1]", "row_half_mirror", "row_mirror"):
        A.e("s_nop 1")
        A.e("v_add_f32_dpp v%d, v%d, v%d %s row_mask:0xf bank_mask:0xf" % (V_GATE, V_GATE, V_GATE, mod))
    A.e("s_nop 1")
    A.e("v_readlane_b32 s%d, v%d, 16" % (S_T0, V_GATE))
    A.e("v_readlane_b32 s%d, v%d, 32" % (S_T1, V_GATE))
    A.e("v_readlane_b32 s%d, v%d, 48" % (S_T2, V_GATE))
    A.e("s_nop 1")
    A.e("v_add_f32 v%d, s%d, v%d" % (V_GATE, S_T0, V_GATE))
    A.e("v_add_f32 v%d, s%d, v%d" % (V_GATE, S_T1, V_GATE))
    A.e("v_add_f32 v%d, s%d, v%d" % (V_GATE, S_T2, V_GATE))
    A.e("v_cvt_pk_bf16_f32 v%d, v%d, v%d" % (V_GATE, V_GATE, V_GATE))
    A.e("v_lshlrev_b32 v%d, 16, v%d" % (V_GATE, V_GATE))
    A.e("v_mul_f32 v%d, s%d, v%d" % (V_GATE, S_NL2E, V_GATE))
    A.e("v_exp_f32 v%d, v%d" % (V_GATE, V_GATE))
    A.e("s_nop 0")
    A.e("v_add_f32 v%d, 1.0, v%d" % (V_GATE, V_GATE))
    A.e("v_rcp_f32 v%d, v%d" % (V_GATE, V_GATE))
    A.e("s_nop 0")
    A.e("v_cvt_pk_bf16_f32 v%d, v%d, v%d" % (V_GATE, V_GATE, V_GATE))
    A.e("v_lshlrev_b32 v%d, 16, v%d" % (V_GATE, V_GATE))

    def wait_stage(stage, extra=""):
        if dma:
            tags = [("st", stage), ("x", stage // 2)]
            idx = None
            for i, t in enumerate(A.vm):
                if t in tags: idx = i
            if idx is None:
                if extra: A.e("s_waitcnt " + extra)
            else:
                n = len(A.vm) - 1 - idx
                A.e("s_waitcnt vmcnt(%d) %s" % (n, extra))
                A.vm = A.vm[idx + 1:]
        elif extra:
            A.e("s_waitcnt " + extra)

    wait_stage(0)
    A.stamp()
    A.e("s_barrier")
    if not dma and "latepf" in EXP:
        for d in (1, 2, 3):
            touch(d)
    for r in read_list(0):
        A.e(r)
    for s in range(NK):
        A.c("---- step %d ----" % s)
        if s in (1, 4, 8, 12):
            A.stamp()
        if s + 1 < NK:
            wait_stage(s + 1, "lgkmcnt(0)")
            A.e("s_barrier")
        else:
            A.e("s_waitcnt lgkmcnt(0)")
        if dma:
            if s + 3 < NK:
                issue_w(s + 3)
            if s % 2 == 1 and (s + 3) // 2 < 7:
                issue_x((s + 3) // 2)
        else:
            if s % 2 == 0 and s // 2 + 4 < 7 and "nopf" not in EXP:
                touch(s // 2 + 4)
            if s == PF2STEP and "nopf2" not in EXP:
                k1_prefetch2(A)
        reads = read_list(s + 1) if s + 1 < NK else []
        st = s & 1
        mf = []
        for ti in range(nt):
            for rt in range(4):
                acc = V_ACC + (ti * 4 + rt) * 4
                xf = V_XF + st * 16 + rt * 4
                wf = V_WF + st * 24 + ti * 4
                cin = "0" if s == 0 else "v[%d:%d]" % (acc, acc + 3)
                if var == "QKV6" and ti >= 2:
                    a, b = xf, wf
                else:
                    a, b = wf, xf
                mf.append("v_mfma_f32_16x16x32_bf16 v[%d:%d], v[%d:%d], v[%d:%d], %s" % (acc, acc + 3, a, a + 3, b, b + 3, cin))
        ri = 0
        for m in mf:
            A.e(m)
            if ri < len(reads):
                A.e(reads[ri]); ri += 1
        while ri < len(reads):
            A.e(reads[ri]); ri += 1

    A.c("---- epilogue ----")
    A.stamp()
    A.e("s_mov_b32 s%d, 0x%x" % (S_L2E2, LOG2E))
    A.e("s_mov_b32 s%d, 0x%x" % (S_L2E2 + 1, LOG2E))
    A.e("s_mov_b32 s%d, 0x%x" % (S_EPS2, EPS))
    A.e("s_mov_b32 s%d, 0x%x" % (S_EPS2 + 1, EPS))
    A.nop(6)
    A.e("v_mov_b32 v%d, 0x7ffffff0" % (V_T + 1))
    A.e("v_mov_b32 v%d, %d" % (V_T, WS_G))
    A.e("v_cmp_eq_u32 vcc, 0, v%d" % V_LANE)
    A.e("s_nop 1")
    A.e("v_cndmask_b32 v%d, v%d, v%d, vcc" % (V_T, V_T + 1, V_T))
    A.vmem("buffer_store_dword v%d, v%d, s[%d:%d], s%d offen" % (V_GATE, V_T, S_W, S_W + 3, S_GOFF), "out")
    VL16 = 9
    A.e("v_lshlrev_b32 v%d, 4, v%d" % (VL16, V_LANE))
    TMP = 32
    if var == "QKV6":
        S_HEAD = S_T3
        A.e("s_lshl_b32 s%d, s%d, 1" % (S_HEAD, S_PI))
        A.e("s_lshr_b32 s%d, s%d, 1" % (S_T0, S_WAVE))
        A.e("s_add_u32 s%d, s%d, s%d" % (S_HEAD, S_HEAD, S_T0))
        M48, M12, ONE12 = 2, 3, 4
        A.e("v_cmp_gt_u32 vcc, 48, v%d" % V_LANE)
        A.e("s_nop 1")
        A.e("v_cndmask_b32 v%d, 0, -1, vcc" % M48)
        A.e("v_and_b32 v%d, 15, v%d" % (V_T, V_LANE))
        A.e("v_cmp_gt_u32 vcc, 12, v%d" % V_T)
        A.e("s_nop 1")
        A.e("v_cndmask_b32 v%d, 0, -1, vcc" % M12)
        A.e("v_mov_b32 v%d, 0x3f803f80" % (V_T + 1))
        A.e("v_cmp_eq_u32 vcc, 12, v%d" % V_T)
        A.e("s_nop 1")
        A.e("v_cndmask_b32 v%d, 0, v%d, vcc" % (ONE12, V_T + 1))
        QF = 48
        for rt in range(4):
            for dt in range(2):
                acc = V_ACC + ((0 + dt) * 4 + rt) * 4
                emit_phi4(A, acc, QF + rt * 4 + dt * 2, TMP)
            A.e("v_and_b32 v%d, v%d, v%d" % (QF + rt * 4 + 2, QF + rt * 4 + 2, M48))
            A.e("v_and_b32 v%d, v%d, v%d" % (QF + rt * 4 + 3, QF + rt * 4 + 3, M48))
            A.e("s_add_u32 s%d, s%d, %d" % (S_T0, S_R0T, rt))
            A.e("s_lshl_b32 s%d, s%d, 4" % (S_T0, S_T0))
            A.e("s_add_u32 s%d, s%d, s%d" % (S_T0, S_T0, S_HEAD))
            A.e("s_lshl_b32 s%d, s%d, 10" % (S_T0, S_T0))
            A.e("s_add_u32 s%d, s%d, %d" % (S_T0, S_T0, WS_PQ))
            A.vmem("buffer_store_dwordx4 v[%d:%d], v%d, s[%d:%d], s%d offen %s" % (QF + rt * 4, QF + rt * 4 + 3, VL16, S_W, S_W + 3, S_T0, STF), "out")
        KP, VP = 64, 80
        for dt in range(2):
            for rt in range(4):
                acc = V_ACC + ((2 + dt) * 4 + rt) * 4
                d = KP + dt * 8 + rt * 2
                emit_phi4(A, acc, d, TMP)
                if dt == 1:
                    A.e("v_and_b32 v%d, v%d, v%d" % (d, d, M12))
                    A.e("v_and_b32 v%d, v%d, v%d" % (d + 1, d + 1, M12))
        for et in range(2):
            for rt in range(4):
                acc = V_ACC + ((4 + et) * 4 + rt) * 4
                d = VP + et * 8 + rt * 2
                for h in range(2):
                    A.e("v_cvt_pk_bf16_f32 v%d, v%d, v%d" % (d + h, acc + 2 * h, acc + 2 * h + 1))
                    if et == 1:
                        A.e("v_and_or_b32 v%d, v%d, v%d, v%d" % (d + h, d + h, M12, ONE12))
        A.nop(2)
        KV = 96
        for blk in range(2):
            for dt in range(2):
                for et in range(2):
                    acc = KV + (dt * 2 + et) * 4
                    a = KP + dt * 8 + blk * 4
                    b = VP + et * 8 + blk * 4
                    cin = "0" if blk == 0 else "v[%d:%d]" % (acc, acc + 3)
                    A.e("v_mfma_f32_16x16x32_bf16 v[%d:%d], v[%d:%d], v[%d:%d], %s" % (acc, acc + 3, a, a + 3, b, b + 3, cin))
        A.nop(10)
        A.e("s_lshl_b32 s%d, s%d, 5" % (S_T0, S_HEAD))
        A.e("s_lshl_b32 s%d, s%d, 1" % (S_T1, S_RB))
        A.e("s_add_u32 s%d, s%d, s%d" % (S_T0, S_T0, S_T1))
        A.e("s_add_u32 s%d, s%d, s%d" % (S_T0, S_T0, S_RH))
        A.e("s_lshl_b32 s%d, s%d, 12" % (S_T0, S_T0))
        A.e("s_add_u32 s%d, s%d, %d" % (S_T0, S_T0, WS_KVP))
        for t in range(4):
            A.vmem("buffer_store_dwordx4 v[%d:%d], v%d, s[%d:%d], s%d offen offset:%d %s" % (KV + t * 4, KV + t * 4 + 3, VL16, S_W, S_W + 3, S_T0, t * 1024, STF), "out")
    else:
        npair = nt // 2
        S_FT = S_T3
        if var == "FFN6":
            A.e("s_lshr_b32 s%d, s%d, 1" % (S_T0, S_WAVE))
            A.e("s_mul_i32 s%d, s%d, 3" % (S_T0, S_T0))
            A.e("s_mul_i32 s%d, s%d, 10" % (S_FT, S_PI))
            A.e("s_add_u32 s%d, s%d, s%d" % (S_FT, S_FT, S_T0))
            A.e("s_add_u32 s%d, s%d, 32" % (S_FT, S_FT))
        elif var == "FFN4":
            A.e("s_lshl_b32 s%d, s%d, 2" % (S_T0, S_PI))
            A.e("s_and_b32 s%d, s%d, 2" % (S_T1, S_WAVE))
            A.e("s_add_u32 s%d, s%d, s%d" % (S_T0, S_T0, S_T1))
            A.e("s_mul_i32 s%d, s%d, 10" % (S_T1, S_PI))
            A.e("s_add_u32 s%d, s%d, 38" % (S_T1, S_T1))
            A.e("s_cmp_eq_u32 s%d, 0" % S_TYP)
            A.e("s_cselect_b32 s%d, s%d, s%d" % (S_FT, S_T0, S_T1))
        else:
            A.e("s_mul_i32 s%d, s%d, 10" % (S_FT, S_PI))
            A.e("s_add_u32 s%d, s%d, 40" % (S_FT, S_FT))
        HP = 48
        k = 0
        for p in range(npair):
            A.e("s_add_u32 s%d, s%d, %d" % (S_T1, S_FT, p))
            A.e("s_and_b32 s%d, s%d, 1" % (S_T2, S_T1))
            A.e("s_lshl_b32 s%d, s%d, 3" % (S_T2, S_T2))
            A.e("s_lshr_b32 s%d, s%d, 1" % (S_T1, S_T1))
            A.e("s_lshl_b32 s%d, s%d, 10" % (S_T1, S_T1))
            A.e("s_add_u32 s%d, s%d, s%d" % (S_T1, S_T1, S_T2))
            for rt in range(4):
                g = V_ACC + ((2 * p) * 4 + rt) * 4
                u = V_ACC + ((2 * p + 1) * 4 + rt) * 4
                d = HP + (k % 8) * 2
                emit_swiglu4(A, g, u, d, TMP + (k % 2) * 4)
                k += 1
                A.e("s_add_u32 s%d, s%d, %d" % (S_T0, S_R0T, rt))
                A.e("s_mul_i32 s%d, s%d, %d" % (S_T0, S_T0, 56 * 1024))
                A.e("s_add_u32 s%d, s%d, s%d" % (S_T0, S_T0, S_T1))
                A.vmem("buffer_store_dwordx2 v[%d:%d], v%d, s[%d:%d], s%d offen %s" % (d, d + 1, VL16, S_W, S_W + 3, S_T0, STF), "out")
    A.stamp()
    A.stamp(True)
    A.stamp_flush(S_W, S_WAVE, 8, WS_STAMP)

K2_SW2, K2_SWO, K2_SWS, K2_SOUT, K2_SDBG = 16, 20, 24, 28, 32
K2_MT, K2_NT, K2_WAVE = 44, 45, 46
K2_LB = 47
K2_HB = 52
K2_PB = 53
K2_W2B = 54
K2_WOB = 55
K2_KVB = 56
RING = 8
DEPTH = 4
W_LANE = 1
W_DOFF = 2
W_L16 = 3
W_RA = 4
W_FLAG = 8
W_ZOFF = 9
W_G = 10
W_T = 12
W_BF = 32
NBUF = DEPTH + 1
W_AF = 112
W_KV = 144
W_O = 192
K2_NV = 232

def gen_k2(A):
    A.vm = []
    A.label("k2_kernel")
    A.e("s_cmp_ge_u32 s2, 240")
    A.e("s_cbranch_scc1 K2_END")
    A.e("s_load_dwordx2 s[4:5], s[0:1], 16")
    A.e("s_load_dwordx2 s[6:7], s[0:1], 48")
    A.e("s_load_dwordx4 s[8:11], s[0:1], 64")
    A.e("s_load_dwordx2 s[12:13], s[0:1], 80")
    A.e("v_and_b32 v%d, 63, v0" % W_LANE)
    A.e("v_lshrrev_b32 v%d, 6, v0" % W_T)
    A.e("s_nop 0")
    A.e("v_readfirstlane_b32 s%d, v%d" % (K2_WAVE, W_T))
    A.e("v_lshlrev_b32 v%d, 4, v%d" % (W_L16, W_LANE))
    k1_consts(A)
    A.e("s_waitcnt lgkmcnt(0)")
    srd(A, K2_SW2, 6, 1792 * 896)
    srd(A, K2_SWO, 4, 448 * 896)
    srd(A, K2_SWS, 12, WS_SIZE)
    srd(A, K2_SOUT, 8, 2048 * 896)
    srd(A, K2_SDBG, 10, 256)
    A.e("s_cmp_lt_u32 s2, 16")
    A.e("s_cbranch_scc1 K2_RED")
    A.e("s_sub_u32 s48, s2, 16")
    A.e("s_and_b32 s49, s48, 7")
    A.e("s_lshl_b32 s49, s49, 2")
    A.e("s_lshr_b32 s50, s48, 3")
    A.e("s_and_b32 s51, s50, 3")
    A.e("s_add_u32 s%d, s49, s51" % K2_MT)
    A.e("s_lshr_b32 s%d, s50, 2" % K2_NT)
    A.e("s_lshl_b32 s%d, s%d, 15" % (K2_LB, K2_WAVE))
    A.e("s_mul_i32 s48, s%d, %d" % (K2_MT, 4 * 56 * 1024))
    A.e("s_mul_i32 s49, s%d, %d" % (K2_WAVE, 14 * 1024))
    A.e("s_add_u32 s%d, s48, s49" % K2_HB)
    A.e("s_lshl_b32 s48, s%d, 16" % K2_MT)
    A.e("s_lshl_b32 s49, s%d, 12" % K2_WAVE)
    A.e("s_add_u32 s48, s48, s49")
    A.e("s_add_u32 s%d, s48, %d" % (K2_PB, WS_PQ))
    A.e("s_mul_i32 s48, s%d, %d" % (K2_WAVE, 448 * 896))
    A.e("s_lshl_b32 s49, s%d, 7" % K2_NT)
    A.e("s_add_u32 s%d, s48, s49" % K2_W2B)
    A.e("s_mul_i32 s48, s%d, %d" % (K2_WAVE, 112 * 896))
    A.e("s_add_u32 s%d, s48, s49" % K2_WOB)
    A.e("s_lshl_b32 s48, s%d, 13" % K2_WAVE)
    A.e("s_add_u32 s%d, s48, %d" % (K2_KVB, WS_KVF))
    t0, t1, t2 = W_T, W_T + 1, W_T + 2
    A.e("v_lshrrev_b32 v%d, 3, v%d" % (t0, W_LANE))
    A.e("v_lshrrev_b32 v%d, 4, v%d" % (t1, W_LANE))
    A.e("v_lshrrev_b32 v%d, 1, v%d" % (t2, W_LANE))
    A.e("v_xor_b32 v%d, v%d, v%d" % (t1, t1, t2))
    A.e("v_and_b32 v%d, 3, v%d" % (t1, t1))
    A.e("v_lshlrev_b32 v%d, 5, v%d" % (t1, t1))
    A.e("v_mul_u32_u24 v%d, 896, v%d" % (t0, t0))
    A.e("v_and_b32 v%d, 1, v%d" % (t2, W_LANE))
    A.e("v_lshlrev_b32 v%d, 4, v%d" % (t2, t2))
    A.e("v_add3_u32 v%d, v%d, v%d, v%d" % (W_DOFF, t0, t1, t2))
    global V_T, V_LANE
    sv = (V_T, V_LANE)
    V_T, V_LANE = W_T, W_LANE
    for t in range(4):
        emit_raddr(A, W_RA + t, "T4K2", t)
        A.e("v_add_u32 v%d, s%d, v%d" % (W_RA + t, K2_LB, W_RA + t))
    V_T, V_LANE = sv
    A.e("v_lshrrev_b32 v%d, 4, v%d" % (t0, W_LANE))
    A.e("v_lshlrev_b32 v%d, 8, v%d" % (t0, t0))
    A.e("v_add_u32 v%d, %d, v%d" % (W_ZOFF, 1024 + 12 * 16, t0))

    NS = 18
    def issue(step):
        slot = step % RING
        buf = step % NBUF
        if step < 14:
            srdw = K2_SW2; base = K2_W2B; rowoff = step * 32 * 896
        else:
            srdw = K2_SWO; base = K2_WOB; rowoff = (step - 14) * 28 * 896
        for o in range(4):
            A.e("s_add_u32 m0, s%d, %d" % (K2_LB, slot * 4096 + o * 1024))
            A.e("s_add_u32 s48, s%d, %d" % (base, rowoff + o * 8 * 896))
            A.vmem("buffer_load_dwordx4 v%d, s[%d:%d], s48 offen lds" % (W_DOFF, srdw, srdw + 3), ("st", step))
        for rt in range(4):
            d = W_BF + buf * 16 + rt * 4
            if step < 14:
                A.e("s_add_u32 s48, s%d, %d" % (K2_HB, rt * 56 * 1024 + step * 1024))
            else:
                A.e("s_add_u32 s48, s%d, %d" % (K2_PB, rt * 16 * 1024 + (step - 14) * 1024))
            A.vmem("buffer_load_dwordx4 v[%d:%d], v%d, s[%d:%d], s48 offen" % (d, d + 3, W_L16, K2_SWS, K2_SWS + 3), ("st", step))
    def reads(step):
        slot = step % RING
        st = step & 1
        out = []
        for t in range(4):
            d = W_AF + st * 16 + t * 4
            for p in range(2):
                out.append("ds_read_b64_tr_b16 v[%d:%d], v%d offset:%d" % (d + 2 * p, d + 2 * p + 1, W_RA + t, slot * 4096 + p * 2048))
        return out

    A.nst = 0
    A.stamp()
    A.e("s_memrealtime s[94:95]")
    for s in range(DEPTH):
        issue(s)
    A.wait_vm(("st", 0))
    A.stamp()
    for r in reads(0):
        A.e(r)
    for s in range(NS):
        A.c("---- k2 step %d ----" % s)
        if s in (4, 8, 11, 14):
            A.stamp()
        if s + DEPTH < NS:
            issue(s + DEPTH)
        if s == 6:
            A.e("v_mov_b32 v%d, 0" % W_T)
            A.vmem("buffer_load_dword v%d, v%d, s[%d:%d], 0 offen sc1" % (W_FLAG, W_T, K2_SDBG, K2_SDBG + 3), "flag")
            A.e("v_and_b32 v%d, 15, v%d" % (W_T + 1, W_LANE))
            A.e("v_lshlrev_b32 v%d, 2, v%d" % (W_T + 1, W_T + 1))
            A.e("s_lshl_b32 s48, s%d, 8" % K2_MT)
            A.e("s_lshl_b32 s49, s%d, 6" % K2_WAVE)
            A.e("s_add_u32 s48, s48, s49")
            A.e("s_add_u32 s48, s48, %d" % WS_G)
            A.vmem("buffer_load_dword v%d, v%d, s[%d:%d], s48 offen" % (W_G, W_T + 1, K2_SWS, K2_SWS + 3), "gate")
        if s == 11:
            A.wait_vm("gate")
            A.e("v_readfirstlane_b32 s48, v%d" % W_FLAG)
            A.e("s_cmp_ge_u32 s48, 16")
            A.e("s_cbranch_scc1 K2_FLAG_OK")
            A.label("K2_SPIN")
            A.e("s_sleep 8")
            A.e("v_mov_b32 v%d, 0" % W_T)
            A.e("buffer_load_dword v%d, v%d, s[%d:%d], 0 offen sc1" % (W_FLAG, W_T, K2_SDBG, K2_SDBG + 3))
            A.e("s_waitcnt vmcnt(0)")
            A.e("v_readfirstlane_b32 s48, v%d" % W_FLAG)
            A.e("s_cmp_lt_u32 s48, 16")
            A.e("s_cbranch_scc1 K2_SPIN")
            A.label("K2_FLAG_OK")
            for h in range(4):
                d = W_KV + h * 12
                A.e("s_add_u32 s48, s%d, %d" % (K2_KVB, h * 2048))
                A.vmem("buffer_load_dwordx4 v[%d:%d], v%d, s[%d:%d], s48 offen sc1" % (d, d + 3, W_L16, K2_SWS, K2_SWS + 3), "kv")
                A.vmem("buffer_load_dwordx4 v[%d:%d], v%d, s[%d:%d], s48 offen offset:1024 sc1" % (d + 4, d + 7, W_L16, K2_SWS, K2_SWS + 3), "kv")
                A.vmem("buffer_load_dwordx4 v[%d:%d], v%d, s[%d:%d], s48 offen sc1" % (d + 8, d + 11, W_ZOFF, K2_SWS, K2_SWS + 3), "kv")
        rd = []
        if s + 1 < NS:
            A.wait_vm(("st", s + 1), "lgkmcnt(0)")
            rd = reads(s + 1)
        else:
            A.e("s_waitcnt lgkmcnt(0)")
        st = s & 1
        buf = s % NBUF
        if s < 14:
            mf = []
            for t in range(4):
                for rt in range(4):
                    acc = (t * 4 + rt) * 4
                    a = W_AF + st * 16 + t * 4
                    b = W_BF + buf * 16 + rt * 4
                    cin = "0" if s == 0 else "a[%d:%d]" % (acc, acc + 3)
                    mf.append("v_mfma_f32_16x16x32_bf16 a[%d:%d], v[%d:%d], v[%d:%d], %s" % (acc, acc + 3, a, a + 3, b, b + 3, cin))
            ri = 0
            for m in mf:
                A.e(m)
                if ri < len(rd):
                    A.e(rd[ri]); ri += 1
        else:
            for r in rd:
                A.e(r)
            h = s - 14
            if h == 0:
                A.wait_vm("kv")
                A.e("v_cmp_gt_u32 vcc, 48, v%d" % W_LANE)
                A.e("s_nop 1")
                A.e("v_cndmask_b32 v%d, 0, -1, vcc" % (W_FLAG))
            kv = W_KV + h * 12
            for rt in range(4):
                b = W_BF + buf * 16 + rt * 4
                N0 = W_O; N1 = W_O + 4; DN = W_O + 8; OF = W_O + 12 + (rt & 1) * 4; T = W_O + 20
                A.e("v_mfma_f32_16x16x32_bf16 v[%d:%d], v[%d:%d], v[%d:%d], 0" % (N0, N0 + 3, kv, kv + 3, b, b + 3))
                A.e("v_mfma_f32_16x16x32_bf16 v[%d:%d], v[%d:%d], v[%d:%d], 0" % (N1, N1 + 3, kv + 4, kv + 7, b, b + 3))
                A.e("v_mfma_f32_16x16x32_bf16 v[%d:%d], v[%d:%d], v[%d:%d], 0" % (DN, DN + 3, kv + 8, kv + 11, b, b + 3))
                A.nop(9)
                A.e("v_cvt_pk_bf16_f32 v%d, v%d, v%d" % (T, DN, DN))
                A.e("v_lshlrev_b32 v%d, 16, v%d" % (T, T))
                A.e("v_add_f32 v%d, s%d, v%d" % (T, S_EPS, T))
                A.e("v_cvt_pk_bf16_f32 v%d, v%d, v%d" % (T, T, T))
                A.e("v_lshlrev_b32 v%d, 16, v%d" % (T, T))
                A.e("v_rcp_f32 v%d, v%d" % (T, T))
                for i in range(4):
                    A.e("v_cvt_pk_bf16_f32 v%d, v%d, v%d" % (OF + i, N0 + 2 * i, N0 + 2 * i + 1))
                A.e("v_mov_b32 v%d, v%d" % (T + 1, T))
                for i in range(4):
                    unpack2(A, T + 2, T + 3, OF + i)
                    A.e("v_pk_mul_f32 v[%d:%d], v[%d:%d], v[%d:%d]" % (T + 2, T + 3, T + 2, T + 3, T, T + 1))
                    A.e("v_cvt_pk_bf16_f32 v%d, v%d, v%d" % (OF + i, T + 2, T + 3))
                A.e("v_and_b32 v%d, v%d, v%d" % (OF + 2, OF + 2, W_FLAG))
                A.e("v_and_b32 v%d, v%d, v%d" % (OF + 3, OF + 3, W_FLAG))
                A.nop(2)
                for t in range(4):
                    acc = 64 + (t * 4 + rt) * 4
                    a = W_AF + st * 16 + t * 4
                    cin = "0" if h == 0 else "a[%d:%d]" % (acc, acc + 3)
                    A.e("v_mfma_f32_16x16x32_bf16 a[%d:%d], v[%d:%d], v[%d:%d], %s" % (acc, acc + 3, a, a + 3, OF, OF + 3, cin))
    A.c("---- k2 epilogue ----")
    A.stamp()
    A.nop(10)
    A.e("s_barrier")
    A.e("s_lshl_b32 s48, s%d, 13" % K2_WAVE)
    A.e("v_add_u32 v%d, s48, v%d" % (W_T, W_L16))
    for rt in range(4):
        A.e("s_cmp_eq_u32 s%d, %d" % (K2_WAVE, rt))
        A.e("s_cbranch_scc1 K2_SKIPW%d" % rt)
        A.e("v_add_u32 v%d, %d, v%d" % (W_T + 1, rt * 32768, W_T))
        for part in range(2):
            for t in range(4):
                acc = part * 64 + (t * 4 + rt) * 4
                A.e("ds_write_b128 v%d, a[%d:%d] offset:%d" % (W_T + 1, acc, acc + 3, part * 4096 + t * 1024))
        A.label("K2_SKIPW%d" % rt)
    A.e("s_waitcnt lgkmcnt(0)")
    A.e("s_barrier")
    for rt in range(4):
        A.e("s_cmp_lg_u32 s%d, %d" % (K2_WAVE, rt))
        A.e("s_cbranch_scc1 K2_SKIPM%d" % rt)
        for part in range(2):
            for t in range(4):
                acc = part * 64 + (t * 4 + rt) * 4
                for i in range(4):
                    A.e("v_accvgpr_read_b32 v%d, a%d" % (32 + (part * 4 + t) * 4 + i, acc + i))
        A.label("K2_SKIPM%d" % rt)
    A.e("s_lshl_b32 s48, s%d, 15" % K2_WAVE)
    A.e("v_add_u32 v%d, s48, v%d" % (W_T, W_L16))
    for src in range(4):
        A.e("s_cmp_eq_u32 s%d, %d" % (K2_WAVE, src))
        A.e("s_cbranch_scc1 K2_SKIPR%d" % src)
        for q in range(8):
            A.e("ds_read_b128 v[%d:%d], v%d offset:%d" % (64 + q * 4, 64 + q * 4 + 3, W_T, src * 8192 + q * 1024))
        A.e("s_waitcnt lgkmcnt(0)")
        for q in range(16):
            A.e("v_pk_add_f32 v[%d:%d], v[%d:%d], v[%d:%d]" % (32 + 2 * q, 33 + 2 * q, 32 + 2 * q, 33 + 2 * q, 64 + 2 * q, 65 + 2 * q))
        A.label("K2_SKIPR%d" % src)
    A.e("v_sub_f32 v%d, 1.0, v%d" % (W_T + 2, W_G))
    A.e("v_cvt_pk_bf16_f32 v%d, v%d, v%d" % (W_T + 2, W_T + 2, W_T + 2))
    A.e("v_lshlrev_b32 v%d, 16, v%d" % (W_T + 2, W_T + 2))
    A.e("v_mov_b32 v%d, v%d" % (W_T + 3, W_T + 2))
    A.e("v_mov_b32 v%d, v%d" % (W_T + 4, W_G))
    A.e("v_mov_b32 v%d, v%d" % (W_T + 5, W_G))
    A.e("v_and_b32 v%d, 15, v%d" % (W_T + 6, W_LANE))
    A.e("v_mul_u32_u24 v%d, 896, v%d" % (W_T + 6, W_T + 6))
    A.e("v_lshrrev_b32 v%d, 4, v%d" % (W_T + 7, W_LANE))
    A.e("v_lshl_add_u32 v%d, v%d, 3, v%d" % (W_T + 6, W_T + 7, W_T + 6))
    A.e("s_lshl_b32 s48, s%d, 6" % K2_MT)
    A.e("s_lshl_b32 s49, s%d, 4" % K2_WAVE)
    A.e("s_add_u32 s48, s48, s49")
    A.e("s_mul_i32 s48, s48, 896")
    A.e("s_lshl_b32 s49, s%d, 7" % K2_NT)
    A.e("s_add_u32 s48, s48, s49")
    X = 64
    for t in range(4):
        for h in range(2):
            bq = 32 + t * 4 + 2 * h
            aq = 48 + t * 4 + 2 * h
            A.e("v_cvt_pk_bf16_f32 v%d, v%d, v%d" % (X, bq, bq + 1))
            A.e("v_cvt_pk_bf16_f32 v%d, v%d, v%d" % (X + 1, aq, aq + 1))
            unpack2(A, X + 2, X + 3, X)
            unpack2(A, X + 4, X + 5, X + 1)
            A.e("v_pk_mul_f32 v[%d:%d], v[%d:%d], v[%d:%d]" % (X + 2, X + 3, X + 2, X + 3, W_T + 2, W_T + 3))
            A.e("v_pk_mul_f32 v[%d:%d], v[%d:%d], v[%d:%d]" % (X + 4, X + 5, X + 4, X + 5, W_T + 4, W_T + 5))
            A.e("v_cvt_pk_bf16_f32 v%d, v%d, v%d" % (X, X + 2, X + 3))
            A.e("v_cvt_pk_bf16_f32 v%d, v%d, v%d" % (X + 1, X + 4, X + 5))
            unpack2(A, X + 2, X + 3, X)
            unpack2(A, X + 4, X + 5, X + 1)
            A.e("v_pk_add_f32 v[%d:%d], v[%d:%d], v[%d:%d]" % (X + 2, X + 3, X + 2, X + 3, X + 4, X + 5))
            A.e("v_cvt_pk_bf16_f32 v%d, v%d, v%d" % (X + 8 + t * 2 + h, X + 2, X + 3))
        A.e("buffer_store_dwordx2 v[%d:%d], v%d, s[%d:%d], s48 offen offset:%d" % (X + 8 + t * 2, X + 9 + t * 2, W_T + 6, K2_SOUT, K2_SOUT + 3, t * 32))
    A.stamp()
    A.stamp(True)
    A.stamp_flush(K2_SWS, K2_WAVE, 4, WS_STAMP + 0x40000)
    A.e("s_branch K2_END")

    A.label("K2_RED")
    A.vm = []
    A.e("s_lshl_b32 s48, s2, 17")
    A.e("s_lshl_b32 s49, s%d, 10" % K2_WAVE)
    A.e("s_add_u32 s48, s48, s49")
    A.e("s_add_u32 s48, s48, %d" % WS_KVP)
    for p in range(32):
        A.e("s_add_u32 s49, s48, %d" % (p * 4096))
        A.vmem("buffer_load_dwordx4 v[%d:%d], v%d, s[%d:%d], s49 offen" % (32 + p * 4, 35 + p * 4, W_L16, K2_SWS, K2_SWS + 3), ("p", p))
    A.wait_vm(("p", 1))
    A.e("v_pk_add_f32 v[32:33], v[32:33], v[36:37]")
    A.e("v_pk_add_f32 v[34:35], v[34:35], v[38:39]")
    for p in range(2, 32):
        A.wait_vm(("p", p))
        A.e("v_pk_add_f32 v[32:33], v[32:33], v[%d:%d]" % (32 + p * 4, 33 + p * 4))
        A.e("v_pk_add_f32 v[34:35], v[34:35], v[%d:%d]" % (34 + p * 4, 35 + p * 4))
    A.e("v_cvt_pk_bf16_f32 v20, v32, v33")
    A.e("v_cvt_pk_bf16_f32 v21, v34, v35")
    A.e("s_lshl_b32 s48, s2, 11")
    A.e("s_and_b32 s49, s%d, 1" % K2_WAVE)
    A.e("s_lshl_b32 s49, s49, 10")
    A.e("s_add_u32 s48, s48, s49")
    A.e("s_lshr_b32 s49, s%d, 1" % K2_WAVE)
    A.e("s_lshl_b32 s49, s49, 3")
    A.e("s_add_u32 s48, s48, s49")
    A.e("s_add_u32 s48, s48, %d" % WS_KVF)
    A.e("buffer_store_dwordx2 v[20:21], v%d, s[%d:%d], s48 offen sc1" % (W_L16, K2_SWS, K2_SWS + 3))
    A.e("s_waitcnt vmcnt(0)")
    A.e("s_barrier")
    A.e("s_cmp_lg_u32 s%d, 0" % K2_WAVE)
    A.e("s_cbranch_scc1 K2_END")
    A.e("v_mov_b32 v22, 0x7ffffff0")
    A.e("v_cmp_eq_u32 vcc, 0, v%d" % W_LANE)
    A.e("s_nop 1")
    A.e("v_cndmask_b32 v22, v22, 0, vcc")
    A.e("v_mov_b32 v23, 1")
    A.e("buffer_atomic_add v23, v22, s[%d:%d], 0 offen sc1" % (K2_SDBG, K2_SDBG + 3))
    A.e("s_waitcnt vmcnt(0)")
    A.label("K2_END")
    A.e("s_endpgm")

def main():
    out = []
    hdr = open("cdna_kernels/%s.s.ref" % NAME).read().splitlines()
    for l in hdr:
        if l.startswith(";") and "@launch" not in l:
            out.append(l)
        elif not l.startswith(";"):
            break
    out.append("; @launch kernel=k1_kernel grid=(256,1,1) block=(512,1,1) lds=%d" % K1_LDS)
    out.append("; @launch kernel=k2_kernel grid=(240,1,1) block=(256,1,1) lds=131072")
    out.append('.amdgcn_target "amdgcn-amd-amdhsa--gfx950"')
    out.append(".text")
    A = Asm()
    A.lines.append(".globl k1_kernel\n.p2align 8\n.type k1_kernel,@function")
    gen_k1(A)
    A.lines.append(".globl k2_kernel\n.p2align 8\n.type k2_kernel,@function")
    gen_k2(A)
    out += A.lines
    out.append('.section .rodata,"a"')
    for nm, nv, acc in (("k1_kernel", 212, 212), ("k2_kernel", K2_NV + 128, K2_NV)):
        out.append(".p2align 6")
        out.append(".amdhsa_kernel %s" % nm)
        out.append("  .amdhsa_next_free_vgpr %d" % nv)
        out.append("  .amdhsa_next_free_sgpr 102")
        out.append("  .amdhsa_accum_offset %d" % acc)
        out.append("  .amdhsa_group_segment_fixed_size 0")
        out.append("  .amdhsa_kernarg_size 88")
        out.append("  .amdhsa_user_sgpr_count 2")
        out.append("  .amdhsa_user_sgpr_kernarg_segment_ptr 1")
        out.append("  .amdhsa_system_sgpr_workgroup_id_x 1")
        out.append(".end_amdhsa_kernel")
    dst = sys.argv[1] if len(sys.argv) > 1 else "cdna_kernels/%s.s" % NAME
    open(dst, "w").write("\n".join(out) + "\n")

main()
```

```python
import sys

NAME = "gated_mix__linear_attn_block__glu_gated_swiglu__prompt"

WS_H    = 0x000000
WS_PQ   = 0x700000
WS_KVP  = 0x900000
WS_KVF  = 0xB00000
WS_G    = 0xB10000
WS_SIZE = 0xB20000

import os
STAMP = os.environ.get("STAMP") == "1"
EXP = os.environ.get("EXP", "")
DMAFLAGS = os.environ.get("DMAFLAGS", "")
STF = os.environ.get("STF", "")
PF2STEP = int(os.environ.get("PF2STEP", "8"))
WS_STAMP = 0xC00000
if STAMP:
    WS_SIZE = 0xD00000
class Asm:
    def __init__(self):
        self.lines = []
        self.vm = []
        self.nst = 0
        self.uid = 0
    def stamp(self, real=False):
        if not STAMP: return
        self.e("%s s[%d:%d]" % ("s_memrealtime" if real else "s_memtime", 76 + 2 * self.nst, 77 + 2 * self.nst))
        self.nst += 1
        assert self.nst <= 10
    def stamp_flush(self, srdw, s_wave, nwave, base):
        if not STAMP: return
        self.e("s_waitcnt lgkmcnt(0)")
        self.e("s_mul_i32 s48, s2, %d" % nwave)
        self.e("s_add_u32 s48, s48, s%d" % s_wave)
        self.e("s_lshl_b32 s48, s48, 6")
        self.e("s_add_u32 s48, s48, %d" % base)
        self.e("v_mov_b32 v20, 0")
        self.e("v_mov_b32 v21, s94")
        self.e("buffer_store_dword v21, v20, s[%d:%d], s48 offen offset:60" % (srdw, srdw + 3))
        for i in range(self.nst):
            self.e("v_mov_b32 v21, s%d" % (76 + 2 * i))
            self.e("buffer_store_dword v21, v20, s[%d:%d], s48 offen offset:%d" % (srdw, srdw + 3, 4 * i))
        self.nst = 0
    def e(self, s):
        self.lines.append("    " + s)
    def c(self, s):
        self.lines.append("    ; " + s)
    def label(self, l):
        self.lines.append(l + ":")
    def vmem(self, s, tag):
        self.e(s)
        self.vm.append(tag)
    def wait_vm(self, tag, extra=""):
        idx = None
        for i, t in enumerate(self.vm):
            if t == tag:
                idx = i
        if idx is None:
            if extra:
                self.e("s_waitcnt " + extra)
            return
        n = len(self.vm) - 1 - idx
        assert n <= 63, n
        self.e("s_waitcnt vmcnt(%d) %s" % (n, extra))
        self.vm = self.vm[idx + 1:]
    def wait_vm_all(self, extra=""):
        self.e("s_waitcnt vmcnt(0) %s" % extra)
        self.vm = []
    def nop(self, n):
        while n > 0:
            k = min(n, 16)
            self.e("s_nop %d" % (k - 1))
            n -= k

def vr(b, n=1):
    return "v%d" % b if n == 1 else "v[%d:%d]" % (b, b + n - 1)
def ar(b, n=1):
    return "a%d" % b if n == 1 else "a[%d:%d]" % (b, b + n - 1)
def sr(b, n=1):
    return "s%d" % b if n == 1 else "s[%d:%d]" % (b, b + n - 1)

def srd(A, d, base, size):
    A.e("s_mov_b32 s%d, s%d" % (d, base))
    A.e("s_and_b32 s%d, s%d, 0xffff" % (d + 1, base + 1))
    A.e("s_mov_b32 s%d, 0x%x" % (d + 2, size))
    A.e("s_mov_b32 s%d, 0x00020000" % (d + 3))

LOG2E = 0x3fb8aa3b
NLOG2E = 0xbfb8aa3b
EPS = 0x358637bd

WSTG = 20480
XBASE = 4 * WSTG
XSLOT = 16384
K1_LDS = XBASE + 2 * XSLOT
WHI = 2 * WSTG

S_X, S_W, S_GW = 16, 20, 24
S_R = 28
S_CG, S_RB, S_WAVE, S_RH = 48, 49, 50, 51
S_T0, S_T1, S_T2, S_T3 = 52, 53, 54, 55
S_PI, S_TYP = 56, 57
S_R0T = 58
S_GOFF = 59
S_MSK = 60
S_NL2E = 62
S_ONE = 64
S_L2E = 66
S_EPS = 67
S_SOFF = 68
S_STR = 4
S_XO = 73
S_E = 74
S_IDX = 75

V_LANE = 1
V_DOFF = 2
V_XD = 7
V_XA = 9
V_GATE = 11
V_WA = 12
V_T = 24
V_XF = 32
V_WF = 64
V_ACC = 112
V_DUMP = 208

def k1_consts(A):
    A.e("s_mov_b32 s%d, 0xffff0000" % S_MSK)
    A.e("s_mov_b32 s%d, 0x%x" % (S_NL2E, NLOG2E))
    A.e("s_mov_b32 s%d, 0x%x" % (S_NL2E + 1, NLOG2E))
    A.e("s_mov_b32 s%d, 1.0" % S_ONE)
    A.e("s_mov_b32 s%d, 1.0" % (S_ONE + 1))
    A.e("s_mov_b32 s%d, 0x%x" % (S_L2E, LOG2E))
    A.e("s_mov_b32 s%d, 0x%x" % (S_EPS, EPS))

def unpack2(A, dlo, dhi, src):
    A.e("v_lshlrev_b32 v%d, 16, v%d" % (dlo, src))
    A.e("v_and_b32 v%d, s%d, v%d" % (dhi, S_MSK, src))

def emit_raddr(A, vdst, kind, t):
    t0, t1, t2, t3 = V_T, V_T + 1, V_T + 2, V_T + 3
    ts = str(t)
    A.e("v_lshrrev_b32 v%d, 4, v%d" % (t0, V_LANE))
    A.e("v_lshrrev_b32 v%d, 2, v%d" % (t1, V_LANE))
    A.e("v_and_b32 v%d, 3, v%d" % (t1, t1))
    A.e("v_and_b32 v%d, 3, v%d" % (t2, V_LANE))
    A.e("v_lshlrev_b32 v%d, 3, v%d" % (vdst, t2))
    A.e("v_and_b32 v%d, 1, v%d" % (t2, t0))
    if kind == "T2":
        A.e("v_lshrrev_b32 v%d, 1, v%d" % (t3, t0))
        A.e("v_lshl_add_u32 v%d, v%d, 10, v%d" % (vdst, t3, vdst))
        A.e("v_lshl_add_u32 v%d, v%d, 9, v%d" % (vdst, t2, vdst))
        A.e("v_lshl_add_u32 v%d, v%d, 6, v%d" % (vdst, t1, vdst))
        A.e("v_xor_b32 v%d, %s, v%d" % (t3, ts, t2))
        A.e("v_lshl_add_u32 v%d, v%d, 5, v%d" % (vdst, t3, vdst))
    elif kind == "T4":
        A.e("v_lshl_add_u32 v%d, v%d, 10, v%d" % (vdst, t0, vdst))
        A.e("v_lshl_add_u32 v%d, v%d, 7, v%d" % (vdst, t1, vdst))
        A.e("v_lshrrev_b32 v%d, 1, v%d" % (t3, t1))
        A.e("v_lshl_or_b32 v%d, v%d, 1, v%d" % (t3, t2, t3))
        A.e("v_xor_b32 v%d, %s, v%d" % (t3, ts, t3))
        A.e("v_lshl_add_u32 v%d, v%d, 5, v%d" % (vdst, t3, vdst))
    elif kind == "T4K2":
        A.e("v_lshrrev_b32 v%d, 1, v%d" % (t3, t0))
        A.e("v_lshl_add_u32 v%d, v%d, 10, v%d" % (vdst, t3, vdst))
        A.e("v_lshl_add_u32 v%d, v%d, 9, v%d" % (vdst, t2, vdst))
        A.e("v_lshl_add_u32 v%d, v%d, 7, v%d" % (vdst, t1, vdst))
        A.e("v_lshrrev_b32 v%d, 1, v%d" % (t3, t1))
        A.e("v_lshl_or_b32 v%d, v%d, 1, v%d" % (t3, t2, t3))
        A.e("v_xor_b32 v%d, %s, v%d" % (t3, ts, t3))
        A.e("v_lshl_add_u32 v%d, v%d, 5, v%d" % (vdst, t3, vdst))
    else:
        raise ValueError(kind)

def emit_phi4(A, src, dst, tmp):
    a = tmp; b = tmp + 4
    for h in range(2):
        A.e("v_pk_mul_f32 v[%d:%d], v[%d:%d], s[%d:%d]" % (b + 2 * h, b + 2 * h + 1, src + 2 * h, src + 2 * h + 1, S_L2E2, S_L2E2 + 1))
    for i in range(4):
        A.e("v_min_f32 v%d, 0, v%d" % (b + i, b + i))
    for i in range(4):
        A.e("v_exp_f32 v%d, v%d" % (b + i, b + i))
    for i in range(4):
        A.e("v_max_f32 v%d, 0, v%d" % (a + i, src + i))
    for h in range(2):
        A.e("v_pk_add_f32 v[%d:%d], v[%d:%d], v[%d:%d]" % (a + 2 * h, a + 2 * h + 1, a + 2 * h, a + 2 * h + 1, b + 2 * h, b + 2 * h + 1))
    for h in range(2):
        A.e("v_pk_add_f32 v[%d:%d], v[%d:%d], s[%d:%d]" % (a + 2 * h, a + 2 * h + 1, a + 2 * h, a + 2 * h + 1, S_EPS2, S_EPS2 + 1))
    for h in range(2):
        A.e("v_cvt_pk_bf16_f32 v%d, v%d, v%d" % (dst + h, a + 2 * h, a + 2 * h + 1))

def emit_swiglu4(A, g, u, dst, tmp):
    E = tmp
    for h in range(2):
        A.e("v_pk_mul_f32 v[%d:%d], v[%d:%d], s[%d:%d]" % (E + 2 * h, E + 2 * h + 1, g + 2 * h, g + 2 * h + 1, S_NL2E, S_NL2E + 1))
    for i in range(4):
        A.e("v_exp_f32 v%d, v%d" % (E + i, E + i))
    for h in range(2):
        A.e("v_pk_mul_f32 v[%d:%d], v[%d:%d], v[%d:%d]" % (g + 2 * h, g + 2 * h + 1, g + 2 * h, g + 2 * h + 1, u + 2 * h, u + 2 * h + 1))
    for h in range(2):
        A.e("v_pk_add_f32 v[%d:%d], v[%d:%d], s[%d:%d]" % (E + 2 * h, E + 2 * h + 1, E + 2 * h, E + 2 * h + 1, S_ONE, S_ONE + 1))
    for i in range(4):
        A.e("v_rcp_f32 v%d, v%d" % (E + i, E + i))
    A.e("s_nop 0")
    for h in range(2):
        A.e("v_pk_mul_f32 v[%d:%d], v[%d:%d], v[%d:%d]" % (g + 2 * h, g + 2 * h + 1, g + 2 * h, g + 2 * h + 1, E + 2 * h, E + 2 * h + 1))
    for h in range(2):
        A.e("v_cvt_pk_bf16_f32 v%d, v%d, v%d" % (dst + h, g + 2 * h, g + 2 * h + 1))

S_L2E2 = 10
S_EPS2 = 12

def sel_srd(A, d, lo_a, lo_b, size_a, size_b):
    A.e("s_cselect_b32 s%d, s%d, s%d" % (d, lo_a, lo_b))
    A.e("s_cselect_b32 s%d, s%d, s%d" % (d + 1, lo_a + 1, lo_b + 1))
    if size_a == size_b:
        A.e("s_mov_b32 s%d, 0x%x" % (d + 2, size_a))
    else:
        A.e("s_mov_b32 s%d, 0x%x" % (S_T3, size_a))
        A.e("s_cselect_b32 s%d, s%d, 0x%x" % (d + 2, S_T3, size_b))
    A.e("s_and_b32 s%d, s%d, 0xffff" % (d + 1, d + 1))
    A.e("s_mov_b32 s%d, 0x00020000" % (d + 3))

SZQ = 448 * 2688
SZG = 448 * 3584

def gen_k1(A):
    A.label("k1_kernel")
    A.e("s_cmp_ge_u32 s2, 256")
    A.e("s_cbranch_scc1 K1_END")
    A.e("s_load_dwordx4 s[4:7], s[0:1], 0")
    A.e("s_load_dwordx4 s[8:11], s[0:1], 32")
    A.e("s_load_dwordx2 s[12:13], s[0:1], 56")
    A.e("s_load_dwordx2 s[14:15], s[0:1], 80")
    A.e("s_load_dwordx2 s[96:97], s[0:1], 48")
    A.e("s_load_dwordx2 s[98:99], s[0:1], 16")
    if "nocw" not in EXP:
        A.e("s_getpc_b64 s[100:101]")
        A.label("K1_PC")
        A.e("s_sub_u32 s100, s100, K1_PC-k1_kernel")
        A.e("s_subb_u32 s101, s101, 0")
        A.e("v_lshlrev_b32 v%d, 7, v0" % V_T)
        A.e("v_min_u32 v%d, K2_END-k1_kernel, v%d" % (V_T, V_T))
        A.vmem("global_load_dword v%d, v%d, s[100:101]" % (V_DUMP + 3, V_T), "cw")
    A.e("v_and_b32 v%d, 63, v0" % V_LANE)
    A.e("v_lshrrev_b32 v%d, 6, v0" % V_T)
    A.e("s_nop 0")
    A.e("v_readfirstlane_b32 s%d, v%d" % (S_WAVE, V_T))
    k1_consts(A)
    A.e("s_and_b32 s%d, s2, 7" % S_T0)
    A.e("s_lshr_b32 s%d, s2, 3" % S_IDX)
    A.e("s_and_b32 s%d, s%d, 3" % (S_T2, S_T0))
    A.e("s_lshl_b32 s%d, s%d, 2" % (S_T2, S_T2))
    A.e("s_and_b32 s%d, s%d, 3" % (S_T3, S_IDX))
    A.e("s_add_u32 s%d, s%d, s%d" % (S_CG, S_T2, S_T3))
    A.e("s_lshr_b32 s%d, s%d, 2" % (S_T2, S_T0))
    A.e("s_lshl_b32 s%d, s%d, 3" % (S_T2, S_T2))
    A.e("s_lshr_b32 s%d, s%d, 2" % (S_E, S_IDX))
    A.e("s_add_u32 s%d, s%d, s%d" % (S_RB, S_T2, S_E))
    A.e("s_and_b32 s%d, s%d, 1" % (S_RH, S_WAVE))
    A.e("s_and_b32 s%d, s%d, 1" % (S_TYP, S_CG))
    A.e("s_lshr_b32 s%d, s%d, 1" % (S_PI, S_CG))
    A.e("s_lshl_b32 s%d, s%d, 3" % (S_R0T, S_RB))
    A.e("s_lshl_b32 s%d, s%d, 2" % (S_T0, S_RH))
    A.e("s_add_u32 s%d, s%d, s%d" % (S_R0T, S_R0T, S_T0))
    A.e("s_waitcnt lgkmcnt(0)")
    srd(A, S_X, 4, 2048 * 896)
    srd(A, S_W, 14, WS_SIZE)
    srd(A, S_GW, 12, 896)
    A.e("s_lshl_b32 s%d, s%d, 7" % (S_T0, S_RB))
    A.e("s_lshl_b32 s%d, s%d, 3" % (S_T1, S_CG))
    A.e("s_add_u32 s%d, s%d, s%d" % (S_T0, S_T0, S_T1))
    A.e("s_add_u32 s%d, s%d, s%d" % (S_T0, S_T0, S_WAVE))
    A.e("s_mul_i32 s%d, s%d, 896" % (S_T1, S_T0))
    A.e("v_lshlrev_b32 v%d, 4, v%d" % (V_T, V_LANE))
    A.e("v_mov_b32 v%d, 0x7ffffff0" % (V_T + 1))
    A.e("v_cmp_gt_u32 vcc, 56, v%d" % V_LANE)
    A.e("s_nop 1")
    A.e("v_cndmask_b32 v%d, v%d, v%d, vcc" % (V_T, V_T + 1, V_T))
    A.vmem("buffer_load_dwordx4 v[96:99], v%d, s[%d:%d], s%d offen" % (V_T, S_X, S_X + 3, S_T1), "gate")
    A.vmem("buffer_load_dwordx4 v[100:103], v%d, s[%d:%d], 0 offen" % (V_T, S_GW, S_GW + 3), "gate")
    A.e("s_lshl_b32 s%d, s%d, 2" % (S_GOFF, S_T0))
    A.e("s_cmp_eq_u32 s%d, 0" % S_TYP)
    sel_srd(A, S_R + 0, 6, 8, SZQ, SZG)
    A.e("s_cmp_eq_u32 s%d, 0" % S_TYP)
    sel_srd(A, S_R + 4, 6, 8, SZQ, SZG)
    A.e("s_cmp_eq_u32 s%d, 0" % S_TYP)
    sel_srd(A, S_R + 8, 6, 10, SZQ, SZG)
    A.e("s_cmp_eq_u32 s%d, 0" % S_TYP)
    sel_srd(A, S_R + 12, 8, 10, SZG, SZG)
    A.e("s_lshr_b32 s%d, s%d, 1" % (S_T0, S_WAVE))
    A.e("s_and_b32 s%d, s%d, 1" % (S_T0, S_T0))
    A.e("s_xor_b32 s%d, s%d, 1" % (S_T0, S_T0))
    A.e("s_and_b32 s%d, s%d, s%d" % (S_T0, S_T0, S_TYP))
    A.e("s_cmp_eq_u32 s%d, 1" % S_T0)
    sel_srd(A, S_R + 16, 8, 10, SZG, SZG)
    t0, t1, t2 = V_T, V_T + 1, V_T + 2
    A.e("v_and_b32 v%d, 15, v%d" % (t0, V_LANE))
    A.e("v_lshrrev_b32 v%d, 1, v%d" % (t1, t0))
    A.e("v_lshrrev_b32 v%d, 4, v%d" % (t2, V_LANE))
    A.e("v_xor_b32 v%d, v%d, v%d" % (t1, t1, t2))
    A.e("s_lshl_b32 s%d, s%d, 6" % (S_T0, S_RH))
    A.e("v_add_u32 v%d, s%d, v%d" % (t0, S_T0, t0))
    A.e("v_lshlrev_b32 v%d, 7, v%d" % (t0, t0))
    A.e("v_lshl_add_u32 v%d, v%d, 4, v%d" % (t0, t1, t0))
    A.e("v_add_u32 v%d, %d, v%d" % (V_XA, XBASE, t0))
    A.e("v_xor_b32 v%d, 64, v%d" % (V_XA + 1, V_XA))
    A.e("s_cmp_ge_u32 s%d, 4" % S_WAVE)
    A.e("s_cbranch_scc1 K1_DMAW")
    A.e("s_cmp_eq_u32 s%d, 0" % S_TYP)
    A.e("s_cbranch_scc1 K1_QKV6")
    base_vm = list(A.vm)
    for var in ("FFN6", "QKV6"):
        A.vm = list(base_vm)
        A.label("K1_" + var)
        gen_k1_var(A, var)
        A.e("s_branch K1_END")
    A.vm = list(base_vm)
    A.label("K1_DMAW")
    k1_dma_setup(A)
    A.e("s_cmp_eq_u32 s%d, 0" % S_TYP)
    A.e("s_cbranch_scc1 K1_FFN4")
    A.e("s_cmp_lt_u32 s%d, 6" % S_WAVE)
    A.e("s_cbranch_scc1 K1_FFN4")
    base_vm = list(A.vm)
    for var in ("FFN4T2", "FFN4"):
        A.vm = list(base_vm)
        A.label("K1_" + var)
        gen_k1_var(A, var)
        A.e("s_branch K1_END")
    A.label("K1_END")
    A.e("s_endpgm")

def k1_dma_setup(A):
    t0, t1, t2, t3 = V_T, V_T + 1, V_T + 2, V_T + 3
    SJ = S_T2
    A.e("s_and_b32 s%d, s%d, 3" % (SJ, S_WAVE))
    A.e("v_lshrrev_b32 v%d, 3, v%d" % (t0, V_LANE))
    A.e("v_lshrrev_b32 v%d, 4, v%d" % (t1, V_LANE))
    A.e("v_and_b32 v%d, 1, v%d" % (t1, t1))
    A.e("s_and_b32 s%d, s%d, 1" % (S_T3, SJ))
    A.e("s_lshl_b32 s%d, s%d, 1" % (S_T3, S_T3))
    A.e("v_or_b32 v%d, s%d, v%d" % (t1, S_T3, t1))
    A.e("v_lshrrev_b32 v%d, 1, v%d" % (t2, V_LANE))
    A.e("v_and_b32 v%d, 3, v%d" % (t2, t2))
    A.e("v_xor_b32 v%d, v%d, v%d" % (t1, t1, t2))
    A.e("v_and_b32 v%d, 1, v%d" % (t2, V_LANE))
    A.e("v_lshlrev_b32 v%d, 4, v%d" % (t2, t2))
    A.e("s_lshl_b32 s%d, s%d, 3" % (S_T3, SJ))
    A.e("v_add_u32 v%d, s%d, v%d" % (t0, S_T3, t0))
    A.e("v_lshl_add_u32 v%d, v%d, 5, v%d" % (t3, t1, t2))
    A.e("v_lshrrev_b32 v%d, 1, v%d" % (t1, t1))
    A.e("v_lshlrev_b32 v%d, 3, v%d" % (t1, t1))
    A.e("v_sub_u32 v%d, v%d, v%d" % (t1, t3, t1))
    A.e("v_mul_u32_u24 v%d, 2688, v%d" % (t2, t0))
    A.e("v_add_u32 v%d, v%d, v%d" % (t1, t1, t2))
    A.e("v_mul_u32_u24 v%d, 3584, v%d" % (t2, t0))
    A.e("v_add_u32 v%d, v%d, v%d" % (t3, t3, t2))
    A.e("s_mul_i32 s%d, s%d, 112" % (S_T0, S_PI))
    A.e("s_mul_i32 s%d, s%d, 320" % (S_T1, S_PI))
    A.e("s_add_u32 s%d, s%d, 1024" % (S_T1, S_T1))
    A.e("s_cmp_eq_u32 s%d, 0" % S_TYP)
    A.e("s_cselect_b64 vcc, -1, 0")
    for r in range(3):
        A.e("v_add_u32 v%d, s%d, v%d" % (V_DOFF + r, S_T0, t1))
        A.e("v_add_u32 v%d, %d, v%d" % (V_DOFF + r, r * 896, V_DOFF + r))
        A.e("v_add_u32 v%d, s%d, v%d" % (t2, S_T1, t3))
        if r == 1:
            A.e("v_add_u32 v%d, 128, v%d" % (t2, t2))
        A.e("v_cndmask_b32 v%d, v%d, v%d, vcc" % (V_DOFF + r, t2, V_DOFF + r))
    A.e("s_lshl_b32 s%d, s%d, 7" % (S_T0, S_PI))
    A.e("v_add_u32 v%d, s%d, v%d" % (V_DOFF + 3, S_T0, t3))
    A.e("v_add_u32 v%d, s%d, v%d" % (t2, S_T1, t3))
    A.e("v_add_u32 v%d, 128, v%d" % (t2, t2))
    A.e("v_cndmask_b32 v%d, v%d, v%d, vcc" % (V_DOFF + 3, t2, V_DOFF + 3))
    A.e("v_add_u32 v%d, s%d, v%d" % (V_DOFF + 4, S_T0, t3))
    A.e("v_lshrrev_b32 v%d, 2, v%d" % (t0, V_LANE))
    A.e("s_and_b32 s%d, s%d, 1" % (S_T3, SJ))
    A.e("s_lshl_b32 s%d, s%d, 4" % (S_T3, S_T3))
    A.e("v_add_u32 v%d, s%d, v%d" % (t0, S_T3, t0))
    A.e("v_mul_u32_u24 v%d, 3584, v%d" % (t0, t0))
    A.e("v_lshrrev_b32 v%d, 1, v%d" % (t1, V_LANE))
    A.e("v_lshrrev_b32 v%d, 5, v%d" % (t2, V_LANE))
    A.e("v_xor_b32 v%d, v%d, v%d" % (t1, t1, t2))
    A.e("v_and_b32 v%d, 1, v%d" % (t1, t1))
    A.e("v_lshl_add_u32 v%d, v%d, 5, v%d" % (t0, t1, t0))
    A.e("v_and_b32 v%d, 1, v%d" % (t1, V_LANE))
    A.e("v_lshl_add_u32 v%d, v%d, 4, v%d" % (t0, t1, t0))
    A.e("v_add_u32 v%d, s%d, v%d" % (t0, S_T1, t0))
    A.e("v_add_u32 v%d, 256, v%d" % (t0, t0))
    A.e("v_cndmask_b32 v%d, v%d, v%d, vcc" % (V_DOFF + 4, t0, V_DOFF + 4))
    A.e("s_cmp_eq_u32 s%d, 0" % S_TYP)
    A.e("s_mov_b32 s%d, %d" % (S_T3, 32 * 2688))
    A.e("s_cselect_b32 s%d, s%d, %d" % (S_STR, S_T3, 32 * 3584))
    for r in range(5):
        A.e("s_mov_b32 s%d, 0" % (S_SOFF + r))
    A.e("v_lshrrev_b32 v%d, 3, v%d" % (t0, V_LANE))
    A.e("v_lshrrev_b32 v%d, 4, v%d" % (t1, V_LANE))
    A.e("v_and_b32 v%d, 7, v%d" % (t2, V_LANE))
    A.e("v_xor_b32 v%d, v%d, v%d" % (t1, t1, t2))
    A.e("v_mul_u32_u24 v%d, 896, v%d" % (t0, t0))
    A.e("v_lshl_add_u32 v%d, v%d, 4, v%d" % (V_XD, t1, t0))
    A.e("v_xor_b32 v%d, 64, v%d" % (V_XD + 1, V_XD))
    A.e("s_lshl_b32 s%d, s%d, 7" % (S_T0, S_RB))
    A.e("s_lshl_b32 s%d, s%d, 5" % (S_T1, SJ))
    A.e("s_add_u32 s%d, s%d, s%d" % (S_T0, S_T0, S_T1))
    A.e("s_mul_i32 s%d, s%d, 896" % (S_XO, S_T0))
    A.e("s_lshl_b32 s%d, s%d, 10" % (S_STR + 1, SJ))
    A.e("s_lshl_b32 s%d, s%d, 12" % (S_STR + 2, SJ))
    A.e("s_add_u32 s%d, s%d, %d" % (S_STR + 2, S_STR + 2, XBASE))

def k1_touch_setup(A):
    t0, t1, t2, t3 = V_T, V_T + 1, V_T + 2, V_T + 3
    A.e("v_lshrrev_b32 v%d, 3, v%d" % (t0, V_LANE))
    A.e("v_and_b32 v%d, 7, v%d" % (t1, V_LANE))
    A.e("v_mov_b32 v%d, 0x7ffffff0" % (V_T + 4))
    A.e("s_cmp_eq_u32 s%d, 3" % S_WAVE)
    A.e("s_cbranch_scc1 K1_TS_X%d" % A.uid)
    A.e("s_cmp_eq_u32 s%d, 0" % S_TYP)
    A.e("s_cbranch_scc0 K1_TS_F%d" % A.uid)
    A.e("s_cmp_eq_u32 s%d, 0" % S_WAVE)
    A.e("s_cbranch_scc0 K1_TS_PG%d" % A.uid)
    srd(A, S_R, 6, SZQ)
    A.e("v_lshrrev_b32 v%d, 1, v%d" % (t2, t1))
    A.e("v_mul_u32_u24 v%d, 896, v%d" % (t2, t2))
    A.e("v_and_b32 v%d, 1, v%d" % (t3, t1))
    A.e("v_mul_u32_u24 v%d, 116, v%d" % (t3, t3))
    A.e("v_mul_u32_u24 v%d, 2688, v%d" % (t0, t0))
    A.e("v_add3_u32 v%d, v%d, v%d, v%d" % (V_DOFF, t0, t2, t3))
    A.e("v_cmp_gt_u32 vcc, 6, v%d" % t1)
    A.e("s_mul_i32 s%d, s%d, 112" % (S_SOFF, S_PI))
    A.e("s_mul_i32 s%d, s%d, %d" % (S_T0, S_E, 8 * 2688))
    A.e("s_add_u32 s%d, s%d, s%d" % (S_SOFF, S_SOFF, S_T0))
    A.e("s_mov_b32 s%d, %d" % (S_STR, 64 * 2688))
    A.e("s_branch K1_TS_END%d" % A.uid)
    A.label("K1_TS_PG%d" % A.uid)
    A.e("s_cmp_eq_u32 s%d, 1" % S_WAVE)
    sel_srd(A, S_R, 8, 10, SZG, SZG)
    A.e("v_mul_u32_u24 v%d, 3584, v%d" % (V_DOFF, t0))
    A.e("v_cmp_gt_u32 vcc, 1, v%d" % t1)
    A.e("s_lshl_b32 s%d, s%d, 7" % (S_SOFF, S_PI))
    A.e("s_mul_i32 s%d, s%d, %d" % (S_T0, S_E, 8 * 3584))
    A.e("s_add_u32 s%d, s%d, s%d" % (S_SOFF, S_SOFF, S_T0))
    A.e("s_mov_b32 s%d, %d" % (S_STR, 64 * 3584))
    A.e("s_branch K1_TS_END%d" % A.uid)
    A.label("K1_TS_F%d" % A.uid)
    A.e("s_cmp_eq_u32 s%d, 0" % S_WAVE)
    sel_srd(A, S_R, 8, 10, SZG, SZG)
    A.e("v_lshlrev_b32 v%d, 7, v%d" % (t2, t1))
    A.e("v_min_u32 v%d, 316, v%d" % (t2, t2))
    A.e("v_mul_u32_u24 v%d, 3584, v%d" % (t0, t0))
    A.e("v_add_u32 v%d, v%d, v%d" % (V_DOFF, t0, t2))
    A.e("s_cmp_lt_u32 s%d, 2" % S_WAVE)
    A.e("s_cselect_b32 s%d, 4, 0" % S_T0)
    A.e("v_cmp_gt_u32 vcc, s%d, v%d" % (S_T0, t1))
    A.e("s_mul_i32 s%d, s%d, 320" % (S_SOFF, S_PI))
    A.e("s_add_u32 s%d, s%d, 1024" % (S_SOFF, S_SOFF))
    A.e("s_mul_i32 s%d, s%d, %d" % (S_T0, S_E, 8 * 3584))
    A.e("s_add_u32 s%d, s%d, s%d" % (S_SOFF, S_SOFF, S_T0))
    A.e("s_mov_b32 s%d, %d" % (S_STR, 64 * 3584))
    A.e("s_branch K1_TS_END%d" % A.uid)
    A.label("K1_TS_X%d" % A.uid)
    srd(A, S_R, 4, 2048 * 896)
    A.e("v_mul_u32_u24 v%d, 896, v%d" % (V_DOFF, V_LANE))
    A.e("v_cmp_gt_u32 vcc, 32, v%d" % V_LANE)
    A.e("s_lshl_b32 s%d, s%d, 7" % (S_T0, S_RB))
    A.e("s_and_b32 s%d, s%d, 3" % (S_T1, S_IDX))
    A.e("s_lshl_b32 s%d, s%d, 5" % (S_T1, S_T1))
    A.e("s_add_u32 s%d, s%d, s%d" % (S_T0, S_T0, S_T1))
    A.e("s_mul_i32 s%d, s%d, 896" % (S_SOFF, S_T0))
    A.e("s_mov_b32 s%d, 128" % S_STR)
    A.label("K1_TS_END%d" % A.uid)
    A.e("s_nop 1")
    A.e("v_cndmask_b32 v%d, v%d, v%d, vcc" % (V_DOFF, V_T + 4, V_DOFF))
    A.uid += 1

def k1_prefetch2(A):
    T = V_T
    srd(A, S_GW, 96, 1792 * 896)
    if "pf2chip" in EXP:
        A.e("s_lshl_b32 s%d, s2, 2" % S_T0)
        A.e("s_add_u32 s%d, s%d, s%d" % (S_T0, S_T0, S_WAVE))
        A.e("s_mul_i32 s%d, s%d, %d" % (S_T1, S_T0, 13 * 128))
        A.e("v_lshlrev_b32 v%d, 7, v%d" % (T, V_LANE))
        A.e("v_mov_b32 v%d, 0x7ffffff0" % (T + 1))
        A.e("v_cmp_gt_u32 vcc, 13, v%d" % V_LANE)
        A.e("s_nop 1")
        A.e("v_cndmask_b32 v%d, v%d, v%d, vcc" % (T + 2, T + 1, T))
        A.vmem("buffer_load_dword v%d, v%d, s[%d:%d], s%d offen" % (V_DUMP, T + 2, S_GW, S_GW + 3, S_T1), "pf")
        srd(A, S_R + 4, 98, 448 * 896)
        A.e("s_mul_i32 s%d, s%d, %d" % (S_T1, S_T0, 4 * 128))
        A.e("v_cmp_gt_u32 vcc, 4, v%d" % V_LANE)
        A.e("s_nop 1")
        A.e("v_cndmask_b32 v%d, v%d, v%d, vcc" % (T + 2, T + 1, T))
        A.vmem("buffer_load_dword v%d, v%d, s[%d:%d], s%d offen" % (V_DUMP + 2, T + 2, S_R + 4, S_R + 7, S_T1), "pf")
        return
    A.e("s_lshl_b32 s%d, s%d, 2" % (S_T0, S_IDX))
    A.e("s_add_u32 s%d, s%d, s%d" % (S_T0, S_T0, S_WAVE))
    A.e("s_mul_i32 s%d, s%d, %d" % (S_T1, S_T0, 98 * 128))
    A.e("v_lshlrev_b32 v%d, 7, v%d" % (T, V_LANE))
    A.vmem("buffer_load_dword v%d, v%d, s[%d:%d], s%d offen" % (V_DUMP, T, S_GW, S_GW + 3, S_T1), "pf")
    A.e("v_mov_b32 v%d, 0x7ffffff0" % (T + 1))
    A.e("v_cmp_gt_u32 vcc, 34, v%d" % V_LANE)
    A.e("s_nop 1")
    A.e("v_cndmask_b32 v%d, v%d, v%d, vcc" % (T + 2, T + 1, T))
    A.e("s_add_u32 s%d, s%d, %d" % (S_T1, S_T1, 64 * 128))
    A.vmem("buffer_load_dword v%d, v%d, s[%d:%d], s%d offen" % (V_DUMP + 1, T + 2, S_GW, S_GW + 3, S_T1), "pf")
    srd(A, S_R + 4, 98, 448 * 896)
    A.e("s_mul_i32 s%d, s%d, %d" % (S_T1, S_T0, 25 * 128))
    A.e("v_cmp_gt_u32 vcc, 25, v%d" % V_LANE)
    A.e("s_nop 1")
    A.e("v_cndmask_b32 v%d, v%d, v%d, vcc" % (T + 2, T + 1, T))
    A.vmem("buffer_load_dword v%d, v%d, s[%d:%d], s%d offen" % (V_DUMP + 2, T + 2, S_R + 4, S_R + 7, S_T1), "pf")

def gen_k1_var(A, var):
    dma = var.startswith("FFN4")
    nt = 6 if var.endswith("6") else 4
    poff = 256 if var == "FFN4T2" else 512
    if var == "QKV6":
        A.e("s_and_b32 s%d, s%d, 2" % (S_T0, S_WAVE))
        for i in range(2):
            A.e("s_add_u32 s%d, s%d, %d" % (S_T1, S_T0, i))
            emit_raddr(A, V_WA + i, "T4", "s%d" % S_T1)
        for m in (1, 2):
            for i in range(2):
                A.e("v_add_u32 v%d, %d, v%d" % (V_WA + 2 * m + i, m * 4096, V_WA + i))
    elif var == "FFN6":
        A.e("s_lshr_b32 s%d, s%d, 1" % (S_T0, S_WAVE))
        A.e("s_mul_i32 s%d, s%d, 3" % (S_T0, S_T0))
        for p in range(3):
            A.e("s_add_u32 s%d, s%d, %d" % (S_T1, S_T0, p))
            A.e("s_and_b32 s%d, s%d, 3" % (S_T2, S_T1))
            emit_raddr(A, V_WA + 2 * p, "T4", "s%d" % S_T2)
            A.e("s_lshr_b32 s%d, s%d, 2" % (S_T1, S_T1))
            A.e("s_lshl_b32 s%d, s%d, 12" % (S_T1, S_T1))
            A.e("v_add_u32 v%d, s%d, v%d" % (V_WA + 2 * p, S_T1, V_WA + 2 * p))
            A.e("v_add_u32 v%d, 8192, v%d" % (V_WA + 2 * p + 1, V_WA + 2 * p))
    elif var == "FFN4":
        A.e("s_and_b32 s%d, s%d, 2" % (S_T0, S_WAVE))
        A.e("s_lshl_b32 s%d, s%d, 1" % (S_T1, S_TYP))
        A.e("s_or_b32 s%d, s%d, s%d" % (S_T0, S_T0, S_T1))
        A.e("s_cmp_eq_u32 s%d, 0" % S_TYP)
        A.e("s_cselect_b32 s%d, 3, 1" % S_T3)
        A.e("s_lshl_b32 s%d, s%d, 12" % (S_T3, S_T3))
        A.e("s_cmp_eq_u32 s%d, 0" % S_TYP)
        A.e("s_cselect_b32 s%d, 1, 2" % S_T2)
        A.e("s_lshl_b32 s%d, s%d, 12" % (S_T2, S_T2))
        A.e("s_mov_b32 s%d, s%d" % (S_STR + 3, S_T2))
        A.e("s_mov_b32 s%d, s%d" % (S_STR + 4, S_T3))
        for p in range(2):
            A.e("s_add_u32 s%d, s%d, %d" % (S_T1, S_T0, p))
            emit_raddr(A, V_WA + 2 * p, "T4", "s%d" % S_T1)
            A.e("v_add_u32 v%d, s%d, v%d" % (V_WA + 2 * p, S_STR + 4, V_WA + 2 * p))
            A.e("v_add_u32 v%d, s%d, v%d" % (V_WA + 2 * p + 1, S_STR + 3, V_WA + 2 * p))
    else:
        for p in range(2):
            emit_raddr(A, V_WA + 2 * p, "T2", p)
            A.e("v_add_u32 v%d, 16384, v%d" % (V_WA + 2 * p, V_WA + 2 * p))
            A.e("v_add_u32 v%d, 2048, v%d" % (V_WA + 2 * p + 1, V_WA + 2 * p))
    for i in range(nt):
        A.e("v_add_u32 v%d, %d, v%d" % (V_WA + 6 + i, WHI, V_WA + i))
    if not dma:
        k1_touch_setup(A)

    def issue_w(stage):
        slot = stage % 4
        for r in range(5):
            A.e("s_add_u32 m0, s%d, %d" % (S_STR + 1, slot * WSTG + r * 4096))
            A.e("s_nop 0")
            A.vmem("buffer_load_dwordx4 v%d, s[%d:%d], s%d offen lds" % (V_DOFF + r, S_R + 4 * r, S_R + 4 * r + 3, S_SOFF + r), ("st", stage))
            if r < 3:
                A.e("s_add_u32 s%d, s%d, s%d" % (S_SOFF + r, S_SOFF + r, S_STR))
            else:
                A.e("s_add_u32 s%d, s%d, %d" % (S_SOFF + r, S_SOFF + r, 32 * 3584))
    def issue_x(d):
        for i in range(4):
            A.e("s_add_u32 m0, s%d, %d" % (S_STR + 2, (d % 2) * XSLOT + i * 1024))
            A.e("s_add_u32 s%d, s%d, %d" % (S_T0, S_XO, i * 8 * 896 + d * 128))
            A.vmem("buffer_load_dwordx4 v%d, s[%d:%d], s%d offen lds" % (V_XD + (i & 1), S_X, S_X + 3, S_T0), ("x", d))
    def touch(d):
        A.e("s_mul_i32 s%d, s%d, %d" % (S_T0, S_STR, d))
        A.e("s_add_u32 s%d, s%d, s%d" % (S_T0, S_T0, S_SOFF))
        A.vmem("buffer_load_dword v%d, v%d, s[%d:%d], s%d offen" % (V_DUMP + 3, V_DOFF, S_R, S_R + 3, S_T0), "pf")
    def read_list(stage):
        slot = stage % 4
        st = stage & 1
        hi = 1 if slot >= 2 else 0
        base = (slot - 2 * hi) * WSTG
        out = []
        d = stage // 2
        for rt in range(4):
            out.append("ds_read_b128 v[%d:%d], v%d offset:%d" % (V_XF + st * 16 + rt * 4, V_XF + st * 16 + rt * 4 + 3, V_XA + (stage & 1), (d % 2) * XSLOT + rt * 2048))
        for ti in range(nt):
            dd = V_WF + st * 24 + ti * 4
            for p in range(2):
                out.append("ds_read_b64_tr_b16 v[%d:%d], v%d offset:%d" % (dd + 2 * p, dd + 2 * p + 1, V_WA + ti + 6 * hi, base + p * poff))
        return out

    A.nst = 0
    A.stamp()
    if STAMP:
        A.e("s_memrealtime s[94:95]")
    NK = 14
    if dma:
        issue_x(0); issue_w(0); issue_w(1); issue_x(1); issue_w(2)
    else:
        if "nopf" not in EXP and "latepf" not in EXP:
            for d in (1, 2, 3):
                touch(d)
    A.wait_vm("gate")
    T = V_T
    A.e("v_mov_b32 v%d, 0" % V_GATE)
    for d in range(4):
        unpack2(A, T, T + 1, 96 + d)
        unpack2(A, T + 2, T + 3, 100 + d)
        A.e("v_pk_mul_f32 v[%d:%d], v[%d:%d], v[%d:%d]" % (T, T + 1, T, T + 1, T + 2, T + 3))
        A.e("v_cvt_pk_bf16_f32 v%d, v%d, v%d" % (T + 4, T, T + 1))
        unpack2(A, T, T + 1, T + 4)
        A.e("v_add_f32 v%d, v%d, v%d" % (V_GATE, V_GATE, T))
        A.e("v_add_f32 v%d, v%d, v%d" % (V_GATE, V_GATE, T + 1))
    for mod in ("quad_perm:[1,0,3,2]", "quad_perm:[2,3,0,1]", "row_half_mirror", "row_mirror"):
        A.e("s_nop 1")
        A.e("v_add_f32_dpp v%d, v%d, v%d %s row_mask:0xf bank_mask:0xf" % (V_GATE, V_GATE, V_GATE, mod))
    A.e("s_nop 1")
    A.e("v_readlane_b32 s%d, v%d, 16" % (S_T0, V_GATE))
    A.e("v_readlane_b32 s%d, v%d, 32" % (S_T1, V_GATE))
    A.e("v_readlane_b32 s%d, v%d, 48" % (S_T2, V_GATE))
    A.e("s_nop 1")
    A.e("v_add_f32 v%d, s%d, v%d" % (V_GATE, S_T0, V_GATE))
    A.e("v_add_f32 v%d, s%d, v%d" % (V_GATE, S_T1, V_GATE))
    A.e("v_add_f32 v%d, s%d, v%d" % (V_GATE, S_T2, V_GATE))
    A.e("v_cvt_pk_bf16_f32 v%d, v%d, v%d" % (V_GATE, V_GATE, V_GATE))
    A.e("v_lshlrev_b32 v%d, 16, v%d" % (V_GATE, V_GATE))
    A.e("v_mul_f32 v%d, s%d, v%d" % (V_GATE, S_NL2E, V_GATE))
    A.e("v_exp_f32 v%d, v%d" % (V_GATE, V_GATE))
    A.e("s_nop 0")
    A.e("v_add_f32 v%d, 1.0, v%d" % (V_GATE, V_GATE))
    A.e("v_rcp_f32 v%d, v%d" % (V_GATE, V_GATE))
    A.e("s_nop 0")
    A.e("v_cvt_pk_bf16_f32 v%d, v%d, v%d" % (V_GATE, V_GATE, V_GATE))
    A.e("v_lshlrev_b32 v%d, 16, v%d" % (V_GATE, V_GATE))

    def wait_stage(stage, extra=""):
        if dma:
            tags = [("st", stage), ("x", stage // 2)]
            idx = None
            for i, t in enumerate(A.vm):
                if t in tags: idx = i
            if idx is None:
                if extra: A.e("s_waitcnt " + extra)
            else:
                n = len(A.vm) - 1 - idx
                A.e("s_waitcnt vmcnt(%d) %s" % (n, extra))
                A.vm = A.vm[idx + 1:]
        elif extra:
            A.e("s_waitcnt " + extra)

    wait_stage(0)
    A.stamp()
    A.e("s_barrier")
    if not dma and "latepf" in EXP:
        for d in (1, 2, 3):
            touch(d)
    for r in read_list(0):
        A.e(r)
    for s in range(NK):
        A.c("---- step %d ----" % s)
        if s in (1, 4, 8, 12):
            A.stamp()
        if s + 1 < NK:
            wait_stage(s + 1, "lgkmcnt(0)")
            A.e("s_barrier")
        else:
            A.e("s_waitcnt lgkmcnt(0)")
        if dma:
            if s + 3 < NK:
                issue_w(s + 3)
            if s % 2 == 1 and (s + 3) // 2 < 7:
                issue_x((s + 3) // 2)
        else:
            if s % 2 == 0 and s // 2 + 4 < 7 and "nopf" not in EXP:
                touch(s // 2 + 4)
            if s == PF2STEP and "nopf2" not in EXP:
                k1_prefetch2(A)
        reads = read_list(s + 1) if s + 1 < NK else []
        st = s & 1
        mf = []
        for ti in range(nt):
            for rt in range(4):
                acc = V_ACC + (ti * 4 + rt) * 4
                xf = V_XF + st * 16 + rt * 4
                wf = V_WF + st * 24 + ti * 4
                cin = "0" if s == 0 else "v[%d:%d]" % (acc, acc + 3)
                if var == "QKV6" and ti >= 2:
                    a, b = xf, wf
                else:
                    a, b = wf, xf
                mf.append("v_mfma_f32_16x16x32_bf16 v[%d:%d], v[%d:%d], v[%d:%d], %s" % (acc, acc + 3, a, a + 3, b, b + 3, cin))
        ri = 0
        for m in mf:
            A.e(m)
            if ri < len(reads):
                A.e(reads[ri]); ri += 1
        while ri < len(reads):
            A.e(reads[ri]); ri += 1

    A.c("---- epilogue ----")
    A.stamp()
    A.e("s_mov_b32 s%d, 0x%x" % (S_L2E2, LOG2E))
    A.e("s_mov_b32 s%d, 0x%x" % (S_L2E2 + 1, LOG2E))
    A.e("s_mov_b32 s%d, 0x%x" % (S_EPS2, EPS))
    A.e("s_mov_b32 s%d, 0x%x" % (S_EPS2 + 1, EPS))
    A.nop(6)
    A.e("v_mov_b32 v%d, 0x7ffffff0" % (V_T + 1))
    A.e("v_mov_b32 v%d, %d" % (V_T, WS_G))
    A.e("v_cmp_eq_u32 vcc, 0, v%d" % V_LANE)
    A.e("s_nop 1")
    A.e("v_cndmask_b32 v%d, v%d, v%d, vcc" % (V_T, V_T + 1, V_T))
    A.vmem("buffer_store_dword v%d, v%d, s[%d:%d], s%d offen" % (V_GATE, V_T, S_W, S_W + 3, S_GOFF), "out")
    VL16 = 9
    A.e("v_lshlrev_b32 v%d, 4, v%d" % (VL16, V_LANE))
    TMP = 32
    if var == "QKV6":
        S_HEAD = S_T3
        A.e("s_lshl_b32 s%d, s%d, 1" % (S_HEAD, S_PI))
        A.e("s_lshr_b32 s%d, s%d, 1" % (S_T0, S_WAVE))
        A.e("s_add_u32 s%d, s%d, s%d" % (S_HEAD, S_HEAD, S_T0))
        M48, M12, ONE12 = 2, 3, 4
        A.e("v_cmp_gt_u32 vcc, 48, v%d" % V_LANE)
        A.e("s_nop 1")
        A.e("v_cndmask_b32 v%d, 0, -1, vcc" % M48)
        A.e("v_and_b32 v%d, 15, v%d" % (V_T, V_LANE))
        A.e("v_cmp_gt_u32 vcc, 12, v%d" % V_T)
        A.e("s_nop 1")
        A.e("v_cndmask_b32 v%d, 0, -1, vcc" % M12)
        A.e("v_mov_b32 v%d, 0x3f803f80" % (V_T + 1))
        A.e("v_cmp_eq_u32 vcc, 12, v%d" % V_T)
        A.e("s_nop 1")
        A.e("v_cndmask_b32 v%d, 0, v%d, vcc" % (ONE12, V_T + 1))
        QF = 48
        for rt in range(4):
            for dt in range(2):
                acc = V_ACC + ((0 + dt) * 4 + rt) * 4
                emit_phi4(A, acc, QF + rt * 4 + dt * 2, TMP)
            A.e("v_and_b32 v%d, v%d, v%d" % (QF + rt * 4 + 2, QF + rt * 4 + 2, M48))
            A.e("v_and_b32 v%d, v%d, v%d" % (QF + rt * 4 + 3, QF + rt * 4 + 3, M48))
            A.e("s_add_u32 s%d, s%d, %d" % (S_T0, S_R0T, rt))
            A.e("s_lshl_b32 s%d, s%d, 4" % (S_T0, S_T0))
            A.e("s_add_u32 s%d, s%d, s%d" % (S_T0, S_T0, S_HEAD))
            A.e("s_lshl_b32 s%d, s%d, 10" % (S_T0, S_T0))
            A.e("s_add_u32 s%d, s%d, %d" % (S_T0, S_T0, WS_PQ))
            A.vmem("buffer_store_dwordx4 v[%d:%d], v%d, s[%d:%d], s%d offen %s" % (QF + rt * 4, QF + rt * 4 + 3, VL16, S_W, S_W + 3, S_T0, STF), "out")
        KP, VP = 64, 80
        for dt in range(2):
            for rt in range(4):
                acc = V_ACC + ((2 + dt) * 4 + rt) * 4
                d = KP + dt * 8 + rt * 2
                emit_phi4(A, acc, d, TMP)
                if dt == 1:
                    A.e("v_and_b32 v%d, v%d, v%d" % (d, d, M12))
                    A.e("v_and_b32 v%d, v%d, v%d" % (d + 1, d + 1, M12))
        for et in range(2):
            for rt in range(4):
                acc = V_ACC + ((4 + et) * 4 + rt) * 4
                d = VP + et * 8 + rt * 2
                for h in range(2):
                    A.e("v_cvt_pk_bf16_f32 v%d, v%d, v%d" % (d + h, acc + 2 * h, acc + 2 * h + 1))
                    if et == 1:
                        A.e("v_and_or_b32 v%d, v%d, v%d, v%d" % (d + h, d + h, M12, ONE12))
        A.nop(2)
        KV = 96
        for blk in range(2):
            for dt in range(2):
                for et in range(2):
                    acc = KV + (dt * 2 + et) * 4
                    a = KP + dt * 8 + blk * 4
                    b = VP + et * 8 + blk * 4
                    cin = "0" if blk == 0 else "v[%d:%d]" % (acc, acc + 3)
                    A.e("v_mfma_f32_16x16x32_bf16 v[%d:%d], v[%d:%d], v[%d:%d], %s" % (acc, acc + 3, a, a + 3, b, b + 3, cin))
        A.nop(10)
        A.e("s_lshl_b32 s%d, s%d, 5" % (S_T0, S_HEAD))
        A.e("s_lshl_b32 s%d, s%d, 1" % (S_T1, S_RB))
        A.e("s_add_u32 s%d, s%d, s%d" % (S_T0, S_T0, S_T1))
        A.e("s_add_u32 s%d, s%d, s%d" % (S_T0, S_T0, S_RH))
        A.e("s_lshl_b32 s%d, s%d, 12" % (S_T0, S_T0))
        A.e("s_add_u32 s%d, s%d, %d" % (S_T0, S_T0, WS_KVP))
        for t in range(4):
            A.vmem("buffer_store_dwordx4 v[%d:%d], v%d, s[%d:%d], s%d offen offset:%d %s" % (KV + t * 4, KV + t * 4 + 3, VL16, S_W, S_W + 3, S_T0, t * 1024, STF), "out")
    else:
        npair = nt // 2
        S_FT = S_T3
        if var == "FFN6":
            A.e("s_lshr_b32 s%d, s%d, 1" % (S_T0, S_WAVE))
            A.e("s_mul_i32 s%d, s%d, 3" % (S_T0, S_T0))
            A.e("s_mul_i32 s%d, s%d, 10" % (S_FT, S_PI))
            A.e("s_add_u32 s%d, s%d, s%d" % (S_FT, S_FT, S_T0))
            A.e("s_add_u32 s%d, s%d, 32" % (S_FT, S_FT))
        elif var == "FFN4":
            A.e("s_lshl_b32 s%d, s%d, 2" % (S_T0, S_PI))
            A.e("s_and_b32 s%d, s%d, 2" % (S_T1, S_WAVE))
            A.e("s_add_u32 s%d, s%d, s%d" % (S_T0, S_T0, S_T1))
            A.e("s_mul_i32 s%d, s%d, 10" % (S_T1, S_PI))
            A.e("s_add_u32 s%d, s%d, 38" % (S_T1, S_T1))
            A.e("s_cmp_eq_u32 s%d, 0" % S_TYP)
            A.e("s_cselect_b32 s%d, s%d, s%d" % (S_FT, S_T0, S_T1))
        else:
            A.e("s_mul_i32 s%d, s%d, 10" % (S_FT, S_PI))
            A.e("s_add_u32 s%d, s%d, 40" % (S_FT, S_FT))
        HP = 48
        k = 0
        for p in range(npair):
            A.e("s_add_u32 s%d, s%d, %d" % (S_T1, S_FT, p))
            A.e("s_and_b32 s%d, s%d, 1" % (S_T2, S_T1))
            A.e("s_lshl_b32 s%d, s%d, 3" % (S_T2, S_T2))
            A.e("s_lshr_b32 s%d, s%d, 1" % (S_T1, S_T1))
            A.e("s_lshl_b32 s%d, s%d, 10" % (S_T1, S_T1))
            A.e("s_add_u32 s%d, s%d, s%d" % (S_T1, S_T1, S_T2))
            for rt in range(4):
                g = V_ACC + ((2 * p) * 4 + rt) * 4
                u = V_ACC + ((2 * p + 1) * 4 + rt) * 4
                d = HP + (k % 8) * 2
                emit_swiglu4(A, g, u, d, TMP + (k % 2) * 4)
                k += 1
                A.e("s_add_u32 s%d, s%d, %d" % (S_T0, S_R0T, rt))
                A.e("s_mul_i32 s%d, s%d, %d" % (S_T0, S_T0, 56 * 1024))
                A.e("s_add_u32 s%d, s%d, s%d" % (S_T0, S_T0, S_T1))
                A.vmem("buffer_store_dwordx2 v[%d:%d], v%d, s[%d:%d], s%d offen %s" % (d, d + 1, VL16, S_W, S_W + 3, S_T0, STF), "out")
    A.stamp()
    A.stamp(True)
    A.stamp_flush(S_W, S_WAVE, 8, WS_STAMP)

K2_SW2, K2_SWO, K2_SWS, K2_SOUT, K2_SDBG = 16, 20, 24, 28, 32
K2_MT, K2_NT, K2_WAVE = 44, 45, 46
K2_LB = 47
K2_HB = 52
K2_PB = 53
K2_W2B = 54
K2_WOB = 55
K2_KVB = 56
RING = 8
DEPTH = 4
W_LANE = 1
W_DOFF = 2
W_L16 = 3
W_RA = 4
W_FLAG = 8
W_ZOFF = 9
W_G = 10
W_T = 12
W_BF = 32
NBUF = DEPTH + 1
W_AF = 112
W_KV = 144
W_O = 192
K2_NV = 232

def gen_k2(A):
    A.vm = []
    A.label("k2_kernel")
    A.e("s_cmp_ge_u32 s2, 240")
    A.e("s_cbranch_scc1 K2_END")
    A.e("s_load_dwordx2 s[4:5], s[0:1], 16")
    A.e("s_load_dwordx2 s[6:7], s[0:1], 48")
    A.e("s_load_dwordx4 s[8:11], s[0:1], 64")
    A.e("s_load_dwordx2 s[12:13], s[0:1], 80")
    if "nocw" not in EXP:
        A.e("s_getpc_b64 s[100:101]")
        A.label("K2_PC")
        A.e("s_sub_u32 s100, s100, K2_PC-k2_kernel")
        A.e("s_subb_u32 s101, s101, 0")
        A.e("v_lshlrev_b32 v%d, 7, v0" % W_T)
        A.e("v_min_u32 v%d, K2_END-k2_kernel, v%d" % (W_T, W_T))
        A.vmem("global_load_dword v11, v%d, s[100:101]" % (W_T), "cw")
    A.e("v_and_b32 v%d, 63, v0" % W_LANE)
    A.e("v_lshrrev_b32 v%d, 6, v0" % W_T)
    A.e("s_nop 0")
    A.e("v_readfirstlane_b32 s%d, v%d" % (K2_WAVE, W_T))
    A.e("v_lshlrev_b32 v%d, 4, v%d" % (W_L16, W_LANE))
    k1_consts(A)
    A.e("s_waitcnt lgkmcnt(0)")
    srd(A, K2_SW2, 6, 1792 * 896)
    srd(A, K2_SWO, 4, 448 * 896)
    srd(A, K2_SWS, 12, WS_SIZE)
    srd(A, K2_SOUT, 8, 2048 * 896)
    srd(A, K2_SDBG, 10, 256)
    A.e("s_cmp_lt_u32 s2, 16")
    A.e("s_cbranch_scc1 K2_RED")
    A.e("s_sub_u32 s48, s2, 16")
    A.e("s_and_b32 s49, s48, 7")
    A.e("s_lshl_b32 s49, s49, 2")
    A.e("s_lshr_b32 s50, s48, 3")
    A.e("s_and_b32 s51, s50, 3")
    A.e("s_add_u32 s%d, s49, s51" % K2_MT)
    A.e("s_lshr_b32 s%d, s50, 2" % K2_NT)
    A.e("s_lshl_b32 s%d, s%d, 15" % (K2_LB, K2_WAVE))
    A.e("s_mul_i32 s48, s%d, %d" % (K2_MT, 4 * 56 * 1024))
    A.e("s_mul_i32 s49, s%d, %d" % (K2_WAVE, 14 * 1024))
    A.e("s_add_u32 s%d, s48, s49" % K2_HB)
    A.e("s_lshl_b32 s48, s%d, 16" % K2_MT)
    A.e("s_lshl_b32 s49, s%d, 12" % K2_WAVE)
    A.e("s_add_u32 s48, s48, s49")
    A.e("s_add_u32 s%d, s48, %d" % (K2_PB, WS_PQ))
    A.e("s_mul_i32 s48, s%d, %d" % (K2_WAVE, 448 * 896))
    A.e("s_lshl_b32 s49, s%d, 7" % K2_NT)
    A.e("s_add_u32 s%d, s48, s49" % K2_W2B)
    A.e("s_mul_i32 s48, s%d, %d" % (K2_WAVE, 112 * 896))
    A.e("s_add_u32 s%d, s48, s49" % K2_WOB)
    A.e("s_lshl_b32 s48, s%d, 13" % K2_WAVE)
    A.e("s_add_u32 s%d, s48, %d" % (K2_KVB, WS_KVF))
    t0, t1, t2 = W_T, W_T + 1, W_T + 2
    A.e("v_lshrrev_b32 v%d, 3, v%d" % (t0, W_LANE))
    A.e("v_lshrrev_b32 v%d, 4, v%d" % (t1, W_LANE))
    A.e("v_lshrrev_b32 v%d, 1, v%d" % (t2, W_LANE))
    A.e("v_xor_b32 v%d, v%d, v%d" % (t1, t1, t2))
    A.e("v_and_b32 v%d, 3, v%d" % (t1, t1))
    A.e("v_lshlrev_b32 v%d, 5, v%d" % (t1, t1))
    A.e("v_mul_u32_u24 v%d, 896, v%d" % (t0, t0))
    A.e("v_and_b32 v%d, 1, v%d" % (t2, W_LANE))
    A.e("v_lshlrev_b32 v%d, 4, v%d" % (t2, t2))
    A.e("v_add3_u32 v%d, v%d, v%d, v%d" % (W_DOFF, t0, t1, t2))
    global V_T, V_LANE
    sv = (V_T, V_LANE)
    V_T, V_LANE = W_T, W_LANE
    for t in range(4):
        emit_raddr(A, W_RA + t, "T4K2", t)
        A.e("v_add_u32 v%d, s%d, v%d" % (W_RA + t, K2_LB, W_RA + t))
    V_T, V_LANE = sv
    A.e("v_lshrrev_b32 v%d, 4, v%d" % (t0, W_LANE))
    A.e("v_lshlrev_b32 v%d, 8, v%d" % (t0, t0))
    A.e("v_add_u32 v%d, %d, v%d" % (W_ZOFF, 1024 + 12 * 16, t0))

    NS = 18
    def issue(step):
        slot = step % RING
        buf = step % NBUF
        if step < 14:
            srdw = K2_SW2; base = K2_W2B; rowoff = step * 32 * 896
        else:
            srdw = K2_SWO; base = K2_WOB; rowoff = (step - 14) * 28 * 896
        for o in range(4):
            A.e("s_add_u32 m0, s%d, %d" % (K2_LB, slot * 4096 + o * 1024))
            A.e("s_add_u32 s48, s%d, %d" % (base, rowoff + o * 8 * 896))
            A.vmem("buffer_load_dwordx4 v%d, s[%d:%d], s48 offen lds" % (W_DOFF, srdw, srdw + 3), ("st", step))
        for rt in range(4):
            d = W_BF + buf * 16 + rt * 4
            if step < 14:
                A.e("s_add_u32 s48, s%d, %d" % (K2_HB, rt * 56 * 1024 + step * 1024))
            else:
                A.e("s_add_u32 s48, s%d, %d" % (K2_PB, rt * 16 * 1024 + (step - 14) * 1024))
            A.vmem("buffer_load_dwordx4 v[%d:%d], v%d, s[%d:%d], s48 offen" % (d, d + 3, W_L16, K2_SWS, K2_SWS + 3), ("st", step))
    def reads(step):
        slot = step % RING
        st = step & 1
        out = []
        for t in range(4):
            d = W_AF + st * 16 + t * 4
            for p in range(2):
                out.append("ds_read_b64_tr_b16 v[%d:%d], v%d offset:%d" % (d + 2 * p, d + 2 * p + 1, W_RA + t, slot * 4096 + p * 2048))
        return out

    A.nst = 0
    A.stamp()
    A.e("s_memrealtime s[94:95]")
    for s in range(DEPTH):
        issue(s)
    A.wait_vm(("st", 0))
    A.stamp()
    for r in reads(0):
        A.e(r)
    for s in range(NS):
        A.c("---- k2 step %d ----" % s)
        if s in (4, 8, 11, 14):
            A.stamp()
        if s + DEPTH < NS:
            issue(s + DEPTH)
        if s == 6:
            A.e("v_mov_b32 v%d, 0" % W_T)
            A.vmem("buffer_load_dword v%d, v%d, s[%d:%d], 0 offen sc1" % (W_FLAG, W_T, K2_SDBG, K2_SDBG + 3), "flag")
            A.e("v_and_b32 v%d, 15, v%d" % (W_T + 1, W_LANE))
            A.e("v_lshlrev_b32 v%d, 2, v%d" % (W_T + 1, W_T + 1))
            A.e("s_lshl_b32 s48, s%d, 8" % K2_MT)
            A.e("s_lshl_b32 s49, s%d, 6" % K2_WAVE)
            A.e("s_add_u32 s48, s48, s49")
            A.e("s_add_u32 s48, s48, %d" % WS_G)
            A.vmem("buffer_load_dword v%d, v%d, s[%d:%d], s48 offen" % (W_G, W_T + 1, K2_SWS, K2_SWS + 3), "gate")
        if s == 11:
            A.wait_vm("gate")
            A.e("v_readfirstlane_b32 s48, v%d" % W_FLAG)
            A.e("s_cmp_ge_u32 s48, 16")
            A.e("s_cbranch_scc1 K2_FLAG_OK")
            A.label("K2_SPIN")
            A.e("s_sleep 8")
            A.e("v_mov_b32 v%d, 0" % W_T)
            A.e("buffer_load_dword v%d, v%d, s[%d:%d], 0 offen sc1" % (W_FLAG, W_T, K2_SDBG, K2_SDBG + 3))
            A.e("s_waitcnt vmcnt(0)")
            A.e("v_readfirstlane_b32 s48, v%d" % W_FLAG)
            A.e("s_cmp_lt_u32 s48, 16")
            A.e("s_cbranch_scc1 K2_SPIN")
            A.label("K2_FLAG_OK")
            for h in range(4):
                d = W_KV + h * 12
                A.e("s_add_u32 s48, s%d, %d" % (K2_KVB, h * 2048))
                A.vmem("buffer_load_dwordx4 v[%d:%d], v%d, s[%d:%d], s48 offen sc1" % (d, d + 3, W_L16, K2_SWS, K2_SWS + 3), "kv")
                A.vmem("buffer_load_dwordx4 v[%d:%d], v%d, s[%d:%d], s48 offen offset:1024 sc1" % (d + 4, d + 7, W_L16, K2_SWS, K2_SWS + 3), "kv")
                A.vmem("buffer_load_dwordx4 v[%d:%d], v%d, s[%d:%d], s48 offen sc1" % (d + 8, d + 11, W_ZOFF, K2_SWS, K2_SWS + 3), "kv")
        rd = []
        if s + 1 < NS:
            A.wait_vm(("st", s + 1), "lgkmcnt(0)")
            rd = reads(s + 1)
        else:
            A.e("s_waitcnt lgkmcnt(0)")
        st = s & 1
        buf = s % NBUF
        if s < 14:
            mf = []
            for t in range(4):
                for rt in range(4):
                    acc = (t * 4 + rt) * 4
                    a = W_AF + st * 16 + t * 4
                    b = W_BF + buf * 16 + rt * 4
                    cin = "0" if s == 0 else "a[%d:%d]" % (acc, acc + 3)
                    mf.append("v_mfma_f32_16x16x32_bf16 a[%d:%d], v[%d:%d], v[%d:%d], %s" % (acc, acc + 3, a, a + 3, b, b + 3, cin))
            ri = 0
            for m in mf:
                A.e(m)
                if ri < len(rd):
                    A.e(rd[ri]); ri += 1
        else:
            for r in rd:
                A.e(r)
            h = s - 14
            if h == 0:
                A.wait_vm("kv")
                A.e("v_cmp_gt_u32 vcc, 48, v%d" % W_LANE)
                A.e("s_nop 1")
                A.e("v_cndmask_b32 v%d, 0, -1, vcc" % (W_FLAG))
            kv = W_KV + h * 12
            for rt in range(4):
                b = W_BF + buf * 16 + rt * 4
                N0 = W_O; N1 = W_O + 4; DN = W_O + 8; OF = W_O + 12 + (rt & 1) * 4; T = W_O + 20
                A.e("v_mfma_f32_16x16x32_bf16 v[%d:%d], v[%d:%d], v[%d:%d], 0" % (N0, N0 + 3, kv, kv + 3, b, b + 3))
                A.e("v_mfma_f32_16x16x32_bf16 v[%d:%d], v[%d:%d], v[%d:%d], 0" % (N1, N1 + 3, kv + 4, kv + 7, b, b + 3))
                A.e("v_mfma_f32_16x16x32_bf16 v[%d:%d], v[%d:%d], v[%d:%d], 0" % (DN, DN + 3, kv + 8, kv + 11, b, b + 3))
                A.nop(9)
                A.e("v_cvt_pk_bf16_f32 v%d, v%d, v%d" % (T, DN, DN))
                A.e("v_lshlrev_b32 v%d, 16, v%d" % (T, T))
                A.e("v_add_f32 v%d, s%d, v%d" % (T, S_EPS, T))
                A.e("v_cvt_pk_bf16_f32 v%d, v%d, v%d" % (T, T, T))
                A.e("v_lshlrev_b32 v%d, 16, v%d" % (T, T))
                A.e("v_rcp_f32 v%d, v%d" % (T, T))
                for i in range(4):
                    A.e("v_cvt_pk_bf16_f32 v%d, v%d, v%d" % (OF + i, N0 + 2 * i, N0 + 2 * i + 1))
                A.e("v_mov_b32 v%d, v%d" % (T + 1, T))
                for i in range(4):
                    unpack2(A, T + 2, T + 3, OF + i)
                    A.e("v_pk_mul_f32 v[%d:%d], v[%d:%d], v[%d:%d]" % (T + 2, T + 3, T + 2, T + 3, T, T + 1))
                    A.e("v_cvt_pk_bf16_f32 v%d, v%d, v%d" % (OF + i, T + 2, T + 3))
                A.e("v_and_b32 v%d, v%d, v%d" % (OF + 2, OF + 2, W_FLAG))
                A.e("v_and_b32 v%d, v%d, v%d" % (OF + 3, OF + 3, W_FLAG))
                A.nop(2)
                for t in range(4):
                    acc = 64 + (t * 4 + rt) * 4
                    a = W_AF + st * 16 + t * 4
                    cin = "0" if h == 0 else "a[%d:%d]" % (acc, acc + 3)
                    A.e("v_mfma_f32_16x16x32_bf16 a[%d:%d], v[%d:%d], v[%d:%d], %s" % (acc, acc + 3, a, a + 3, OF, OF + 3, cin))
    A.c("---- k2 epilogue ----")
    A.stamp()
    A.nop(10)
    A.e("s_barrier")
    A.e("s_lshl_b32 s48, s%d, 13" % K2_WAVE)
    A.e("v_add_u32 v%d, s48, v%d" % (W_T, W_L16))
    for rt in range(4):
        A.e("s_cmp_eq_u32 s%d, %d" % (K2_WAVE, rt))
        A.e("s_cbranch_scc1 K2_SKIPW%d" % rt)
        A.e("v_add_u32 v%d, %d, v%d" % (W_T + 1, rt * 32768, W_T))
        for part in range(2):
            for t in range(4):
                acc = part * 64 + (t * 4 + rt) * 4
                A.e("ds_write_b128 v%d, a[%d:%d] offset:%d" % (W_T + 1, acc, acc + 3, part * 4096 + t * 1024))
        A.label("K2_SKIPW%d" % rt)
    A.e("s_waitcnt lgkmcnt(0)")
    A.e("s_barrier")
    for rt in range(4):
        A.e("s_cmp_lg_u32 s%d, %d" % (K2_WAVE, rt))
        A.e("s_cbranch_scc1 K2_SKIPM%d" % rt)
        for part in range(2):
            for t in range(4):
                acc = part * 64 + (t * 4 + rt) * 4
                for i in range(4):
                    A.e("v_accvgpr_read_b32 v%d, a%d" % (32 + (part * 4 + t) * 4 + i, acc + i))
        A.label("K2_SKIPM%d" % rt)
    A.e("s_lshl_b32 s48, s%d, 15" % K2_WAVE)
    A.e("v_add_u32 v%d, s48, v%d" % (W_T, W_L16))
    for src in range(4):
        A.e("s_cmp_eq_u32 s%d, %d" % (K2_WAVE, src))
        A.e("s_cbranch_scc1 K2_SKIPR%d" % src)
        for q in range(8):
            A.e("ds_read_b128 v[%d:%d], v%d offset:%d" % (64 + q * 4, 64 + q * 4 + 3, W_T, src * 8192 + q * 1024))
        A.e("s_waitcnt lgkmcnt(0)")
        for q in range(16):
            A.e("v_pk_add_f32 v[%d:%d], v[%d:%d], v[%d:%d]" % (32 + 2 * q, 33 + 2 * q, 32 + 2 * q, 33 + 2 * q, 64 + 2 * q, 65 + 2 * q))
        A.label("K2_SKIPR%d" % src)
    A.e("v_sub_f32 v%d, 1.0, v%d" % (W_T + 2, W_G))
    A.e("v_cvt_pk_bf16_f32 v%d, v%d, v%d" % (W_T + 2, W_T + 2, W_T + 2))
    A.e("v_lshlrev_b32 v%d, 16, v%d" % (W_T + 2, W_T + 2))
    A.e("v_mov_b32 v%d, v%d" % (W_T + 3, W_T + 2))
    A.e("v_mov_b32 v%d, v%d" % (W_T + 4, W_G))
    A.e("v_mov_b32 v%d, v%d" % (W_T + 5, W_G))
    A.e("v_and_b32 v%d, 15, v%d" % (W_T + 6, W_LANE))
    A.e("v_mul_u32_u24 v%d, 896, v%d" % (W_T + 6, W_T + 6))
    A.e("v_lshrrev_b32 v%d, 4, v%d" % (W_T + 7, W_LANE))
    A.e("v_lshl_add_u32 v%d, v%d, 3, v%d" % (W_T + 6, W_T + 7, W_T + 6))
    A.e("s_lshl_b32 s48, s%d, 6" % K2_MT)
    A.e("s_lshl_b32 s49, s%d, 4" % K2_WAVE)
    A.e("s_add_u32 s48, s48, s49")
    A.e("s_mul_i32 s48, s48, 896")
    A.e("s_lshl_b32 s49, s%d, 7" % K2_NT)
    A.e("s_add_u32 s48, s48, s49")
    X = 64
    for t in range(4):
        for h in range(2):
            bq = 32 + t * 4 + 2 * h
            aq = 48 + t * 4 + 2 * h
            A.e("v_cvt_pk_bf16_f32 v%d, v%d, v%d" % (X, bq, bq + 1))
            A.e("v_cvt_pk_bf16_f32 v%d, v%d, v%d" % (X + 1, aq, aq + 1))
            unpack2(A, X + 2, X + 3, X)
            unpack2(A, X + 4, X + 5, X + 1)
            A.e("v_pk_mul_f32 v[%d:%d], v[%d:%d], v[%d:%d]" % (X + 2, X + 3, X + 2, X + 3, W_T + 2, W_T + 3))
            A.e("v_pk_mul_f32 v[%d:%d], v[%d:%d], v[%d:%d]" % (X + 4, X + 5, X + 4, X + 5, W_T + 4, W_T + 5))
            A.e("v_cvt_pk_bf16_f32 v%d, v%d, v%d" % (X, X + 2, X + 3))
            A.e("v_cvt_pk_bf16_f32 v%d, v%d, v%d" % (X + 1, X + 4, X + 5))
            unpack2(A, X + 2, X + 3, X)
            unpack2(A, X + 4, X + 5, X + 1)
            A.e("v_pk_add_f32 v[%d:%d], v[%d:%d], v[%d:%d]" % (X + 2, X + 3, X + 2, X + 3, X + 4, X + 5))
            A.e("v_cvt_pk_bf16_f32 v%d, v%d, v%d" % (X + 8 + t * 2 + h, X + 2, X + 3))
        A.e("buffer_store_dwordx2 v[%d:%d], v%d, s[%d:%d], s48 offen offset:%d" % (X + 8 + t * 2, X + 9 + t * 2, W_T + 6, K2_SOUT, K2_SOUT + 3, t * 32))
    A.stamp()
    A.stamp(True)
    A.stamp_flush(K2_SWS, K2_WAVE, 4, WS_STAMP + 0x40000)
    A.e("s_branch K2_END")

    A.label("K2_RED")
    A.vm = []
    A.e("s_lshl_b32 s48, s2, 17")
    A.e("s_lshl_b32 s49, s%d, 10" % K2_WAVE)
    A.e("s_add_u32 s48, s48, s49")
    A.e("s_add_u32 s48, s48, %d" % WS_KVP)
    for p in range(32):
        A.e("s_add_u32 s49, s48, %d" % (p * 4096))
        A.vmem("buffer_load_dwordx4 v[%d:%d], v%d, s[%d:%d], s49 offen" % (32 + p * 4, 35 + p * 4, W_L16, K2_SWS, K2_SWS + 3), ("p", p))
    A.wait_vm(("p", 1))
    A.e("v_pk_add_f32 v[32:33], v[32:33], v[36:37]")
    A.e("v_pk_add_f32 v[34:35], v[34:35], v[38:39]")
    for p in range(2, 32):
        A.wait_vm(("p", p))
        A.e("v_pk_add_f32 v[32:33], v[32:33], v[%d:%d]" % (32 + p * 4, 33 + p * 4))
        A.e("v_pk_add_f32 v[34:35], v[34:35], v[%d:%d]" % (34 + p * 4, 35 + p * 4))
    A.e("v_cvt_pk_bf16_f32 v20, v32, v33")
    A.e("v_cvt_pk_bf16_f32 v21, v34, v35")
    A.e("s_lshl_b32 s48, s2, 11")
    A.e("s_and_b32 s49, s%d, 1" % K2_WAVE)
    A.e("s_lshl_b32 s49, s49, 10")
    A.e("s_add_u32 s48, s48, s49")
    A.e("s_lshr_b32 s49, s%d, 1" % K2_WAVE)
    A.e("s_lshl_b32 s49, s49, 3")
    A.e("s_add_u32 s48, s48, s49")
    A.e("s_add_u32 s48, s48, %d" % WS_KVF)
    A.e("buffer_store_dwordx2 v[20:21], v%d, s[%d:%d], s48 offen sc1" % (W_L16, K2_SWS, K2_SWS + 3))
    A.e("s_waitcnt vmcnt(0)")
    A.e("s_barrier")
    A.e("s_cmp_lg_u32 s%d, 0" % K2_WAVE)
    A.e("s_cbranch_scc1 K2_END")
    A.e("v_mov_b32 v22, 0x7ffffff0")
    A.e("v_cmp_eq_u32 vcc, 0, v%d" % W_LANE)
    A.e("s_nop 1")
    A.e("v_cndmask_b32 v22, v22, 0, vcc")
    A.e("v_mov_b32 v23, 1")
    A.e("buffer_atomic_add v23, v22, s[%d:%d], 0 offen sc1" % (K2_SDBG, K2_SDBG + 3))
    A.e("s_waitcnt vmcnt(0)")
    A.label("K2_END")
    A.e("s_endpgm")

def main():
    out = []
    hdr = open("cdna_kernels/%s.s.ref" % NAME).read().splitlines()
    for l in hdr:
        if l.startswith(";") and "@launch" not in l:
            out.append(l)
        elif not l.startswith(";"):
            break
    out.append("; @launch kernel=k1_kernel grid=(256,1,1) block=(512,1,1) lds=%d" % K1_LDS)
    out.append("; @launch kernel=k2_kernel grid=(240,1,1) block=(256,1,1) lds=131072")
    out.append('.amdgcn_target "amdgcn-amd-amdhsa--gfx950"')
    out.append(".text")
    A = Asm()
    A.lines.append(".globl k1_kernel\n.p2align 8\n.type k1_kernel,@function")
    gen_k1(A)
    A.lines.append(".globl k2_kernel\n.p2align 8\n.type k2_kernel,@function")
    gen_k2(A)
    out += A.lines
    out.append('.section .rodata,"a"')
    for nm, nv, acc in (("k1_kernel", 212, 212), ("k2_kernel", K2_NV + 128, K2_NV)):
        out.append(".p2align 6")
        out.append(".amdhsa_kernel %s" % nm)
        out.append("  .amdhsa_next_free_vgpr %d" % nv)
        out.append("  .amdhsa_next_free_sgpr 102")
        out.append("  .amdhsa_accum_offset %d" % acc)
        out.append("  .amdhsa_group_segment_fixed_size 0")
        out.append("  .amdhsa_kernarg_size 88")
        out.append("  .amdhsa_user_sgpr_count 2")
        out.append("  .amdhsa_user_sgpr_kernarg_segment_ptr 1")
        out.append("  .amdhsa_system_sgpr_workgroup_id_x 1")
        out.append(".end_amdhsa_kernel")
    dst = sys.argv[1] if len(sys.argv) > 1 else "cdna_kernels/%s.s" % NAME
    open(dst, "w").write("\n".join(out) + "\n")

main()
```

```python
import sys

NAME = "gated_mix__linear_attn_block__glu_gated_swiglu__prompt"

WS_H    = 0x000000
WS_PQ   = 0x700000
WS_KVP  = 0x900000
WS_KVF  = 0xB00000
WS_G    = 0xB10000
WS_SIZE = 0xB20000

import os
STAMP = os.environ.get("STAMP") == "1"
EXP = os.environ.get("EXP", "pf2chip_nopf_pf0")
DMAFLAGS = os.environ.get("DMAFLAGS", "")
STF = os.environ.get("STF", "")
KNAME = "k1_kernel"
PF2STEP = int(os.environ.get("PF2STEP", "12"))
POLLSLEEP = int(os.environ.get("POLLSLEEP", "16"))
WS_STAMP = 0xC00000
if STAMP:
    WS_SIZE = 0xD00000
class Asm:
    def __init__(self):
        self.lines = []
        self.vm = []
        self.nst = 0
        self.uid = 0
    def stamp(self, real=False):
        if not STAMP: return
        self.e("%s s[%d:%d]" % ("s_memrealtime" if real else "s_memtime", 76 + 2 * self.nst, 77 + 2 * self.nst))
        self.nst += 1
        assert self.nst <= 10
    def stamp_flush(self, srdw, s_wave, nwave, base):
        if not STAMP: return
        self.e("s_waitcnt lgkmcnt(0)")
        self.e("s_mul_i32 s48, s2, %d" % nwave)
        self.e("s_add_u32 s48, s48, s%d" % s_wave)
        self.e("s_lshl_b32 s48, s48, 6")
        self.e("s_add_u32 s48, s48, %d" % base)
        self.e("v_mov_b32 v20, 0")
        self.e("v_mov_b32 v21, s100")
        self.e("buffer_store_dword v21, v20, s[%d:%d], s48 offen offset:60" % (srdw, srdw + 3))
        for i in range(self.nst):
            self.e("v_mov_b32 v21, s%d" % (76 + 2 * i))
            self.e("buffer_store_dword v21, v20, s[%d:%d], s48 offen offset:%d" % (srdw, srdw + 3, 4 * i))
        self.nst = 0
    def e(self, s):
        self.lines.append("    " + s)
    def c(self, s):
        self.lines.append("    ; " + s)
    def label(self, l):
        self.lines.append(l + ":")
    def vmem(self, s, tag):
        self.e(s)
        self.vm.append(tag)
    def wait_vm(self, tag, extra=""):
        idx = None
        for i, t in enumerate(self.vm):
            if t == tag:
                idx = i
        if idx is None:
            if extra:
                self.e("s_waitcnt " + extra)
            return
        n = len(self.vm) - 1 - idx
        assert n <= 63, n
        self.e("s_waitcnt vmcnt(%d) %s" % (n, extra))
        self.vm = self.vm[idx + 1:]
    def wait_vm_all(self, extra=""):
        self.e("s_waitcnt vmcnt(0) %s" % extra)
        self.vm = []
    def nop(self, n):
        while n > 0:
            k = min(n, 16)
            self.e("s_nop %d" % (k - 1))
            n -= k

def vr(b, n=1):
    return "v%d" % b if n == 1 else "v[%d:%d]" % (b, b + n - 1)
def ar(b, n=1):
    return "a%d" % b if n == 1 else "a[%d:%d]" % (b, b + n - 1)
def sr(b, n=1):
    return "s%d" % b if n == 1 else "s[%d:%d]" % (b, b + n - 1)

def srd(A, d, base, size):
    A.e("s_mov_b32 s%d, s%d" % (d, base))
    A.e("s_and_b32 s%d, s%d, 0xffff" % (d + 1, base + 1))
    A.e("s_mov_b32 s%d, 0x%x" % (d + 2, size))
    A.e("s_mov_b32 s%d, 0x00020000" % (d + 3))

LOG2E = 0x3fb8aa3b
NLOG2E = 0xbfb8aa3b
EPS = 0x358637bd

WSTG = 20480
XBASE = 4 * WSTG
XSLOT = 16384
K1_LDS = XBASE + 2 * XSLOT
WHI = 2 * WSTG

S_X, S_W, S_GW = 16, 20, 24
S_R = 28
S_CG, S_RB, S_WAVE, S_RH = 48, 49, 50, 51
S_T0, S_T1, S_T2, S_T3 = 52, 53, 54, 55
S_PI, S_TYP = 56, 57
S_R0T = 58
S_GOFF = 59
S_MSK = 60
S_NL2E = 62
S_ONE = 64
S_L2E = 66
S_EPS = 67
S_SOFF = 68
S_STR = 4
S_XO = 73
S_E = 74
S_IDX = 75

V_LANE = 1
V_DOFF = 2
V_XD = 7
V_XA = 9
V_GATE = 11
V_WA = 12
V_T = 24
V_XF = 32
V_WF = 64
V_ACC = 112
V_DUMP = 208

def k1_consts(A):
    A.e("s_mov_b32 s%d, 0xffff0000" % S_MSK)
    A.e("s_mov_b32 s%d, 0x%x" % (S_NL2E, NLOG2E))
    A.e("s_mov_b32 s%d, 0x%x" % (S_NL2E + 1, NLOG2E))
    A.e("s_mov_b32 s%d, 1.0" % S_ONE)
    A.e("s_mov_b32 s%d, 1.0" % (S_ONE + 1))
    A.e("s_mov_b32 s%d, 0x%x" % (S_L2E, LOG2E))
    A.e("s_mov_b32 s%d, 0x%x" % (S_EPS, EPS))

def unpack2(A, dlo, dhi, src):
    A.e("v_lshlrev_b32 v%d, 16, v%d" % (dlo, src))
    A.e("v_and_b32 v%d, s%d, v%d" % (dhi, S_MSK, src))

def emit_raddr(A, vdst, kind, t):
    t0, t1, t2, t3 = V_T, V_T + 1, V_T + 2, V_T + 3
    ts = str(t)
    A.e("v_lshrrev_b32 v%d, 4, v%d" % (t0, V_LANE))
    A.e("v_lshrrev_b32 v%d, 2, v%d" % (t1, V_LANE))
    A.e("v_and_b32 v%d, 3, v%d" % (t1, t1))
    A.e("v_and_b32 v%d, 3, v%d" % (t2, V_LANE))
    A.e("v_lshlrev_b32 v%d, 3, v%d" % (vdst, t2))
    A.e("v_and_b32 v%d, 1, v%d" % (t2, t0))
    if kind == "T2":
        A.e("v_lshrrev_b32 v%d, 1, v%d" % (t3, t0))
        A.e("v_lshl_add_u32 v%d, v%d, 10, v%d" % (vdst, t3, vdst))
        A.e("v_lshl_add_u32 v%d, v%d, 9, v%d" % (vdst, t2, vdst))
        A.e("v_lshl_add_u32 v%d, v%d, 6, v%d" % (vdst, t1, vdst))
        A.e("v_xor_b32 v%d, %s, v%d" % (t3, ts, t2))
        A.e("v_lshl_add_u32 v%d, v%d, 5, v%d" % (vdst, t3, vdst))
    elif kind == "T4":
        A.e("v_lshl_add_u32 v%d, v%d, 10, v%d" % (vdst, t0, vdst))
        A.e("v_lshl_add_u32 v%d, v%d, 7, v%d" % (vdst, t1, vdst))
        A.e("v_lshrrev_b32 v%d, 1, v%d" % (t3, t1))
        A.e("v_lshl_or_b32 v%d, v%d, 1, v%d" % (t3, t2, t3))
        A.e("v_xor_b32 v%d, %s, v%d" % (t3, ts, t3))
        A.e("v_lshl_add_u32 v%d, v%d, 5, v%d" % (vdst, t3, vdst))
    elif kind == "T4K2":
        A.e("v_lshrrev_b32 v%d, 1, v%d" % (t3, t0))
        A.e("v_lshl_add_u32 v%d, v%d, 10, v%d" % (vdst, t3, vdst))
        A.e("v_lshl_add_u32 v%d, v%d, 9, v%d" % (vdst, t2, vdst))
        A.e("v_lshl_add_u32 v%d, v%d, 7, v%d" % (vdst, t1, vdst))
        A.e("v_lshrrev_b32 v%d, 1, v%d" % (t3, t1))
        A.e("v_lshl_or_b32 v%d, v%d, 1, v%d" % (t3, t2, t3))
        A.e("v_xor_b32 v%d, %s, v%d" % (t3, ts, t3))
        A.e("v_lshl_add_u32 v%d, v%d, 5, v%d" % (vdst, t3, vdst))
    else:
        raise ValueError(kind)

def emit_phi4(A, src, dst, tmp):
    a = tmp; b = tmp + 4
    for h in range(2):
        A.e("v_pk_mul_f32 v[%d:%d], v[%d:%d], s[%d:%d]" % (b + 2 * h, b + 2 * h + 1, src + 2 * h, src + 2 * h + 1, S_L2E2, S_L2E2 + 1))
    for i in range(4):
        A.e("v_min_f32 v%d, 0, v%d" % (b + i, b + i))
    for i in range(4):
        A.e("v_exp_f32 v%d, v%d" % (b + i, b + i))
    for i in range(4):
        A.e("v_max_f32 v%d, 0, v%d" % (a + i, src + i))
    for h in range(2):
        A.e("v_pk_add_f32 v[%d:%d], v[%d:%d], v[%d:%d]" % (a + 2 * h, a + 2 * h + 1, a + 2 * h, a + 2 * h + 1, b + 2 * h, b + 2 * h + 1))
    for h in range(2):
        A.e("v_pk_add_f32 v[%d:%d], v[%d:%d], s[%d:%d]" % (a + 2 * h, a + 2 * h + 1, a + 2 * h, a + 2 * h + 1, S_EPS2, S_EPS2 + 1))
    for h in range(2):
        A.e("v_cvt_pk_bf16_f32 v%d, v%d, v%d" % (dst + h, a + 2 * h, a + 2 * h + 1))

def emit_swiglu4(A, g, u, dst, tmp):
    E = tmp
    for h in range(2):
        A.e("v_pk_mul_f32 v[%d:%d], v[%d:%d], s[%d:%d]" % (E + 2 * h, E + 2 * h + 1, g + 2 * h, g + 2 * h + 1, S_NL2E, S_NL2E + 1))
    for i in range(4):
        A.e("v_exp_f32 v%d, v%d" % (E + i, E + i))
    for h in range(2):
        A.e("v_pk_mul_f32 v[%d:%d], v[%d:%d], v[%d:%d]" % (g + 2 * h, g + 2 * h + 1, g + 2 * h, g + 2 * h + 1, u + 2 * h, u + 2 * h + 1))
    for h in range(2):
        A.e("v_pk_add_f32 v[%d:%d], v[%d:%d], s[%d:%d]" % (E + 2 * h, E + 2 * h + 1, E + 2 * h, E + 2 * h + 1, S_ONE, S_ONE + 1))
    for i in range(4):
        A.e("v_rcp_f32 v%d, v%d" % (E + i, E + i))
    A.e("s_nop 0")
    for h in range(2):
        A.e("v_pk_mul_f32 v[%d:%d], v[%d:%d], v[%d:%d]" % (g + 2 * h, g + 2 * h + 1, g + 2 * h, g + 2 * h + 1, E + 2 * h, E + 2 * h + 1))
    for h in range(2):
        A.e("v_cvt_pk_bf16_f32 v%d, v%d, v%d" % (dst + h, g + 2 * h, g + 2 * h + 1))

S_L2E2 = 10
S_EPS2 = 12

def sel_srd(A, d, lo_a, lo_b, size_a, size_b):
    A.e("s_cselect_b32 s%d, s%d, s%d" % (d, lo_a, lo_b))
    A.e("s_cselect_b32 s%d, s%d, s%d" % (d + 1, lo_a + 1, lo_b + 1))
    if size_a == size_b:
        A.e("s_mov_b32 s%d, 0x%x" % (d + 2, size_a))
    else:
        A.e("s_mov_b32 s%d, 0x%x" % (S_T3, size_a))
        A.e("s_cselect_b32 s%d, s%d, 0x%x" % (d + 2, S_T3, size_b))
    A.e("s_and_b32 s%d, s%d, 0xffff" % (d + 1, d + 1))
    A.e("s_mov_b32 s%d, 0x00020000" % (d + 3))

SZQ = 448 * 2688
SZG = 448 * 3584

def gen_k1(A):
    A.label(KNAME)
    A.e("s_cmp_ge_u32 s2, 256")
    A.e("s_cbranch_scc1 K1_END")
    A.e("s_load_dwordx4 s[4:7], s[0:1], 0")
    A.e("s_load_dwordx4 s[8:11], s[0:1], 32")
    A.e("s_load_dwordx2 s[12:13], s[0:1], 56")
    A.e("s_load_dwordx2 s[14:15], s[0:1], 80")
    A.e("s_load_dwordx2 s[96:97], s[0:1], 48")
    A.e("s_load_dwordx2 s[98:99], s[0:1], 16")
    if "nocw" not in EXP:
        A.e("s_getpc_b64 s[100:101]")
        A.label("K1_PC")
        A.e("s_sub_u32 s100, s100, K1_PC-%s" % KNAME)
        A.e("s_subb_u32 s101, s101, 0")
        A.e("v_lshlrev_b32 v%d, 7, v0" % V_T)
        A.e("v_min_u32 v%d, K2_END-%s, v%d" % (V_T, KNAME, V_T))
        A.vmem("global_load_dword v%d, v%d, s[100:101]" % (V_DUMP + 3, V_T), "cw")
    A.e("v_and_b32 v%d, 63, v0" % V_LANE)
    A.e("v_lshrrev_b32 v%d, 6, v0" % V_T)
    A.e("s_nop 0")
    A.e("v_readfirstlane_b32 s%d, v%d" % (S_WAVE, V_T))
    k1_consts(A)
    A.e("s_and_b32 s%d, s2, 7" % S_T0)
    A.e("s_lshr_b32 s%d, s2, 3" % S_IDX)
    A.e("s_and_b32 s%d, s%d, 3" % (S_T2, S_T0))
    A.e("s_lshl_b32 s%d, s%d, 2" % (S_T2, S_T2))
    A.e("s_and_b32 s%d, s%d, 3" % (S_T3, S_IDX))
    A.e("s_add_u32 s%d, s%d, s%d" % (S_CG, S_T2, S_T3))
    A.e("s_lshr_b32 s%d, s%d, 2" % (S_T2, S_T0))
    A.e("s_lshl_b32 s%d, s%d, 3" % (S_T2, S_T2))
    A.e("s_lshr_b32 s%d, s%d, 2" % (S_E, S_IDX))
    A.e("s_add_u32 s%d, s%d, s%d" % (S_RB, S_T2, S_E))
    A.e("s_and_b32 s%d, s%d, 1" % (S_RH, S_WAVE))
    A.e("s_and_b32 s%d, s%d, 1" % (S_TYP, S_CG))
    A.e("s_lshr_b32 s%d, s%d, 1" % (S_PI, S_CG))
    A.e("s_lshl_b32 s%d, s%d, 3" % (S_R0T, S_RB))
    A.e("s_lshl_b32 s%d, s%d, 2" % (S_T0, S_RH))
    A.e("s_add_u32 s%d, s%d, s%d" % (S_R0T, S_R0T, S_T0))
    A.e("s_waitcnt lgkmcnt(0)")
    srd(A, S_X, 4, 2048 * 896)
    srd(A, S_W, 14, WS_SIZE)
    srd(A, S_GW, 12, 896)
    A.e("s_lshl_b32 s%d, s%d, 7" % (S_T0, S_RB))
    A.e("s_lshl_b32 s%d, s%d, 3" % (S_T1, S_CG))
    A.e("s_add_u32 s%d, s%d, s%d" % (S_T0, S_T0, S_T1))
    A.e("s_add_u32 s%d, s%d, s%d" % (S_T0, S_T0, S_WAVE))
    A.e("s_mul_i32 s%d, s%d, 896" % (S_T1, S_T0))
    A.e("v_lshlrev_b32 v%d, 4, v%d" % (V_T, V_LANE))
    A.e("v_mov_b32 v%d, 0x7ffffff0" % (V_T + 1))
    A.e("v_cmp_gt_u32 vcc, 56, v%d" % V_LANE)
    A.e("s_nop 1")
    A.e("v_cndmask_b32 v%d, v%d, v%d, vcc" % (V_T, V_T + 1, V_T))
    A.vmem("buffer_load_dwordx4 v[96:99], v%d, s[%d:%d], s%d offen" % (V_T, S_X, S_X + 3, S_T1), "gate")
    A.vmem("buffer_load_dwordx4 v[100:103], v%d, s[%d:%d], 0 offen" % (V_T, S_GW, S_GW + 3), "gate")
    A.e("s_lshl_b32 s%d, s%d, 2" % (S_GOFF, S_T0))
    A.e("s_cmp_eq_u32 s%d, 0" % S_TYP)
    sel_srd(A, S_R + 0, 6, 8, SZQ, SZG)
    A.e("s_cmp_eq_u32 s%d, 0" % S_TYP)
    sel_srd(A, S_R + 4, 6, 8, SZQ, SZG)
    A.e("s_cmp_eq_u32 s%d, 0" % S_TYP)
    sel_srd(A, S_R + 8, 6, 10, SZQ, SZG)
    A.e("s_cmp_eq_u32 s%d, 0" % S_TYP)
    sel_srd(A, S_R + 12, 8, 10, SZG, SZG)
    A.e("s_lshr_b32 s%d, s%d, 1" % (S_T0, S_WAVE))
    A.e("s_and_b32 s%d, s%d, 1" % (S_T0, S_T0))
    A.e("s_xor_b32 s%d, s%d, 1" % (S_T0, S_T0))
    A.e("s_and_b32 s%d, s%d, s%d" % (S_T0, S_T0, S_TYP))
    A.e("s_cmp_eq_u32 s%d, 1" % S_T0)
    sel_srd(A, S_R + 16, 8, 10, SZG, SZG)
    t0, t1, t2 = V_T, V_T + 1, V_T + 2
    A.e("v_and_b32 v%d, 15, v%d" % (t0, V_LANE))
    A.e("v_lshrrev_b32 v%d, 1, v%d" % (t1, t0))
    A.e("v_lshrrev_b32 v%d, 4, v%d" % (t2, V_LANE))
    A.e("v_xor_b32 v%d, v%d, v%d" % (t1, t1, t2))
    A.e("s_lshl_b32 s%d, s%d, 6" % (S_T0, S_RH))
    A.e("v_add_u32 v%d, s%d, v%d" % (t0, S_T0, t0))
    A.e("v_lshlrev_b32 v%d, 7, v%d" % (t0, t0))
    A.e("v_lshl_add_u32 v%d, v%d, 4, v%d" % (t0, t1, t0))
    A.e("v_add_u32 v%d, %d, v%d" % (V_XA, XBASE, t0))
    A.e("v_xor_b32 v%d, 64, v%d" % (V_XA + 1, V_XA))
    A.e("s_cmp_ge_u32 s%d, 4" % S_WAVE)
    A.e("s_cbranch_scc1 K1_DMAW")
    A.e("s_cmp_eq_u32 s%d, 0" % S_TYP)
    A.e("s_cbranch_scc1 K1_QKV6")
    base_vm = list(A.vm)
    for var in ("FFN6", "QKV6"):
        A.vm = list(base_vm)
        A.label("K1_" + var)
        gen_k1_var(A, var)
        A.e("s_branch K1_END")
    A.vm = list(base_vm)
    A.label("K1_DMAW")
    k1_dma_setup(A)
    gen_k1_var(A, "FFN4")
    A.label("K1_END")
    A.e("s_endpgm")

def k1_dma_setup(A):
    t0, t1, t2, t3 = V_T, V_T + 1, V_T + 2, V_T + 3
    SJ = S_T2
    A.e("s_and_b32 s%d, s%d, 3" % (SJ, S_WAVE))
    A.e("v_lshrrev_b32 v%d, 3, v%d" % (t0, V_LANE))
    A.e("v_lshrrev_b32 v%d, 4, v%d" % (t1, V_LANE))
    A.e("v_and_b32 v%d, 1, v%d" % (t1, t1))
    A.e("s_and_b32 s%d, s%d, 1" % (S_T3, SJ))
    A.e("s_lshl_b32 s%d, s%d, 1" % (S_T3, S_T3))
    A.e("v_or_b32 v%d, s%d, v%d" % (t1, S_T3, t1))
    A.e("v_lshrrev_b32 v%d, 1, v%d" % (t2, V_LANE))
    A.e("v_and_b32 v%d, 3, v%d" % (t2, t2))
    A.e("v_xor_b32 v%d, v%d, v%d" % (t1, t1, t2))
    A.e("v_and_b32 v%d, 1, v%d" % (t2, V_LANE))
    A.e("v_lshlrev_b32 v%d, 4, v%d" % (t2, t2))
    A.e("s_lshl_b32 s%d, s%d, 3" % (S_T3, SJ))
    A.e("v_add_u32 v%d, s%d, v%d" % (t0, S_T3, t0))
    A.e("v_lshl_add_u32 v%d, v%d, 5, v%d" % (t3, t1, t2))
    A.e("v_lshrrev_b32 v%d, 1, v%d" % (t1, t1))
    A.e("v_lshlrev_b32 v%d, 3, v%d" % (t1, t1))
    A.e("v_sub_u32 v%d, v%d, v%d" % (t1, t3, t1))
    A.e("v_mul_u32_u24 v%d, 2688, v%d" % (t2, t0))
    A.e("v_add_u32 v%d, v%d, v%d" % (t1, t1, t2))
    A.e("v_mul_u32_u24 v%d, 3584, v%d" % (t2, t0))
    A.e("v_add_u32 v%d, v%d, v%d" % (t3, t3, t2))
    A.e("s_mul_i32 s%d, s%d, 112" % (S_T0, S_PI))
    A.e("s_mul_i32 s%d, s%d, 320" % (S_T1, S_PI))
    A.e("s_add_u32 s%d, s%d, 1024" % (S_T1, S_T1))
    A.e("s_cmp_eq_u32 s%d, 0" % S_TYP)
    A.e("s_cselect_b64 vcc, -1, 0")
    for r in range(3):
        A.e("v_add_u32 v%d, s%d, v%d" % (V_DOFF + r, S_T0, t1))
        A.e("v_add_u32 v%d, %d, v%d" % (V_DOFF + r, r * 896, V_DOFF + r))
        A.e("v_add_u32 v%d, s%d, v%d" % (t2, S_T1, t3))
        if r == 1:
            A.e("v_add_u32 v%d, 128, v%d" % (t2, t2))
        A.e("v_cndmask_b32 v%d, v%d, v%d, vcc" % (V_DOFF + r, t2, V_DOFF + r))
    A.e("s_lshl_b32 s%d, s%d, 7" % (S_T0, S_PI))
    A.e("v_add_u32 v%d, s%d, v%d" % (V_DOFF + 3, S_T0, t3))
    A.e("v_add_u32 v%d, s%d, v%d" % (t2, S_T1, t3))
    A.e("v_add_u32 v%d, 128, v%d" % (t2, t2))
    A.e("v_cndmask_b32 v%d, v%d, v%d, vcc" % (V_DOFF + 3, t2, V_DOFF + 3))
    A.e("v_add_u32 v%d, s%d, v%d" % (V_DOFF + 4, S_T0, t3))
    A.e("v_lshrrev_b32 v%d, 2, v%d" % (t0, V_LANE))
    A.e("s_and_b32 s%d, s%d, 1" % (S_T3, SJ))
    A.e("s_lshl_b32 s%d, s%d, 4" % (S_T3, S_T3))
    A.e("v_add_u32 v%d, s%d, v%d" % (t0, S_T3, t0))
    A.e("v_mul_u32_u24 v%d, 3584, v%d" % (t0, t0))
    A.e("v_lshrrev_b32 v%d, 1, v%d" % (t1, V_LANE))
    A.e("v_lshrrev_b32 v%d, 5, v%d" % (t2, V_LANE))
    A.e("v_xor_b32 v%d, v%d, v%d" % (t1, t1, t2))
    A.e("v_and_b32 v%d, 1, v%d" % (t1, t1))
    A.e("v_lshl_add_u32 v%d, v%d, 5, v%d" % (t0, t1, t0))
    A.e("v_and_b32 v%d, 1, v%d" % (t1, V_LANE))
    A.e("v_lshl_add_u32 v%d, v%d, 4, v%d" % (t0, t1, t0))
    A.e("v_add_u32 v%d, s%d, v%d" % (t0, S_T1, t0))
    A.e("v_add_u32 v%d, 256, v%d" % (t0, t0))
    A.e("v_cndmask_b32 v%d, v%d, v%d, vcc" % (V_DOFF + 4, t0, V_DOFF + 4))
    A.e("s_cmp_eq_u32 s%d, 0" % S_TYP)
    A.e("s_mov_b32 s%d, %d" % (S_T3, 32 * 2688))
    A.e("s_cselect_b32 s%d, s%d, %d" % (S_STR, S_T3, 32 * 3584))
    for r in range(5):
        A.e("s_mov_b32 s%d, 0" % (S_SOFF + r))
    A.e("v_lshrrev_b32 v%d, 3, v%d" % (t0, V_LANE))
    A.e("v_lshrrev_b32 v%d, 4, v%d" % (t1, V_LANE))
    A.e("v_and_b32 v%d, 7, v%d" % (t2, V_LANE))
    A.e("v_xor_b32 v%d, v%d, v%d" % (t1, t1, t2))
    A.e("v_mul_u32_u24 v%d, 896, v%d" % (t0, t0))
    A.e("v_lshl_add_u32 v%d, v%d, 4, v%d" % (V_XD, t1, t0))
    A.e("v_xor_b32 v%d, 64, v%d" % (V_XD + 1, V_XD))
    A.e("s_lshl_b32 s%d, s%d, 7" % (S_T0, S_RB))
    A.e("s_lshl_b32 s%d, s%d, 5" % (S_T1, SJ))
    A.e("s_add_u32 s%d, s%d, s%d" % (S_T0, S_T0, S_T1))
    A.e("s_mul_i32 s%d, s%d, 896" % (S_XO, S_T0))
    A.e("s_lshl_b32 s%d, s%d, 10" % (S_STR + 1, SJ))
    A.e("s_lshl_b32 s%d, s%d, 12" % (S_STR + 2, SJ))
    A.e("s_add_u32 s%d, s%d, %d" % (S_STR + 2, S_STR + 2, XBASE))

def k1_touch_setup(A):
    t0, t1, t2, t3 = V_T, V_T + 1, V_T + 2, V_T + 3
    A.e("v_lshrrev_b32 v%d, 3, v%d" % (t0, V_LANE))
    A.e("v_and_b32 v%d, 7, v%d" % (t1, V_LANE))
    A.e("v_mov_b32 v%d, 0x7ffffff0" % (V_T + 4))
    A.e("s_cmp_eq_u32 s%d, 3" % S_WAVE)
    A.e("s_cbranch_scc1 K1_TS_X%d" % A.uid)
    A.e("s_cmp_eq_u32 s%d, 0" % S_TYP)
    A.e("s_cbranch_scc0 K1_TS_F%d" % A.uid)
    A.e("s_cmp_eq_u32 s%d, 0" % S_WAVE)
    A.e("s_cbranch_scc0 K1_TS_PG%d" % A.uid)
    srd(A, S_R, 6, SZQ)
    A.e("v_lshrrev_b32 v%d, 1, v%d" % (t2, t1))
    A.e("v_mul_u32_u24 v%d, 896, v%d" % (t2, t2))
    A.e("v_and_b32 v%d, 1, v%d" % (t3, t1))
    A.e("v_mul_u32_u24 v%d, 116, v%d" % (t3, t3))
    A.e("v_mul_u32_u24 v%d, 2688, v%d" % (t0, t0))
    A.e("v_add3_u32 v%d, v%d, v%d, v%d" % (V_DOFF, t0, t2, t3))
    A.e("v_cmp_gt_u32 vcc, 6, v%d" % t1)
    A.e("s_mul_i32 s%d, s%d, 112" % (S_SOFF, S_PI))
    A.e("s_mul_i32 s%d, s%d, %d" % (S_T0, S_E, 8 * 2688))
    A.e("s_add_u32 s%d, s%d, s%d" % (S_SOFF, S_SOFF, S_T0))
    A.e("s_mov_b32 s%d, %d" % (S_STR, 64 * 2688))
    A.e("s_branch K1_TS_END%d" % A.uid)
    A.label("K1_TS_PG%d" % A.uid)
    A.e("s_cmp_eq_u32 s%d, 1" % S_WAVE)
    sel_srd(A, S_R, 8, 10, SZG, SZG)
    A.e("v_mul_u32_u24 v%d, 3584, v%d" % (V_DOFF, t0))
    if "t64" in EXP:
        A.e("v_lshl_add_u32 v%d, v%d, 6, v%d" % (V_DOFF, t1, V_DOFF))
        A.e("v_cmp_gt_u32 vcc, 2, v%d" % t1)
    else:
        A.e("v_cmp_gt_u32 vcc, 1, v%d" % t1)
    A.e("s_lshl_b32 s%d, s%d, 7" % (S_SOFF, S_PI))
    A.e("s_mul_i32 s%d, s%d, %d" % (S_T0, S_E, 8 * 3584))
    A.e("s_add_u32 s%d, s%d, s%d" % (S_SOFF, S_SOFF, S_T0))
    A.e("s_mov_b32 s%d, %d" % (S_STR, 64 * 3584))
    A.e("s_branch K1_TS_END%d" % A.uid)
    A.label("K1_TS_F%d" % A.uid)
    A.e("s_cmp_eq_u32 s%d, 0" % S_WAVE)
    sel_srd(A, S_R, 8, 10, SZG, SZG)
    A.e("v_lshlrev_b32 v%d, %d, v%d" % (t2, 6 if "t64" in EXP else 7, t1))
    A.e("v_min_u32 v%d, 316, v%d" % (t2, t2))
    A.e("v_mul_u32_u24 v%d, 3584, v%d" % (t0, t0))
    A.e("v_add_u32 v%d, v%d, v%d" % (V_DOFF, t0, t2))
    A.e("s_cmp_lt_u32 s%d, 2" % S_WAVE)
    A.e("s_cselect_b32 s%d, %d, 0" % (S_T0, 6 if "t64" in EXP else 4))
    A.e("v_cmp_gt_u32 vcc, s%d, v%d" % (S_T0, t1))
    A.e("s_mul_i32 s%d, s%d, 320" % (S_SOFF, S_PI))
    A.e("s_add_u32 s%d, s%d, 1024" % (S_SOFF, S_SOFF))
    A.e("s_mul_i32 s%d, s%d, %d" % (S_T0, S_E, 8 * 3584))
    A.e("s_add_u32 s%d, s%d, s%d" % (S_SOFF, S_SOFF, S_T0))
    A.e("s_mov_b32 s%d, %d" % (S_STR, 64 * 3584))
    A.e("s_branch K1_TS_END%d" % A.uid)
    A.label("K1_TS_X%d" % A.uid)
    srd(A, S_R, 4, 2048 * 896)
    if "t64" in EXP:
        A.e("v_lshrrev_b32 v%d, 1, v%d" % (t2, V_LANE))
        A.e("v_mul_u32_u24 v%d, 896, v%d" % (V_DOFF, t2))
        A.e("v_and_b32 v%d, 1, v%d" % (t2, V_LANE))
        A.e("v_lshl_add_u32 v%d, v%d, 6, v%d" % (V_DOFF, t2, V_DOFF))
        A.e("v_cmp_gt_u32 vcc, 64, v%d" % V_LANE)
    else:
        A.e("v_mul_u32_u24 v%d, 896, v%d" % (V_DOFF, V_LANE))
        A.e("v_cmp_gt_u32 vcc, 32, v%d" % V_LANE)
    A.e("s_lshl_b32 s%d, s%d, 7" % (S_T0, S_RB))
    A.e("s_and_b32 s%d, s%d, 3" % (S_T1, S_IDX))
    A.e("s_lshl_b32 s%d, s%d, 5" % (S_T1, S_T1))
    A.e("s_add_u32 s%d, s%d, s%d" % (S_T0, S_T0, S_T1))
    A.e("s_mul_i32 s%d, s%d, 896" % (S_SOFF, S_T0))
    A.e("s_mov_b32 s%d, 128" % S_STR)
    A.label("K1_TS_END%d" % A.uid)
    A.e("s_nop 1")
    A.e("v_cndmask_b32 v%d, v%d, v%d, vcc" % (V_DOFF, V_T + 4, V_DOFF))
    A.uid += 1

def k1_prefetch0(A):
    T = V_T
    A.e("s_lshl_b32 s%d, s%d, 1" % (S_T0, S_WAVE))
    A.e("s_cmp_eq_u32 s%d, 0" % S_WAVE); A.e("s_cselect_b32 s%d, s4, s6" % S_T1); A.e("s_cselect_b32 s%d, s5, s7" % S_T2)
    A.e("s_cmp_eq_u32 s%d, 2" % S_WAVE); A.e("s_cselect_b32 s%d, s8, s%d" % (S_T1, S_T1)); A.e("s_cselect_b32 s%d, s9, s%d" % (S_T2, S_T2))
    A.e("s_cmp_eq_u32 s%d, 3" % S_WAVE); A.e("s_cselect_b32 s%d, s10, s%d" % (S_T1, S_T1)); A.e("s_cselect_b32 s%d, s11, s%d" % (S_T2, S_T2))
    A.e("s_mov_b32 s%d, s%d" % (S_R + 4, S_T1))
    A.e("s_and_b32 s%d, s%d, 0xffff" % (S_R + 5, S_T2))
    A.e("s_mov_b32 s%d, %d" % (S_T3, SZQ))
    A.e("s_cmp_eq_u32 s%d, 1" % S_WAVE); A.e("s_cselect_b32 s%d, s%d, %d" % (S_R + 6, S_T3, SZG))
    A.e("s_mov_b32 s%d, %d" % (S_T3, 2048 * 896))
    A.e("s_cmp_eq_u32 s%d, 0" % S_WAVE); A.e("s_cselect_b32 s%d, s%d, s%d" % (S_R + 6, S_T3, S_R + 6))
    A.e("s_mov_b32 s%d, 0x00020000" % (S_R + 7))
    A.e("s_mov_b32 s%d, 49" % S_T3)
    A.e("s_cmp_eq_u32 s%d, 1" % S_WAVE); A.e("s_cselect_b32 s%d, 37, s%d" % (S_T3, S_T3))
    A.e("s_cmp_eq_u32 s%d, 0" % S_WAVE); A.e("s_cselect_b32 s%d, 56, s%d" % (S_T3, S_T3))
    A.e("s_mul_i32 s%d, s%d, s2" % (S_T1, S_T3))
    A.e("s_lshl_b32 s%d, s%d, 7" % (S_T1, S_T1))
    A.e("v_lshlrev_b32 v%d, 7, v%d" % (T, V_LANE))
    A.e("v_mov_b32 v%d, 0x7ffffff0" % (T + 1))
    A.e("v_cmp_gt_u32 vcc, s%d, v%d" % (S_T3, V_LANE))
    A.e("s_nop 1")
    A.e("v_cndmask_b32 v%d, v%d, v%d, vcc" % (T, T + 1, T))
    A.vmem("buffer_load_dword v%d, v%d, s[%d:%d], s%d offen" % (V_DUMP, T, S_R + 4, S_R + 7, S_T1), "pf")

def k1_prefetch2(A):
    T = V_T
    srd(A, S_GW, 96, 1792 * 896)
    if "pf2chip" in EXP:
        A.e("s_lshl_b32 s%d, s2, 2" % S_T0)
        A.e("s_add_u32 s%d, s%d, s%d" % (S_T0, S_T0, S_WAVE))
        A.e("s_mul_i32 s%d, s%d, %d" % (S_T1, S_T0, 13 * 128))
        A.e("v_lshlrev_b32 v%d, 7, v%d" % (T, V_LANE))
        A.e("v_mov_b32 v%d, 0x7ffffff0" % (T + 1))
        A.e("v_cmp_gt_u32 vcc, 13, v%d" % V_LANE)
        A.e("s_nop 1")
        A.e("v_cndmask_b32 v%d, v%d, v%d, vcc" % (T + 2, T + 1, T))
        A.vmem("buffer_load_dword v%d, v%d, s[%d:%d], s%d offen" % (V_DUMP, T + 2, S_GW, S_GW + 3, S_T1), "pf")
        srd(A, S_R + 4, 98, 448 * 896)
        A.e("s_mul_i32 s%d, s%d, %d" % (S_T1, S_T0, 4 * 128))
        A.e("v_cmp_gt_u32 vcc, 4, v%d" % V_LANE)
        A.e("s_nop 1")
        A.e("v_cndmask_b32 v%d, v%d, v%d, vcc" % (T + 2, T + 1, T))
        A.vmem("buffer_load_dword v%d, v%d, s[%d:%d], s%d offen" % (V_DUMP + 2, T + 2, S_R + 4, S_R + 7, S_T1), "pf")
        return
    A.e("s_lshl_b32 s%d, s%d, 2" % (S_T0, S_IDX))
    A.e("s_add_u32 s%d, s%d, s%d" % (S_T0, S_T0, S_WAVE))
    A.e("s_mul_i32 s%d, s%d, %d" % (S_T1, S_T0, 98 * 128))
    A.e("v_lshlrev_b32 v%d, 7, v%d" % (T, V_LANE))
    A.vmem("buffer_load_dword v%d, v%d, s[%d:%d], s%d offen" % (V_DUMP, T, S_GW, S_GW + 3, S_T1), "pf")
    A.e("v_mov_b32 v%d, 0x7ffffff0" % (T + 1))
    A.e("v_cmp_gt_u32 vcc, 34, v%d" % V_LANE)
    A.e("s_nop 1")
    A.e("v_cndmask_b32 v%d, v%d, v%d, vcc" % (T + 2, T + 1, T))
    A.e("s_add_u32 s%d, s%d, %d" % (S_T1, S_T1, 64 * 128))
    A.vmem("buffer_load_dword v%d, v%d, s[%d:%d], s%d offen" % (V_DUMP + 1, T + 2, S_GW, S_GW + 3, S_T1), "pf")
    srd(A, S_R + 4, 98, 448 * 896)
    A.e("s_mul_i32 s%d, s%d, %d" % (S_T1, S_T0, 25 * 128))
    A.e("v_cmp_gt_u32 vcc, 25, v%d" % V_LANE)
    A.e("s_nop 1")
    A.e("v_cndmask_b32 v%d, v%d, v%d, vcc" % (T + 2, T + 1, T))
    A.vmem("buffer_load_dword v%d, v%d, s[%d:%d], s%d offen" % (V_DUMP + 2, T + 2, S_R + 4, S_R + 7, S_T1), "pf")

def gen_k1_var(A, var):
    dma = var.startswith("FFN4")
    nt = 6 if var.endswith("6") else 4
    poffs = [512] * 6
    if var == "FFN6":
        poffs = [512, 512, 512, 512, 256, 256]
    if var == "QKV6":
        A.e("s_and_b32 s%d, s%d, 2" % (S_T0, S_WAVE))
        for i in range(2):
            A.e("s_add_u32 s%d, s%d, %d" % (S_T1, S_T0, i))
            emit_raddr(A, V_WA + i, "T4", "s%d" % S_T1)
        for m in (1, 2):
            for i in range(2):
                A.e("v_add_u32 v%d, %d, v%d" % (V_WA + 2 * m + i, m * 4096, V_WA + i))
    elif var == "FFN6":
        A.e("s_and_b32 s%d, s%d, 2" % (S_T0, S_WAVE))
        for p in range(2):
            A.e("s_add_u32 s%d, s%d, %d" % (S_T1, S_T0, p))
            emit_raddr(A, V_WA + 2 * p, "T4", "s%d" % S_T1)
            A.e("v_add_u32 v%d, 8192, v%d" % (V_WA + 2 * p + 1, V_WA + 2 * p))
        A.e("s_lshr_b32 s%d, s%d, 1" % (S_T1, S_WAVE))
        emit_raddr(A, V_WA + 4, "T2", "s%d" % S_T1)
        A.e("v_add_u32 v%d, 16384, v%d" % (V_WA + 4, V_WA + 4))
        A.e("v_add_u32 v%d, 2048, v%d" % (V_WA + 5, V_WA + 4))
    elif var == "FFN4":
        A.e("s_and_b32 s%d, s%d, 2" % (S_T0, S_WAVE))
        A.e("s_cmp_eq_u32 s%d, 0" % S_TYP)
        A.e("s_cselect_b32 s%d, 3, 1" % S_T3)
        A.e("s_cselect_b32 s%d, 1, 2" % S_T2)
        A.e("s_lshl_b32 s%d, s%d, 12" % (S_STR + 4, S_T3))
        A.e("s_lshl_b32 s%d, s%d, 12" % (S_STR + 3, S_T2))
        for p in range(2):
            A.e("s_add_u32 s%d, s%d, %d" % (S_T1, S_T0, p))
            emit_raddr(A, V_WA + 2 * p, "T4", "s%d" % S_T1)
            A.e("v_add_u32 v%d, s%d, v%d" % (V_WA + 2 * p, S_STR + 4, V_WA + 2 * p))
            A.e("v_add_u32 v%d, s%d, v%d" % (V_WA + 2 * p + 1, S_STR + 3, V_WA + 2 * p))
    for i in range(nt):
        A.e("v_add_u32 v%d, %d, v%d" % (V_WA + 6 + i, WHI, V_WA + i))
    if not dma:
        if "pf0" in EXP:
            k1_prefetch0(A)
        k1_touch_setup(A)

    def issue_w(stage):
        slot = stage % 4
        for r in range(5):
            A.e("s_add_u32 m0, s%d, %d" % (S_STR + 1, slot * WSTG + r * 4096))
            A.e("s_nop 0")
            A.vmem("buffer_load_dwordx4 v%d, s[%d:%d], s%d offen lds" % (V_DOFF + r, S_R + 4 * r, S_R + 4 * r + 3, S_SOFF + r), ("st", stage))
            if r < 3:
                A.e("s_add_u32 s%d, s%d, s%d" % (S_SOFF + r, S_SOFF + r, S_STR))
            else:
                A.e("s_add_u32 s%d, s%d, %d" % (S_SOFF + r, S_SOFF + r, 32 * 3584))
    def issue_x(d):
        for i in range(4):
            A.e("s_add_u32 m0, s%d, %d" % (S_STR + 2, (d % 2) * XSLOT + i * 1024))
            A.e("s_add_u32 s%d, s%d, %d" % (S_T0, S_XO, i * 8 * 896 + d * 128))
            A.vmem("buffer_load_dwordx4 v%d, s[%d:%d], s%d offen lds" % (V_XD + (i & 1), S_X, S_X + 3, S_T0), ("x", d))
    def touch(d):
        A.e("s_mul_i32 s%d, s%d, %d" % (S_T0, S_STR, d))
        A.e("s_add_u32 s%d, s%d, s%d" % (S_T0, S_T0, S_SOFF))
        A.vmem("buffer_load_dword v%d, v%d, s[%d:%d], s%d offen" % (V_DUMP + 3, V_DOFF, S_R, S_R + 3, S_T0), "pf")
    def read_list(stage):
        slot = stage % 4
        st = stage & 1
        hi = 1 if slot >= 2 else 0
        base = (slot - 2 * hi) * WSTG
        out = []
        d = stage // 2
        for rt in range(4):
            out.append("ds_read_b128 v[%d:%d], v%d offset:%d" % (V_XF + st * 16 + rt * 4, V_XF + st * 16 + rt * 4 + 3, V_XA + (stage & 1), (d % 2) * XSLOT + rt * 2048))
        for ti in range(nt):
            dd = V_WF + st * 24 + ti * 4
            for p in range(2):
                out.append("ds_read_b64_tr_b16 v[%d:%d], v%d offset:%d" % (dd + 2 * p, dd + 2 * p + 1, V_WA + ti + 6 * hi, base + p * poffs[ti]))
        return out

    A.nst = 0
    A.stamp()
    if STAMP:
        A.e("s_memrealtime s[100:101]")
    NK = 14
    if dma:
        issue_x(0); issue_w(0); issue_w(1); issue_x(1); issue_w(2)
    else:
        if "nopf" not in EXP and "latepf" not in EXP:
            for d in (1, 2, 3):
                touch(d)
    A.wait_vm("gate")
    T = V_T
    A.e("v_mov_b32 v%d, 0" % V_GATE)
    for d in range(4):
        unpack2(A, T, T + 1, 96 + d)
        unpack2(A, T + 2, T + 3, 100 + d)
        A.e("v_pk_mul_f32 v[%d:%d], v[%d:%d], v[%d:%d]" % (T, T + 1, T, T + 1, T + 2, T + 3))
        A.e("v_cvt_pk_bf16_f32 v%d, v%d, v%d" % (T + 4, T, T + 1))
        unpack2(A, T, T + 1, T + 4)
        A.e("v_add_f32 v%d, v%d, v%d" % (V_GATE, V_GATE, T))
        A.e("v_add_f32 v%d, v%d, v%d" % (V_GATE, V_GATE, T + 1))
    for mod in ("quad_perm:[1,0,3,2]", "quad_perm:[2,3,0,1]", "row_half_mirror", "row_mirror"):
        A.e("s_nop 1")
        A.e("v_add_f32_dpp v%d, v%d, v%d %s row_mask:0xf bank_mask:0xf" % (V_GATE, V_GATE, V_GATE, mod))
    A.e("s_nop 1")
    A.e("v_readlane_b32 s%d, v%d, 16" % (S_T0, V_GATE))
    A.e("v_readlane_b32 s%d, v%d, 32" % (S_T1, V_GATE))
    A.e("v_readlane_b32 s%d, v%d, 48" % (S_T2, V_GATE))
    A.e("s_nop 1")
    A.e("v_add_f32 v%d, s%d, v%d" % (V_GATE, S_T0, V_GATE))
    A.e("v_add_f32 v%d, s%d, v%d" % (V_GATE, S_T1, V_GATE))
    A.e("v_add_f32 v%d, s%d, v%d" % (V_GATE, S_T2, V_GATE))
    A.e("v_cvt_pk_bf16_f32 v%d, v%d, v%d" % (V_GATE, V_GATE, V_GATE))
    A.e("v_lshlrev_b32 v%d, 16, v%d" % (V_GATE, V_GATE))
    A.e("v_mul_f32 v%d, s%d, v%d" % (V_GATE, S_NL2E, V_GATE))
    A.e("v_exp_f32 v%d, v%d" % (V_GATE, V_GATE))
    A.e("s_nop 0")
    A.e("v_add_f32 v%d, 1.0, v%d" % (V_GATE, V_GATE))
    A.e("v_rcp_f32 v%d, v%d" % (V_GATE, V_GATE))
    A.e("s_nop 0")
    A.e("v_cvt_pk_bf16_f32 v%d, v%d, v%d" % (V_GATE, V_GATE, V_GATE))
    A.e("v_lshlrev_b32 v%d, 16, v%d" % (V_GATE, V_GATE))

    def wait_stage(stage, extra=""):
        if dma:
            tags = [("st", stage), ("x", stage // 2)]
            idx = None
            for i, t in enumerate(A.vm):
                if t in tags: idx = i
            if idx is None:
                if extra: A.e("s_waitcnt " + extra)
            else:
                n = len(A.vm) - 1 - idx
                A.e("s_waitcnt vmcnt(%d) %s" % (n, extra))
                A.vm = A.vm[idx + 1:]
        elif extra:
            A.e("s_waitcnt " + extra)

    wait_stage(0)
    A.e("s_barrier")
    if not dma and "latepf" in EXP:
        for d in (1, 2, 3):
            touch(d)
    for r in read_list(0):
        A.e(r)
    for s in range(NK):
        A.c("---- step %d ----" % s)
        if s in (1, 8):
            A.stamp()
        if s + 1 < NK:
            wait_stage(s + 1, "lgkmcnt(0)")
            A.e("s_barrier")
        else:
            A.e("s_waitcnt lgkmcnt(0)")
        if dma:
            if s + 3 < NK:
                issue_w(s + 3)
            if s % 2 == 1 and (s + 3) // 2 < 7:
                issue_x((s + 3) // 2)
        else:
            if s % 2 == 0 and s // 2 + 4 < 7 and "nopf" not in EXP:
                touch(s // 2 + 4)
            if s == PF2STEP and "nopf2" not in EXP:
                k1_prefetch2(A)
        reads = read_list(s + 1) if s + 1 < NK else []
        st = s & 1
        mf = []
        for ti in range(nt):
            for rt in range(4):
                acc = V_ACC + (ti * 4 + rt) * 4
                xf = V_XF + st * 16 + rt * 4
                wf = V_WF + st * 24 + ti * 4
                cin = "0" if s == 0 else "v[%d:%d]" % (acc, acc + 3)
                if var == "QKV6" and ti >= 2:
                    a, b = xf, wf
                else:
                    a, b = wf, xf
                mf.append("v_mfma_f32_16x16x32_bf16 v[%d:%d], v[%d:%d], v[%d:%d], %s" % (acc, acc + 3, a, a + 3, b, b + 3, cin))
        ri = 0
        for m in mf:
            A.e(m)
            if ri < len(reads):
                A.e(reads[ri]); ri += 1
        while ri < len(reads):
            A.e(reads[ri]); ri += 1

    A.c("---- epilogue ----")
    A.stamp()
    A.e("s_mov_b32 s%d, 0x%x" % (S_L2E2, LOG2E))
    A.e("s_mov_b32 s%d, 0x%x" % (S_L2E2 + 1, LOG2E))
    A.e("s_mov_b32 s%d, 0x%x" % (S_EPS2, EPS))
    A.e("s_mov_b32 s%d, 0x%x" % (S_EPS2 + 1, EPS))
    A.nop(6)
    A.e("v_mov_b32 v%d, 0x7ffffff0" % (V_T + 1))
    A.e("v_mov_b32 v%d, %d" % (V_T, WS_G))
    A.e("v_cmp_eq_u32 vcc, 0, v%d" % V_LANE)
    A.e("s_nop 1")
    A.e("v_cndmask_b32 v%d, v%d, v%d, vcc" % (V_T, V_T + 1, V_T))
    A.vmem("buffer_store_dword v%d, v%d, s[%d:%d], s%d offen" % (V_GATE, V_T, S_W, S_W + 3, S_GOFF), "out")
    VL16 = 9
    A.e("v_lshlrev_b32 v%d, 4, v%d" % (VL16, V_LANE))
    TMP = 32
    if var == "QKV6":
        S_HEAD = S_T3
        A.e("s_lshl_b32 s%d, s%d, 1" % (S_HEAD, S_PI))
        A.e("s_lshr_b32 s%d, s%d, 1" % (S_T0, S_WAVE))
        A.e("s_add_u32 s%d, s%d, s%d" % (S_HEAD, S_HEAD, S_T0))
        M48, M12, ONE12 = 2, 3, 4
        A.e("v_cmp_gt_u32 vcc, 48, v%d" % V_LANE)
        A.e("s_nop 1")
        A.e("v_cndmask_b32 v%d, 0, -1, vcc" % M48)
        A.e("v_and_b32 v%d, 15, v%d" % (V_T, V_LANE))
        A.e("v_cmp_gt_u32 vcc, 12, v%d" % V_T)
        A.e("s_nop 1")
        A.e("v_cndmask_b32 v%d, 0, -1, vcc" % M12)
        A.e("v_mov_b32 v%d, 0x3f803f80" % (V_T + 1))
        A.e("v_cmp_eq_u32 vcc, 12, v%d" % V_T)
        A.e("s_nop 1")
        A.e("v_cndmask_b32 v%d, 0, v%d, vcc" % (ONE12, V_T + 1))
        QF = 48
        for rt in range(4):
            for dt in range(2):
                acc = V_ACC + ((0 + dt) * 4 + rt) * 4
                emit_phi4(A, acc, QF + rt * 4 + dt * 2, TMP)
            A.e("v_and_b32 v%d, v%d, v%d" % (QF + rt * 4 + 2, QF + rt * 4 + 2, M48))
            A.e("v_and_b32 v%d, v%d, v%d" % (QF + rt * 4 + 3, QF + rt * 4 + 3, M48))
            A.e("s_add_u32 s%d, s%d, %d" % (S_T0, S_R0T, rt))
            A.e("s_lshl_b32 s%d, s%d, 4" % (S_T0, S_T0))
            A.e("s_add_u32 s%d, s%d, s%d" % (S_T0, S_T0, S_HEAD))
            A.e("s_lshl_b32 s%d, s%d, 10" % (S_T0, S_T0))
            A.e("s_add_u32 s%d, s%d, %d" % (S_T0, S_T0, WS_PQ))
            A.vmem("buffer_store_dwordx4 v[%d:%d], v%d, s[%d:%d], s%d offen %s" % (QF + rt * 4, QF + rt * 4 + 3, VL16, S_W, S_W + 3, S_T0, STF), "out")
        KP, VP = 64, 80
        for dt in range(2):
            for rt in range(4):
                acc = V_ACC + ((2 + dt) * 4 + rt) * 4
                d = KP + dt * 8 + rt * 2
                emit_phi4(A, acc, d, TMP)
                if dt == 1:
                    A.e("v_and_b32 v%d, v%d, v%d" % (d, d, M12))
                    A.e("v_and_b32 v%d, v%d, v%d" % (d + 1, d + 1, M12))
        for et in range(2):
            for rt in range(4):
                acc = V_ACC + ((4 + et) * 4 + rt) * 4
                d = VP + et * 8 + rt * 2
                for h in range(2):
                    A.e("v_cvt_pk_bf16_f32 v%d, v%d, v%d" % (d + h, acc + 2 * h, acc + 2 * h + 1))
                    if et == 1:
                        A.e("v_and_or_b32 v%d, v%d, v%d, v%d" % (d + h, d + h, M12, ONE12))
        A.nop(2)
        KV = 96
        for blk in range(2):
            for dt in range(2):
                for et in range(2):
                    acc = KV + (dt * 2 + et) * 4
                    a = KP + dt * 8 + blk * 4
                    b = VP + et * 8 + blk * 4
                    cin = "0" if blk == 0 else "v[%d:%d]" % (acc, acc + 3)
                    A.e("v_mfma_f32_16x16x32_bf16 v[%d:%d], v[%d:%d], v[%d:%d], %s" % (acc, acc + 3, a, a + 3, b, b + 3, cin))
        A.nop(10)
        A.e("s_lshl_b32 s%d, s%d, 5" % (S_T0, S_HEAD))
        A.e("s_lshl_b32 s%d, s%d, 1" % (S_T1, S_RB))
        A.e("s_add_u32 s%d, s%d, s%d" % (S_T0, S_T0, S_T1))
        A.e("s_add_u32 s%d, s%d, s%d" % (S_T0, S_T0, S_RH))
        A.e("s_lshl_b32 s%d, s%d, 12" % (S_T0, S_T0))
        A.e("s_add_u32 s%d, s%d, %d" % (S_T0, S_T0, WS_KVP))
        for t in range(4):
            A.vmem("buffer_store_dwordx4 v[%d:%d], v%d, s[%d:%d], s%d offen offset:%d %s" % (KV + t * 4, KV + t * 4 + 3, VL16, S_W, S_W + 3, S_T0, t * 1024, STF), "out")
    else:
        S_FT = S_T3
        if var == "FFN6":
            A.e("s_mul_i32 s%d, s%d, 10" % (S_FT, S_PI))
            A.e("s_and_b32 s%d, s%d, 2" % (S_T0, S_WAVE))
            A.e("s_add_u32 s%d, s%d, s%d" % (S_FT, S_FT, S_T0))
            A.e("s_add_u32 s%d, s%d, 32" % (S_FT, S_FT))
        else:
            A.e("s_lshl_b32 s%d, s%d, 2" % (S_T0, S_PI))
            A.e("s_mul_i32 s%d, s%d, 10" % (S_T1, S_PI))
            A.e("s_add_u32 s%d, s%d, 36" % (S_T1, S_T1))
            A.e("s_cmp_eq_u32 s%d, 0" % S_TYP)
            A.e("s_cselect_b32 s%d, s%d, s%d" % (S_FT, S_T0, S_T1))
            A.e("s_and_b32 s%d, s%d, 2" % (S_T1, S_WAVE))
            A.e("s_add_u32 s%d, s%d, s%d" % (S_FT, S_FT, S_T1))
        HP = 48
        A.e("s_lshr_b32 s%d, s%d, 1" % (S_T1, S_FT))
        A.e("s_lshl_b32 s%d, s%d, 10" % (S_T1, S_T1))
        k = 0
        for rt in range(4):
            d = HP + rt * 4
            for p in range(2):
                g = V_ACC + ((2 * p) * 4 + rt) * 4
                u = V_ACC + ((2 * p + 1) * 4 + rt) * 4
                emit_swiglu4(A, g, u, d + 2 * p, TMP + (k % 2) * 4)
                k += 1
            A.e("s_add_u32 s%d, s%d, %d" % (S_T0, S_R0T, rt))
            A.e("s_mul_i32 s%d, s%d, %d" % (S_T0, S_T0, 56 * 1024))
            A.e("s_add_u32 s%d, s%d, s%d" % (S_T0, S_T0, S_T1))
            A.vmem("buffer_store_dwordx4 v[%d:%d], v%d, s[%d:%d], s%d offen %s" % (d, d + 3, VL16, S_W, S_W + 3, S_T0, STF), "out")
        if var == "FFN6":
            A.e("s_mul_i32 s%d, s%d, 5" % (S_T1, S_PI))
            A.e("s_add_u32 s%d, s%d, 20" % (S_T1, S_T1))
            A.e("s_lshl_b32 s%d, s%d, 10" % (S_T1, S_T1))
            A.e("s_lshr_b32 s%d, s%d, 1" % (S_T2, S_WAVE))
            A.e("s_lshl_b32 s%d, s%d, 3" % (S_T2, S_T2))
            A.e("s_add_u32 s%d, s%d, s%d" % (S_T1, S_T1, S_T2))
            for rt in range(4):
                g = V_ACC + (4 * 4 + rt) * 4
                u = V_ACC + (5 * 4 + rt) * 4
                d = 64 + rt * 2
                emit_swiglu4(A, g, u, d, TMP + (k % 2) * 4)
                k += 1
                A.e("s_add_u32 s%d, s%d, %d" % (S_T0, S_R0T, rt))
                A.e("s_mul_i32 s%d, s%d, %d" % (S_T0, S_T0, 56 * 1024))
                A.e("s_add_u32 s%d, s%d, s%d" % (S_T0, S_T0, S_T1))
                A.vmem("buffer_store_dwordx2 v[%d:%d], v%d, s[%d:%d], s%d offen %s" % (d, d + 1, VL16, S_W, S_W + 3, S_T0, STF), "out")
    A.stamp()
    A.stamp(True)
    A.stamp_flush(S_W, S_WAVE, 8, WS_STAMP)

P_SW2, P_SWO, P_SOUT, P_SDBG = 28, 32, 36, 40
P_MT, P_NT = 44, 45
P_LB = 46
P_W2B = 47
P_WOB = 68
P_HB = 69
P_PB = 70
P_KVB = 71
Q_DOFF = 31
Q_L16 = 2
Q_RA = 3
Q_FLAG = 7
Q_ZOFF = 8
Q_G = 9
Q_BA = 10
Q_T = 11
Q_AF = 32
Q_BF = 64
Q_KV = 96
Q_OF = 120
Q_ACC = 128
RING = 4
SLOT = 8192
NS = 18
BFL = os.environ.get("BFL", "")

def p2_issue_w(A, step):
    slot = step % RING
    if step < 14:
        srdw = P_SW2; base = P_W2B; rowoff = (step % 3 if "k2same" in EXP else step) * 32 * 896
    else:
        srdw = P_SWO; base = P_WOB; rowoff = (step - 14) * 28 * 896
    for o in range(4):
        A.e("s_add_u32 m0, s%d, %d" % (P_LB, slot * SLOT + o * 1024))
        A.e("s_add_u32 s%d, s%d, %d" % (S_T0, base, rowoff + o * 8 * 896))
        A.vmem("buffer_load_dwordx4 v%d, s[%d:%d], s%d offen lds" % (Q_DOFF, srdw, srdw + 3, S_T0), ("w", step))

def p2_issue_b(A, step):
    slot = step % RING
    for rt in range(4):
        A.e("s_add_u32 m0, s%d, %d" % (P_LB, slot * SLOT + 4096 + rt * 1024))
        if step < 14:
            A.e("s_add_u32 s%d, s%d, %d" % (S_T0, P_HB, rt * 56 * 1024 + (step % 3 if "k2same" in EXP else step) * 1024))
        else:
            A.e("s_add_u32 s%d, s%d, %d" % (S_T0, P_PB, rt * 16 * 1024 + (step - 14) * 1024))
        A.vmem("buffer_load_dwordx4 v%d, s[%d:%d], s%d offen lds" % (Q_L16, S_W, S_W + 3, S_T0), ("b", step))

def gen_k2(A):
    A.vm = []
    A.label("k2_kernel")
    A.e("s_cmp_ge_u32 s2, 240")
    A.e("s_cbranch_scc1 K2_END")
    A.e("s_load_dwordx2 s[98:99], s[0:1], 16")
    A.e("s_load_dwordx2 s[96:97], s[0:1], 48")
    A.e("s_load_dwordx4 s[8:11], s[0:1], 64")
    A.e("s_load_dwordx2 s[14:15], s[0:1], 80")
    if "nocw" not in EXP:
        A.e("s_getpc_b64 s[100:101]")
        A.label("K2_PC")
        A.e("s_sub_u32 s100, s100, K2_PC-k2_kernel")
        A.e("s_subb_u32 s101, s101, 0")
        A.e("v_lshlrev_b32 v%d, 7, v0" % Q_T)
        A.e("v_min_u32 v%d, K2_END-k2_kernel, v%d" % (Q_T, Q_T))
        A.vmem("global_load_dword v%d, v%d, s[100:101]" % (Q_FLAG, Q_T), "cw")
    A.e("v_and_b32 v%d, 63, v0" % V_LANE)
    A.e("v_lshrrev_b32 v%d, 6, v0" % Q_T)
    A.e("s_nop 0")
    A.e("v_readfirstlane_b32 s%d, v%d" % (S_WAVE, Q_T))
    A.e("v_lshlrev_b32 v%d, 4, v%d" % (Q_L16, V_LANE))
    k1_consts(A)
    A.e("s_and_b32 s%d, s2, 7" % S_T0)
    A.e("s_lshr_b32 s%d, s2, 3" % S_IDX)
    A.e("s_sub_u32 s%d, s%d, 2" % (S_T1, S_IDX))
    A.e("s_lshl_b32 s%d, s%d, 2" % (S_T2, S_T0))
    A.e("s_and_b32 s%d, s%d, 3" % (S_T3, S_T1))
    A.e("s_add_u32 s%d, s%d, s%d" % (P_MT, S_T2, S_T3))
    A.e("s_lshr_b32 s%d, s%d, 2" % (P_NT, S_T1))
    A.e("s_waitcnt lgkmcnt(0)")
    srd(A, P_SW2, 96, 1792 * 896)
    srd(A, P_SWO, 98, 448 * 896)
    srd(A, S_W, 14, WS_SIZE)
    srd(A, P_SOUT, 8, 2048 * 896)
    srd(A, P_SDBG, 10, 256)
    A.e("s_cmp_lt_u32 s%d, 2" % S_IDX)
    A.e("s_cbranch_scc1 K2_RED")
    A.e("s_lshl_b32 s%d, s%d, 15" % (P_LB, S_WAVE))
    A.e("s_mul_i32 s%d, s%d, %d" % (S_T0, S_WAVE, 448 * 896))
    A.e("s_lshl_b32 s%d, s%d, 7" % (S_T1, P_NT))
    A.e("s_add_u32 s%d, s%d, s%d" % (P_W2B, S_T0, S_T1))
    A.e("s_mul_i32 s%d, s%d, %d" % (S_T0, S_WAVE, 112 * 896))
    A.e("s_add_u32 s%d, s%d, s%d" % (P_WOB, S_T0, S_T1))
    A.e("s_mul_i32 s%d, s%d, %d" % (S_T0, P_MT, 4 * 56 * 1024))
    A.e("s_mul_i32 s%d, s%d, %d" % (S_T1, S_WAVE, 14 * 1024))
    A.e("s_add_u32 s%d, s%d, s%d" % (P_HB, S_T0, S_T1))
    A.e("s_lshl_b32 s%d, s%d, 16" % (S_T0, P_MT))
    A.e("s_lshl_b32 s%d, s%d, 12" % (S_T1, S_WAVE))
    A.e("s_add_u32 s%d, s%d, s%d" % (S_T0, S_T0, S_T1))
    A.e("s_add_u32 s%d, s%d, %d" % (P_PB, S_T0, WS_PQ))
    A.e("s_lshl_b32 s%d, s%d, 13" % (S_T0, S_WAVE))
    A.e("s_add_u32 s%d, s%d, %d" % (P_KVB, S_T0, WS_KVF))
    t0, t1, t2 = Q_T, Q_T + 1, Q_T + 2
    A.e("v_lshrrev_b32 v%d, 3, v%d" % (t0, V_LANE))
    A.e("v_lshrrev_b32 v%d, 4, v%d" % (t1, V_LANE))
    A.e("v_lshrrev_b32 v%d, 1, v%d" % (t2, V_LANE))
    A.e("v_xor_b32 v%d, v%d, v%d" % (t1, t1, t2))
    A.e("v_and_b32 v%d, 3, v%d" % (t1, t1))
    A.e("v_lshlrev_b32 v%d, 5, v%d" % (t1, t1))
    A.e("v_mul_u32_u24 v%d, 896, v%d" % (t0, t0))
    A.e("v_and_b32 v%d, 1, v%d" % (t2, V_LANE))
    A.e("v_lshlrev_b32 v%d, 4, v%d" % (t2, t2))
    A.e("v_add3_u32 v%d, v%d, v%d, v%d" % (Q_DOFF, t0, t1, t2))
    A.nst = 0
    A.stamp()
    if STAMP:
        A.e("s_memrealtime s[100:101]")
    for st in range(3):
        p2_issue_w(A, st)
        p2_issue_b(A, st)
    global V_T
    sv = V_T
    V_T = Q_T
    for t in range(4):
        emit_raddr(A, Q_RA + t, "T4K2", t)
        A.e("v_add_u32 v%d, s%d, v%d" % (Q_RA + t, P_LB, Q_RA + t))
    V_T = sv
    A.e("v_add_u32 v%d, s%d, v%d" % (Q_BA, P_LB, Q_L16))
    A.e("v_lshrrev_b32 v%d, 4, v%d" % (Q_T, V_LANE))
    A.e("v_lshlrev_b32 v%d, 8, v%d" % (Q_T, Q_T))
    A.e("v_add_u32 v%d, %d, v%d" % (Q_ZOFF, 1024 + 12 * 16, Q_T))
    def reads(step):
        slot = step % RING
        st = step & 1
        out = []
        for rt in range(4):
            d = Q_BF + st * 16 + rt * 4
            out.append("ds_read_b128 v[%d:%d], v%d offset:%d" % (d, d + 3, Q_BA, slot * SLOT + 4096 + rt * 1024))
        for t in range(4):
            d = Q_AF + st * 16 + t * 4
            for p in range(2):
                out.append("ds_read_b64_tr_b16 v[%d:%d], v%d offset:%d" % (d + 2 * p, d + 2 * p + 1, Q_RA + t, slot * SLOT + p * 2048))
        return out
    A.wait_vm(("b", 0))
    A.stamp()
    for r in reads(0):
        A.e(r)
    for s in range(NS):
        A.c("---- k2 step %d ----" % s)
        if s in (4, 8, 11, 14):
            A.stamp()
        rd = []
        if s + 1 < NS:
            A.wait_vm(("b", s + 1), "lgkmcnt(0)")
            rd = reads(s + 1)
        else:
            A.e("s_waitcnt lgkmcnt(0)")
        if s + 3 < NS:
            if "k2now" not in EXP: p2_issue_w(A, s + 3)
            if "k2nob" not in EXP: p2_issue_b(A, s + 3)
        if "k2nord" in EXP: rd = []
        if s == 6:
            A.e("v_mov_b32 v%d, 0" % (Q_T + 2))
            A.vmem("buffer_load_dword v%d, v%d, s[%d:%d], 0 offen sc1" % (Q_FLAG, Q_T + 2, P_SDBG, P_SDBG + 3), "flag")
            A.e("v_and_b32 v%d, 15, v%d" % (Q_T + 1, V_LANE))
            A.e("v_lshlrev_b32 v%d, 2, v%d" % (Q_T + 1, Q_T + 1))
            A.e("s_lshl_b32 s%d, s%d, 8" % (S_T0, P_MT))
            A.e("s_lshl_b32 s%d, s%d, 6" % (S_T1, S_WAVE))
            A.e("s_add_u32 s%d, s%d, s%d" % (S_T0, S_T0, S_T1))
            A.e("s_add_u32 s%d, s%d, %d" % (S_T0, S_T0, WS_G))
            A.vmem("buffer_load_dword v%d, v%d, s[%d:%d], s%d offen" % (Q_G, Q_T + 1, S_W, S_W + 3, S_T0), "gate")
        if s == 11:
            A.wait_vm("gate")
            A.label("K2_CHK")
            A.e("v_readfirstlane_b32 s%d, v%d" % (S_T2, Q_FLAG))
            A.e("s_cmp_ge_u32 s%d, 16" % S_T2)
            A.e("s_cbranch_scc1 K2_KVOK")
            A.e("s_sleep 8")
            A.e("buffer_load_dword v%d, v%d, s[%d:%d], 0 offen sc1" % (Q_FLAG, Q_T + 2, P_SDBG, P_SDBG + 3))
            A.e("s_waitcnt vmcnt(0)")
            A.e("s_branch K2_CHK")
            A.label("K2_KVOK")
        def kvload(h):
            d = Q_KV + (h & 1) * 12
            A.e("s_add_u32 s%d, s%d, %d" % (S_T0, P_KVB, h * 2048))
            A.vmem("buffer_load_dwordx4 v[%d:%d], v%d, s[%d:%d], s%d offen sc1" % (d, d + 3, Q_L16, S_W, S_W + 3, S_T0), ("kv", h))
            A.vmem("buffer_load_dwordx4 v[%d:%d], v%d, s[%d:%d], s%d offen offset:1024 sc1" % (d + 4, d + 7, Q_L16, S_W, S_W + 3, S_T0), ("kv", h))
            A.vmem("buffer_load_dwordx4 v[%d:%d], v%d, s[%d:%d], s%d offen sc1" % (d + 8, d + 11, Q_ZOFF, S_W, S_W + 3, S_T0), ("kv", h))
        if s == 11:
            kvload(0); kvload(1)
        st = s & 1
        if s < 14:
            mf = []
            for t in range(4):
                for rt in range(4):
                    acc = Q_ACC + (t * 4 + rt) * 4
                    a = Q_AF + st * 16 + t * 4
                    b = Q_BF + st * 16 + rt * 4
                    cin = "0" if s == 0 else "v[%d:%d]" % (acc, acc + 3)
                    mf.append("v_mfma_f32_16x16x32_bf16 v[%d:%d], v[%d:%d], v[%d:%d], %s" % (acc, acc + 3, a, a + 3, b, b + 3, cin))
            ri = 0
            if "k2nomf" in EXP and s > 0: mf = []
            for m in mf:
                A.e(m)
                if ri < len(rd):
                    A.e(rd[ri]); ri += 1
            while ri < len(rd):
                A.e(rd[ri]); ri += 1
        else:
            h = s - 14
            A.wait_vm(("kv", h))
            if h == 0:
                A.e("v_cmp_gt_u32 vcc, 48, v%d" % V_LANE)
                A.e("s_nop 1")
                A.e("v_cndmask_b32 v%d, 0, -1, vcc" % Q_FLAG)
            kv = Q_KV + (h & 1) * 12
            ri = 0
            for half in range(2):
                for k in range(2):
                    rt = half * 2 + k
                    b = Q_BF + st * 16 + rt * 4
                    N = 12 + k * 8
                    A.e("v_mfma_f32_16x16x32_bf16 v[%d:%d], v[%d:%d], v[%d:%d], 0" % (N, N + 3, kv, kv + 3, b, b + 3))
                    if ri < len(rd): A.e(rd[ri]); ri += 1
                    A.e("v_mfma_f32_16x16x32_bf16 v[%d:%d], v[%d:%d], v[%d:%d], 0" % (N + 4, N + 7, kv + 4, kv + 7, b, b + 3))
                    if ri < len(rd): A.e(rd[ri]); ri += 1
                for k in range(2):
                    rt = half * 2 + k
                    b = Q_BF + st * 16 + rt * 4
                    N = 12 + k * 8
                    DN = Q_OF + k * 4
                    OF = Q_OF + k * 4
                    A.e("v_mfma_f32_16x16x32_bf16 v[%d:%d], v[%d:%d], v[%d:%d], 0" % (DN, DN + 3, kv + 8, kv + 11, b, b + 3))
                    if ri < len(rd): A.e(rd[ri]); ri += 1
                A.nop(8)
                for k in range(2):
                    N = 12 + k * 8
                    DN = Q_OF + k * 4
                    A.e("v_add_f32 v%d, s%d, v%d" % (28 + k, S_EPS, DN))
                for k in range(2):
                    A.e("v_rcp_f32 v%d, v%d" % (28 + k, 28 + k))
                for k in range(2):
                    N = 12 + k * 8
                    OF = Q_OF + k * 4
                    for i in range(4):
                        A.e("v_pk_mul_f32 v[%d:%d], v[%d:%d], v[28:29] op_sel:[0,%d] op_sel_hi:[1,%d]" % (N + 2 * i, N + 2 * i + 1, N + 2 * i, N + 2 * i + 1, k, k))
                    for i in range(4):
                        A.e("v_cvt_pk_bf16_f32 v%d, v%d, v%d" % (OF + i, N + 2 * i, N + 2 * i + 1))
                    A.e("v_and_b32 v%d, v%d, v%d" % (OF + 2, OF + 2, Q_FLAG))
                    A.e("v_and_b32 v%d, v%d, v%d" % (OF + 3, OF + 3, Q_FLAG))
                A.nop(2)
                for k in range(2):
                    rt = half * 2 + k
                    OF = Q_OF + k * 4
                    for t in range(4):
                        acc = Q_ACC + 64 + (t * 4 + rt) * 4
                        a = Q_AF + st * 16 + t * 4
                        cin = "0" if h == 0 else "v[%d:%d]" % (acc, acc + 3)
                        A.e("v_mfma_f32_16x16x32_bf16 v[%d:%d], v[%d:%d], v[%d:%d], %s" % (acc, acc + 3, a, a + 3, OF, OF + 3, cin))
                if half == 0:
                    A.nop(4)
            while ri < len(rd):
                A.e(rd[ri]); ri += 1
            if h + 2 < 4:
                kvload(h + 2)
    A.c("---- k2 epilogue ----")
    A.stamp()
    A.nop(10)
    A.e("s_barrier")
    A.e("s_lshl_b32 s%d, s%d, 13" % (S_T0, S_WAVE))
    A.e("v_add_u32 v%d, s%d, v%d" % (Q_T, S_T0, Q_L16))
    for rt in range(4):
        A.e("s_cmp_eq_u32 s%d, %d" % (S_WAVE, rt))
        A.e("s_cbranch_scc1 K2_SKIPW%d" % rt)
        A.e("v_add_u32 v%d, %d, v%d" % (Q_T + 1, rt * 32768, Q_T))
        for part in range(2):
            for t in range(4):
                acc = Q_ACC + part * 64 + (t * 4 + rt) * 4
                A.e("ds_write_b128 v%d, v[%d:%d] offset:%d" % (Q_T + 1, acc, acc + 3, part * 4096 + t * 1024))
        A.label("K2_SKIPW%d" % rt)
    for rt in range(4):
        A.e("s_cmp_lg_u32 s%d, %d" % (S_WAVE, rt))
        A.e("s_cbranch_scc1 K2_SKIPM%d" % rt)
        for part in range(2):
            for t in range(4):
                acc = Q_ACC + part * 64 + (t * 4 + rt) * 4
                for i in range(2):
                    A.e("v_pk_mov_b32 v[%d:%d], v[%d:%d], v[%d:%d] op_sel:[0,1]" % (32 + (part * 4 + t) * 4 + 2 * i, 33 + (part * 4 + t) * 4 + 2 * i, acc + 2 * i, acc + 2 * i + 1, acc + 2 * i, acc + 2 * i + 1))
        A.label("K2_SKIPM%d" % rt)
    A.e("s_waitcnt lgkmcnt(0)")
    A.e("s_barrier")
    A.e("s_lshl_b32 s%d, s%d, 15" % (S_T0, S_WAVE))
    A.e("v_add_u32 v%d, s%d, v%d" % (Q_T, S_T0, Q_L16))
    for k in range(1, 4):
        A.e("s_add_u32 s%d, s%d, %d" % (S_T1, S_WAVE, k))
        A.e("s_and_b32 s%d, s%d, 3" % (S_T1, S_T1))
        A.e("s_lshl_b32 s%d, s%d, 13" % (S_T1, S_T1))
        A.e("v_add_u32 v%d, s%d, v%d" % (Q_T + k, S_T1, Q_T))
        for q in range(8):
            A.e("ds_read_b128 v[%d:%d], v%d offset:%d" % (64 + (k - 1) * 32 + q * 4, 64 + (k - 1) * 32 + q * 4 + 3, Q_T + k, q * 1024))
    for k in range(1, 4):
        A.e("s_waitcnt lgkmcnt(%d)" % min(15, 8 * (3 - k)))
        for q in range(16):
            A.e("v_pk_add_f32 v[%d:%d], v[%d:%d], v[%d:%d]" % (32 + 2 * q, 33 + 2 * q, 32 + 2 * q, 33 + 2 * q, 64 + (k - 1) * 32 + 2 * q, 65 + (k - 1) * 32 + 2 * q))
    A.e("v_sub_f32 v14, 1.0, v%d" % Q_G)
    A.e("v_cvt_pk_bf16_f32 v14, v14, v14")
    A.e("v_lshlrev_b32 v14, 16, v14")
    A.e("v_mov_b32 v15, v14")
    A.e("v_mov_b32 v16, v%d" % Q_G)
    A.e("v_mov_b32 v17, v%d" % Q_G)
    A.e("v_and_b32 v18, 15, v%d" % V_LANE)
    A.e("v_mul_u32_u24 v18, 896, v18")
    A.e("v_lshrrev_b32 v19, 4, v%d" % V_LANE)
    A.e("v_lshl_add_u32 v18, v19, 3, v18")
    A.e("s_lshl_b32 s%d, s%d, 6" % (S_T0, P_MT))
    A.e("s_lshl_b32 s%d, s%d, 4" % (S_T1, S_WAVE))
    A.e("s_add_u32 s%d, s%d, s%d" % (S_T0, S_T0, S_T1))
    A.e("s_mul_i32 s%d, s%d, 896" % (S_T0, S_T0))
    A.e("s_lshl_b32 s%d, s%d, 7" % (S_T1, P_NT))
    A.e("s_add_u32 s%d, s%d, s%d" % (S_T0, S_T0, S_T1))
    X = 64
    for t in range(4):
        for h in range(2):
            bq = 32 + t * 4 + 2 * h
            aq = 48 + t * 4 + 2 * h
            A.e("v_cvt_pk_bf16_f32 v%d, v%d, v%d" % (X, bq, bq + 1))
            A.e("v_cvt_pk_bf16_f32 v%d, v%d, v%d" % (X + 1, aq, aq + 1))
            unpack2(A, X + 2, X + 3, X)
            unpack2(A, X + 4, X + 5, X + 1)
            A.e("v_pk_mul_f32 v[%d:%d], v[%d:%d], v[14:15]" % (X + 2, X + 3, X + 2, X + 3))
            A.e("v_pk_mul_f32 v[%d:%d], v[%d:%d], v[16:17]" % (X + 4, X + 5, X + 4, X + 5))
            A.e("v_cvt_pk_bf16_f32 v%d, v%d, v%d" % (X, X + 2, X + 3))
            A.e("v_cvt_pk_bf16_f32 v%d, v%d, v%d" % (X + 1, X + 4, X + 5))
            unpack2(A, X + 2, X + 3, X)
            unpack2(A, X + 4, X + 5, X + 1)
            A.e("v_pk_add_f32 v[%d:%d], v[%d:%d], v[%d:%d]" % (X + 2, X + 3, X + 2, X + 3, X + 4, X + 5))
            A.e("v_cvt_pk_bf16_f32 v%d, v%d, v%d" % (X + 8 + t * 2 + h, X + 2, X + 3))
        A.e("buffer_store_dwordx2 v[%d:%d], v18, s[%d:%d], s%d offen offset:%d" % (X + 8 + t * 2, X + 9 + t * 2, P_SOUT, P_SOUT + 3, S_T0, t * 32))
    A.stamp()
    A.stamp(True)
    A.stamp_flush(S_W, S_WAVE, 4, WS_STAMP + 0x40000)
    A.e("s_branch K2_END")

    A.label("K2_RED")
    A.vm = []
    P_HEAD = S_T3
    A.e("s_and_b32 s%d, s2, 7" % S_T0)
    A.e("s_lshl_b32 s%d, s%d, 1" % (P_HEAD, S_T0))
    A.e("s_add_u32 s%d, s%d, s%d" % (P_HEAD, P_HEAD, S_IDX))
    A.e("s_lshl_b32 s%d, s%d, 17" % (S_T0, P_HEAD))
    A.e("s_lshl_b32 s%d, s%d, 10" % (S_T1, S_WAVE))
    A.e("s_add_u32 s%d, s%d, s%d" % (S_T0, S_T0, S_T1))
    A.e("s_add_u32 s%d, s%d, %d" % (S_T0, S_T0, WS_KVP))
    for p in range(32):
        A.e("s_add_u32 s%d, s%d, %d" % (S_T1, S_T0, p * 4096))
        A.vmem("buffer_load_dwordx4 v[%d:%d], v%d, s[%d:%d], s%d offen" % (32 + p * 4, 35 + p * 4, Q_L16, S_W, S_W + 3, S_T1), ("p", p))
    A.wait_vm(("p", 1))
    A.e("v_pk_add_f32 v[32:33], v[32:33], v[36:37]")
    A.e("v_pk_add_f32 v[34:35], v[34:35], v[38:39]")
    for p in range(2, 32):
        A.wait_vm(("p", p))
        A.e("v_pk_add_f32 v[32:33], v[32:33], v[%d:%d]" % (32 + p * 4, 33 + p * 4))
        A.e("v_pk_add_f32 v[34:35], v[34:35], v[%d:%d]" % (34 + p * 4, 35 + p * 4))
    A.e("v_cvt_pk_bf16_f32 v20, v32, v33")
    A.e("v_cvt_pk_bf16_f32 v21, v34, v35")
    A.e("s_lshl_b32 s%d, s%d, 11" % (S_T0, P_HEAD))
    A.e("s_and_b32 s%d, s%d, 1" % (S_T1, S_WAVE))
    A.e("s_lshl_b32 s%d, s%d, 10" % (S_T1, S_T1))
    A.e("s_add_u32 s%d, s%d, s%d" % (S_T0, S_T0, S_T1))
    A.e("s_lshr_b32 s%d, s%d, 1" % (S_T1, S_WAVE))
    A.e("s_lshl_b32 s%d, s%d, 3" % (S_T1, S_T1))
    A.e("s_add_u32 s%d, s%d, s%d" % (S_T0, S_T0, S_T1))
    A.e("s_add_u32 s%d, s%d, %d" % (S_T0, S_T0, WS_KVF))
    A.e("buffer_store_dwordx2 v[20:21], v%d, s[%d:%d], s%d offen sc1" % (Q_L16, S_W, S_W + 3, S_T0))
    A.e("s_waitcnt vmcnt(0)")
    A.e("s_barrier")
    A.e("v_mov_b32 v22, 0x7ffffff0")
    A.e("v_cmp_eq_u32 vcc, 0, v0")
    A.e("s_nop 1")
    A.e("v_cndmask_b32 v22, v22, 0, vcc")
    A.e("v_mov_b32 v23, 1")
    A.e("buffer_atomic_add v23, v22, s[%d:%d], 0 offen sc1" % (P_SDBG, P_SDBG + 3))
    A.label("K2_END")
    A.e("s_endpgm")

def main():
    out = []
    hdr = open("cdna_kernels/%s.s.ref" % NAME).read().splitlines()
    for l in hdr:
        if l.startswith(";") and "@launch" not in l:
            out.append(l)
        elif not l.startswith(";"):
            break
    out.append("; @launch kernel=k1_kernel grid=(256,1,1) block=(512,1,1) lds=%d" % K1_LDS)
    out.append("; @launch kernel=k2_kernel grid=(240,1,1) block=(256,1,1) lds=131072")
    out.append('.amdgcn_target "amdgcn-amd-amdhsa--gfx950"')
    out.append(".text")
    A = Asm()
    A.lines.append(".globl k1_kernel\n.p2align 8\n.type k1_kernel,@function")
    gen_k1(A)
    A.lines.append(".globl k2_kernel\n.p2align 8\n.type k2_kernel,@function")
    gen_k2(A)
    out += A.lines
    out.append('.section .rodata,"a"')
    for nm, nv in (("k1_kernel", 212), ("k2_kernel", 256)):
        out.append(".p2align 6")
        out.append(".amdhsa_kernel %s" % nm)
        out.append("  .amdhsa_next_free_vgpr %d" % nv)
        out.append("  .amdhsa_next_free_sgpr 102")
        out.append("  .amdhsa_accum_offset %d" % nv)
        out.append("  .amdhsa_group_segment_fixed_size 0")
        out.append("  .amdhsa_kernarg_size 88")
        out.append("  .amdhsa_user_sgpr_count 2")
        out.append("  .amdhsa_user_sgpr_kernarg_segment_ptr 1")
        out.append("  .amdhsa_system_sgpr_workgroup_id_x 1")
        out.append(".end_amdhsa_kernel")
    dst = sys.argv[1] if len(sys.argv) > 1 else "cdna_kernels/%s.s" % NAME
    open(dst, "w").write("\n".join(out) + "\n")

main()
```

```python
import sys

NAME = "gated_mix__linear_attn_block__glu_gated_swiglu__prompt"

WS_H    = 0x000000
WS_PQ   = 0x700000
WS_KVP  = 0x900000
WS_KVF  = 0xB00000
WS_G    = 0xB10000
WS_SIZE = 0xB20000

import os
STAMP = os.environ.get("STAMP") == "1"
EXP = os.environ.get("EXP", "pf2chip_nopf_pf0")
DMAFLAGS = os.environ.get("DMAFLAGS", "")
STF = os.environ.get("STF", "")
KNAME = "k1_kernel"
PF2STEP = int(os.environ.get("PF2STEP", "12"))
POLLSLEEP = int(os.environ.get("POLLSLEEP", "16"))
WS_STAMP = 0xC00000
if STAMP:
    WS_SIZE = 0xD00000
class Asm:
    def __init__(self):
        self.lines = []
        self.vm = []
        self.nst = 0
        self.uid = 0
    def stamp(self, real=False):
        if not STAMP: return
        self.e("%s s[%d:%d]" % ("s_memrealtime" if real else "s_memtime", 76 + 2 * self.nst, 77 + 2 * self.nst))
        self.nst += 1
        assert self.nst <= 8
    def stamp_flush(self, srdw, s_wave, nwave, base):
        if not STAMP: return
        self.e("s_waitcnt lgkmcnt(0)")
        self.e("s_mul_i32 s48, s2, %d" % nwave)
        self.e("s_add_u32 s48, s48, s%d" % s_wave)
        self.e("s_lshl_b32 s48, s48, 6")
        self.e("s_add_u32 s48, s48, %d" % base)
        self.e("v_mov_b32 v20, 0")
        self.e("v_mov_b32 v21, s92")
        self.e("buffer_store_dword v21, v20, s[%d:%d], s48 offen offset:56" % (srdw, srdw + 3))
        self.e("v_mov_b32 v21, s100")
        self.e("buffer_store_dword v21, v20, s[%d:%d], s48 offen offset:60" % (srdw, srdw + 3))
        for i in range(self.nst):
            self.e("v_mov_b32 v21, s%d" % (76 + 2 * i))
            self.e("buffer_store_dword v21, v20, s[%d:%d], s48 offen offset:%d" % (srdw, srdw + 3, 4 * i))
        self.nst = 0
    def e(self, s):
        self.lines.append("    " + s)
    def c(self, s):
        self.lines.append("    ; " + s)
    def label(self, l):
        self.lines.append(l + ":")
    def vmem(self, s, tag):
        self.e(s)
        self.vm.append(tag)
    def wait_vm(self, tag, extra=""):
        idx = None
        for i, t in enumerate(self.vm):
            if t == tag:
                idx = i
        if idx is None:
            if extra:
                self.e("s_waitcnt " + extra)
            return
        n = len(self.vm) - 1 - idx
        assert n <= 63, n
        self.e("s_waitcnt vmcnt(%d) %s" % (n, extra))
        self.vm = self.vm[idx + 1:]
    def wait_vm_all(self, extra=""):
        self.e("s_waitcnt vmcnt(0) %s" % extra)
        self.vm = []
    def nop(self, n):
        while n > 0:
            k = min(n, 16)
            self.e("s_nop %d" % (k - 1))
            n -= k

def vr(b, n=1):
    return "v%d" % b if n == 1 else "v[%d:%d]" % (b, b + n - 1)
def ar(b, n=1):
    return "a%d" % b if n == 1 else "a[%d:%d]" % (b, b + n - 1)
def sr(b, n=1):
    return "s%d" % b if n == 1 else "s[%d:%d]" % (b, b + n - 1)

def srd(A, d, base, size):
    A.e("s_mov_b32 s%d, s%d" % (d, base))
    A.e("s_and_b32 s%d, s%d, 0xffff" % (d + 1, base + 1))
    A.e("s_mov_b32 s%d, 0x%x" % (d + 2, size))
    A.e("s_mov_b32 s%d, 0x00020000" % (d + 3))

LOG2E = 0x3fb8aa3b
NLOG2E = 0xbfb8aa3b
EPS = 0x358637bd

WSTG = 20480
XBASE = 4 * WSTG
XSLOT = 16384
K1_LDS = XBASE + 2 * XSLOT
WHI = 2 * WSTG

S_X, S_W, S_GW = 16, 20, 24
S_R = 28
S_CG, S_RB, S_WAVE, S_RH = 48, 49, 50, 51
S_T0, S_T1, S_T2, S_T3 = 52, 53, 54, 55
S_PI, S_TYP = 56, 57
S_R0T = 58
S_GOFF = 59
S_MSK = 60
S_NL2E = 62
S_ONE = 64
S_L2E = 66
S_EPS = 67
S_SOFF = 68
S_STR = 4
S_XO = 73
S_E = 74
S_IDX = 75

V_LANE = 1
V_DOFF = 2
V_XD = 7
V_XA = 9
V_GATE = 11
V_WA = 12
V_T = 24
V_XF = 32
V_WF = 64
V_ACC = 112
V_DUMP = 208

def k1_consts(A):
    A.e("s_mov_b32 s%d, 0xffff0000" % S_MSK)
    A.e("s_mov_b32 s%d, 0x%x" % (S_NL2E, NLOG2E))
    A.e("s_mov_b32 s%d, 0x%x" % (S_NL2E + 1, NLOG2E))
    A.e("s_mov_b32 s%d, 1.0" % S_ONE)
    A.e("s_mov_b32 s%d, 1.0" % (S_ONE + 1))
    A.e("s_mov_b32 s%d, 0x%x" % (S_L2E, LOG2E))
    A.e("s_mov_b32 s%d, 0x%x" % (S_EPS, EPS))

def unpack2(A, dlo, dhi, src):
    A.e("v_lshlrev_b32 v%d, 16, v%d" % (dlo, src))
    A.e("v_and_b32 v%d, s%d, v%d" % (dhi, S_MSK, src))

def emit_raddr(A, vdst, kind, t):
    t0, t1, t2, t3 = V_T, V_T + 1, V_T + 2, V_T + 3
    ts = str(t)
    A.e("v_lshrrev_b32 v%d, 4, v%d" % (t0, V_LANE))
    A.e("v_lshrrev_b32 v%d, 2, v%d" % (t1, V_LANE))
    A.e("v_and_b32 v%d, 3, v%d" % (t1, t1))
    A.e("v_and_b32 v%d, 3, v%d" % (t2, V_LANE))
    A.e("v_lshlrev_b32 v%d, 3, v%d" % (vdst, t2))
    A.e("v_and_b32 v%d, 1, v%d" % (t2, t0))
    if kind == "T2":
        A.e("v_lshrrev_b32 v%d, 1, v%d" % (t3, t0))
        A.e("v_lshl_add_u32 v%d, v%d, 10, v%d" % (vdst, t3, vdst))
        A.e("v_lshl_add_u32 v%d, v%d, 9, v%d" % (vdst, t2, vdst))
        A.e("v_lshl_add_u32 v%d, v%d, 6, v%d" % (vdst, t1, vdst))
        A.e("v_xor_b32 v%d, %s, v%d" % (t3, ts, t2))
        A.e("v_lshl_add_u32 v%d, v%d, 5, v%d" % (vdst, t3, vdst))
    elif kind == "T4":
        A.e("v_lshl_add_u32 v%d, v%d, 10, v%d" % (vdst, t0, vdst))
        A.e("v_lshl_add_u32 v%d, v%d, 7, v%d" % (vdst, t1, vdst))
        A.e("v_lshrrev_b32 v%d, 1, v%d" % (t3, t1))
        A.e("v_lshl_or_b32 v%d, v%d, 1, v%d" % (t3, t2, t3))
        A.e("v_xor_b32 v%d, %s, v%d" % (t3, ts, t3))
        A.e("v_lshl_add_u32 v%d, v%d, 5, v%d" % (vdst, t3, vdst))
    elif kind == "T4K2":
        A.e("v_lshrrev_b32 v%d, 1, v%d" % (t3, t0))
        A.e("v_lshl_add_u32 v%d, v%d, 10, v%d" % (vdst, t3, vdst))
        A.e("v_lshl_add_u32 v%d, v%d, 9, v%d" % (vdst, t2, vdst))
        A.e("v_lshl_add_u32 v%d, v%d, 7, v%d" % (vdst, t1, vdst))
        A.e("v_lshrrev_b32 v%d, 1, v%d" % (t3, t1))
        A.e("v_lshl_or_b32 v%d, v%d, 1, v%d" % (t3, t2, t3))
        A.e("v_xor_b32 v%d, %s, v%d" % (t3, ts, t3))
        A.e("v_lshl_add_u32 v%d, v%d, 5, v%d" % (vdst, t3, vdst))
    else:
        raise ValueError(kind)

def emit_phi4(A, src, dst, tmp):
    a = tmp; b = tmp + 4
    for h in range(2):
        A.e("v_pk_mul_f32 v[%d:%d], v[%d:%d], s[%d:%d]" % (b + 2 * h, b + 2 * h + 1, src + 2 * h, src + 2 * h + 1, S_L2E2, S_L2E2 + 1))
    for i in range(4):
        A.e("v_min_f32 v%d, 0, v%d" % (b + i, b + i))
    for i in range(4):
        A.e("v_exp_f32 v%d, v%d" % (b + i, b + i))
    for i in range(4):
        A.e("v_max_f32 v%d, 0, v%d" % (a + i, src + i))
    for h in range(2):
        A.e("v_pk_add_f32 v[%d:%d], v[%d:%d], v[%d:%d]" % (a + 2 * h, a + 2 * h + 1, a + 2 * h, a + 2 * h + 1, b + 2 * h, b + 2 * h + 1))
    for h in range(2):
        A.e("v_pk_add_f32 v[%d:%d], v[%d:%d], s[%d:%d]" % (a + 2 * h, a + 2 * h + 1, a + 2 * h, a + 2 * h + 1, S_EPS2, S_EPS2 + 1))
    for h in range(2):
        A.e("v_cvt_pk_bf16_f32 v%d, v%d, v%d" % (dst + h, a + 2 * h, a + 2 * h + 1))

def emit_swiglu4(A, g, u, dst, tmp):
    E = tmp
    for h in range(2):
        A.e("v_pk_mul_f32 v[%d:%d], v[%d:%d], s[%d:%d]" % (E + 2 * h, E + 2 * h + 1, g + 2 * h, g + 2 * h + 1, S_NL2E, S_NL2E + 1))
    for i in range(4):
        A.e("v_exp_f32 v%d, v%d" % (E + i, E + i))
    for h in range(2):
        A.e("v_pk_mul_f32 v[%d:%d], v[%d:%d], v[%d:%d]" % (g + 2 * h, g + 2 * h + 1, g + 2 * h, g + 2 * h + 1, u + 2 * h, u + 2 * h + 1))
    for h in range(2):
        A.e("v_pk_add_f32 v[%d:%d], v[%d:%d], s[%d:%d]" % (E + 2 * h, E + 2 * h + 1, E + 2 * h, E + 2 * h + 1, S_ONE, S_ONE + 1))
    for i in range(4):
        A.e("v_rcp_f32 v%d, v%d" % (E + i, E + i))
    A.e("s_nop 0")
    for h in range(2):
        A.e("v_pk_mul_f32 v[%d:%d], v[%d:%d], v[%d:%d]" % (g + 2 * h, g + 2 * h + 1, g + 2 * h, g + 2 * h + 1, E + 2 * h, E + 2 * h + 1))
    for h in range(2):
        A.e("v_cvt_pk_bf16_f32 v%d, v%d, v%d" % (dst + h, g + 2 * h, g + 2 * h + 1))

S_L2E2 = 10
S_EPS2 = 12

def sel_srd(A, d, lo_a, lo_b, size_a, size_b):
    A.e("s_cselect_b32 s%d, s%d, s%d" % (d, lo_a, lo_b))
    A.e("s_cselect_b32 s%d, s%d, s%d" % (d + 1, lo_a + 1, lo_b + 1))
    if size_a == size_b:
        A.e("s_mov_b32 s%d, 0x%x" % (d + 2, size_a))
    else:
        A.e("s_mov_b32 s%d, 0x%x" % (S_T3, size_a))
        A.e("s_cselect_b32 s%d, s%d, 0x%x" % (d + 2, S_T3, size_b))
    A.e("s_and_b32 s%d, s%d, 0xffff" % (d + 1, d + 1))
    A.e("s_mov_b32 s%d, 0x00020000" % (d + 3))

SZQ = 448 * 2688
SZG = 448 * 3584

def gen_k1(A):
    A.label(KNAME)
    if STAMP:
        A.e("s_memrealtime s[92:93]")
    A.e("s_cmp_ge_u32 s2, 256")
    A.e("s_cbranch_scc1 K1_END")
    A.e("s_load_dwordx4 s[4:7], s[0:1], 0")
    A.e("s_load_dwordx4 s[8:11], s[0:1], 32")
    A.e("s_load_dwordx2 s[12:13], s[0:1], 56")
    A.e("s_load_dwordx2 s[14:15], s[0:1], 80")
    A.e("s_load_dwordx2 s[96:97], s[0:1], 48")
    A.e("s_load_dwordx2 s[98:99], s[0:1], 16")
    if "nocw" not in EXP:
        A.e("s_getpc_b64 s[100:101]")
        A.label("K1_PC")
        A.e("s_sub_u32 s100, s100, K1_PC-%s" % KNAME)
        A.e("s_subb_u32 s101, s101, 0")
        A.e("v_lshlrev_b32 v%d, 7, v0" % V_T)
        A.e("v_min_u32 v%d, K2_END-%s, v%d" % (V_T, KNAME, V_T))
        A.vmem("global_load_dword v%d, v%d, s[100:101]" % (V_DUMP + 3, V_T), "cw")
    A.e("v_and_b32 v%d, 63, v0" % V_LANE)
    A.e("v_lshrrev_b32 v%d, 6, v0" % V_T)
    A.e("s_nop 0")
    A.e("v_readfirstlane_b32 s%d, v%d" % (S_WAVE, V_T))
    k1_consts(A)
    A.e("s_and_b32 s%d, s2, 7" % S_T0)
    A.e("s_lshr_b32 s%d, s2, 3" % S_IDX)
    A.e("s_and_b32 s%d, s%d, 3" % (S_T2, S_T0))
    A.e("s_lshl_b32 s%d, s%d, 2" % (S_T2, S_T2))
    A.e("s_and_b32 s%d, s%d, 3" % (S_T3, S_IDX))
    A.e("s_add_u32 s%d, s%d, s%d" % (S_CG, S_T2, S_T3))
    A.e("s_lshr_b32 s%d, s%d, 2" % (S_T2, S_T0))
    A.e("s_lshl_b32 s%d, s%d, 3" % (S_T2, S_T2))
    A.e("s_lshr_b32 s%d, s%d, 2" % (S_E, S_IDX))
    A.e("s_add_u32 s%d, s%d, s%d" % (S_RB, S_T2, S_E))
    A.e("s_and_b32 s%d, s%d, 1" % (S_RH, S_WAVE))
    A.e("s_and_b32 s%d, s%d, 1" % (S_TYP, S_CG))
    A.e("s_lshr_b32 s%d, s%d, 1" % (S_PI, S_CG))
    A.e("s_lshl_b32 s%d, s%d, 3" % (S_R0T, S_RB))
    A.e("s_lshl_b32 s%d, s%d, 2" % (S_T0, S_RH))
    A.e("s_add_u32 s%d, s%d, s%d" % (S_R0T, S_R0T, S_T0))
    A.e("s_waitcnt lgkmcnt(0)")
    if "pf0" in EXP:
        A.e("s_cmp_ge_u32 s%d, 4" % S_WAVE)
        A.e("s_cbranch_scc1 K1_NOPF0")
        A.e("s_and_b32 s%d, s%d, 3" % (S_T0, S_WAVE))
        A.e("s_cmp_eq_u32 s%d, 0" % S_T0); A.e("s_cselect_b64 s[%d:%d], s[4:5], s[6:7]" % (S_R, S_R + 1))
        A.e("s_cselect_b32 s%d, 56, 37" % S_T1)
        A.e("s_mov_b32 s%d, %d" % (S_T3, 2048 * 896 - 4)); A.e("s_cselect_b32 s%d, s%d, %d" % (S_T2, S_T3, SZQ - 4))
        A.e("s_cmp_eq_u32 s%d, 2" % S_T0); A.e("s_cselect_b64 s[%d:%d], s[8:9], s[%d:%d]" % (S_R, S_R + 1, S_R, S_R + 1))
        A.e("s_cmp_eq_u32 s%d, 3" % S_T0); A.e("s_cselect_b64 s[%d:%d], s[10:11], s[%d:%d]" % (S_R, S_R + 1, S_R, S_R + 1))
        A.e("s_cmp_ge_u32 s%d, 2" % S_T0); A.e("s_cselect_b32 s%d, 49, s%d" % (S_T1, S_T1))
        A.e("s_mov_b32 s%d, %d" % (S_T3, SZG - 4)); A.e("s_cselect_b32 s%d, s%d, s%d" % (S_T2, S_T3, S_T2))
        A.e("s_mul_i32 s%d, s2, s%d" % (S_T3, S_T1))
        A.e("v_min_u32 v%d, s%d, v%d" % (V_T, S_T1, V_LANE))
        A.e("v_add_u32 v%d, s%d, v%d" % (V_T, S_T3, V_T))
        A.e("v_lshlrev_b32 v%d, 7, v%d" % (V_T, V_T))
        A.e("v_min_u32 v%d, s%d, v%d" % (V_T, S_T2, V_T))
        A.e("global_load_dword v%d, v%d, s[%d:%d]" % (V_DUMP, V_T, S_R, S_R + 1))
        A.label("K1_NOPF0")
    srd(A, S_X, 4, 2048 * 896)
    srd(A, S_W, 14, WS_SIZE)
    srd(A, S_GW, 12, 896)
    A.e("s_lshl_b32 s%d, s%d, 7" % (S_T0, S_RB))
    A.e("s_lshl_b32 s%d, s%d, 3" % (S_T1, S_CG))
    A.e("s_add_u32 s%d, s%d, s%d" % (S_T0, S_T0, S_T1))
    A.e("s_add_u32 s%d, s%d, s%d" % (S_T0, S_T0, S_WAVE))
    A.e("s_mul_i32 s%d, s%d, 896" % (S_T1, S_T0))
    A.e("v_lshlrev_b32 v%d, 4, v%d" % (V_T, V_LANE))
    A.e("v_mov_b32 v%d, 0x7ffffff0" % (V_T + 1))
    A.e("v_cmp_gt_u32 vcc, 56, v%d" % V_LANE)
    A.e("s_nop 1")
    A.e("v_cndmask_b32 v%d, v%d, v%d, vcc" % (V_T, V_T + 1, V_T))
    A.vmem("buffer_load_dwordx4 v[96:99], v%d, s[%d:%d], s%d offen" % (V_T, S_X, S_X + 3, S_T1), "gate")
    A.vmem("buffer_load_dwordx4 v[100:103], v%d, s[%d:%d], 0 offen" % (V_T, S_GW, S_GW + 3), "gate")
    A.e("s_lshl_b32 s%d, s%d, 2" % (S_GOFF, S_T0))
    A.e("s_cmp_eq_u32 s%d, 0" % S_TYP)
    sel_srd(A, S_R + 0, 6, 8, SZQ, SZG)
    A.e("s_cmp_eq_u32 s%d, 0" % S_TYP)
    sel_srd(A, S_R + 4, 6, 8, SZQ, SZG)
    A.e("s_cmp_eq_u32 s%d, 0" % S_TYP)
    sel_srd(A, S_R + 8, 6, 10, SZQ, SZG)
    A.e("s_cmp_eq_u32 s%d, 0" % S_TYP)
    sel_srd(A, S_R + 12, 8, 10, SZG, SZG)
    A.e("s_lshr_b32 s%d, s%d, 1" % (S_T0, S_WAVE))
    A.e("s_and_b32 s%d, s%d, 1" % (S_T0, S_T0))
    A.e("s_xor_b32 s%d, s%d, 1" % (S_T0, S_T0))
    A.e("s_and_b32 s%d, s%d, s%d" % (S_T0, S_T0, S_TYP))
    A.e("s_cmp_eq_u32 s%d, 1" % S_T0)
    sel_srd(A, S_R + 16, 8, 10, SZG, SZG)
    t0, t1, t2 = V_T, V_T + 1, V_T + 2
    A.e("v_and_b32 v%d, 15, v%d" % (t0, V_LANE))
    A.e("v_lshrrev_b32 v%d, 1, v%d" % (t1, t0))
    A.e("v_lshrrev_b32 v%d, 4, v%d" % (t2, V_LANE))
    A.e("v_xor_b32 v%d, v%d, v%d" % (t1, t1, t2))
    A.e("s_lshl_b32 s%d, s%d, 6" % (S_T0, S_RH))
    A.e("v_add_u32 v%d, s%d, v%d" % (t0, S_T0, t0))
    A.e("v_lshlrev_b32 v%d, 7, v%d" % (t0, t0))
    A.e("v_lshl_add_u32 v%d, v%d, 4, v%d" % (t0, t1, t0))
    A.e("v_add_u32 v%d, %d, v%d" % (V_XA, XBASE, t0))
    A.e("v_xor_b32 v%d, 64, v%d" % (V_XA + 1, V_XA))
    A.e("s_cmp_ge_u32 s%d, 4" % S_WAVE)
    A.e("s_cbranch_scc1 K1_DMAW")
    A.e("s_cmp_eq_u32 s%d, 0" % S_TYP)
    A.e("s_cbranch_scc1 K1_QKV6")
    base_vm = list(A.vm)
    for var in ("FFN6", "QKV6"):
        A.vm = list(base_vm)
        A.label("K1_" + var)
        gen_k1_var(A, var)
        A.e("s_branch K1_END")
    A.vm = list(base_vm)
    A.label("K1_DMAW")
    k1_dma_setup(A)
    gen_k1_var(A, "FFN4")
    A.label("K1_END")
    A.e("s_endpgm")

def k1_dma_setup(A):
    t0, t1, t2, t3 = V_T, V_T + 1, V_T + 2, V_T + 3
    SJ = S_T2
    A.e("s_and_b32 s%d, s%d, 3" % (SJ, S_WAVE))
    A.e("v_lshrrev_b32 v%d, 3, v%d" % (t0, V_LANE))
    A.e("v_lshrrev_b32 v%d, 4, v%d" % (t1, V_LANE))
    A.e("v_and_b32 v%d, 1, v%d" % (t1, t1))
    A.e("s_and_b32 s%d, s%d, 1" % (S_T3, SJ))
    A.e("s_lshl_b32 s%d, s%d, 1" % (S_T3, S_T3))
    A.e("v_or_b32 v%d, s%d, v%d" % (t1, S_T3, t1))
    A.e("v_lshrrev_b32 v%d, 1, v%d" % (t2, V_LANE))
    A.e("v_and_b32 v%d, 3, v%d" % (t2, t2))
    A.e("v_xor_b32 v%d, v%d, v%d" % (t1, t1, t2))
    A.e("v_and_b32 v%d, 1, v%d" % (t2, V_LANE))
    A.e("v_lshlrev_b32 v%d, 4, v%d" % (t2, t2))
    A.e("s_lshl_b32 s%d, s%d, 3" % (S_T3, SJ))
    A.e("v_add_u32 v%d, s%d, v%d" % (t0, S_T3, t0))
    A.e("v_lshl_add_u32 v%d, v%d, 5, v%d" % (t3, t1, t2))
    A.e("v_lshrrev_b32 v%d, 1, v%d" % (t1, t1))
    A.e("v_lshlrev_b32 v%d, 3, v%d" % (t1, t1))
    A.e("v_sub_u32 v%d, v%d, v%d" % (t1, t3, t1))
    A.e("v_mul_u32_u24 v%d, 2688, v%d" % (t2, t0))
    A.e("v_add_u32 v%d, v%d, v%d" % (t1, t1, t2))
    A.e("v_mul_u32_u24 v%d, 3584, v%d" % (t2, t0))
    A.e("v_add_u32 v%d, v%d, v%d" % (t3, t3, t2))
    A.e("s_mul_i32 s%d, s%d, 112" % (S_T0, S_PI))
    A.e("s_mul_i32 s%d, s%d, 320" % (S_T1, S_PI))
    A.e("s_add_u32 s%d, s%d, 1024" % (S_T1, S_T1))
    A.e("s_cmp_eq_u32 s%d, 0" % S_TYP)
    A.e("s_cselect_b64 vcc, -1, 0")
    for r in range(3):
        A.e("v_add_u32 v%d, s%d, v%d" % (V_DOFF + r, S_T0, t1))
        A.e("v_add_u32 v%d, %d, v%d" % (V_DOFF + r, r * 896, V_DOFF + r))
        A.e("v_add_u32 v%d, s%d, v%d" % (t2, S_T1, t3))
        if r == 1:
            A.e("v_add_u32 v%d, 128, v%d" % (t2, t2))
        A.e("v_cndmask_b32 v%d, v%d, v%d, vcc" % (V_DOFF + r, t2, V_DOFF + r))
    A.e("s_lshl_b32 s%d, s%d, 7" % (S_T0, S_PI))
    A.e("v_add_u32 v%d, s%d, v%d" % (V_DOFF + 3, S_T0, t3))
    A.e("v_add_u32 v%d, s%d, v%d" % (t2, S_T1, t3))
    A.e("v_add_u32 v%d, 128, v%d" % (t2, t2))
    A.e("v_cndmask_b32 v%d, v%d, v%d, vcc" % (V_DOFF + 3, t2, V_DOFF + 3))
    A.e("v_add_u32 v%d, s%d, v%d" % (V_DOFF + 4, S_T0, t3))
    A.e("v_lshrrev_b32 v%d, 2, v%d" % (t0, V_LANE))
    A.e("s_and_b32 s%d, s%d, 1" % (S_T3, SJ))
    A.e("s_lshl_b32 s%d, s%d, 4" % (S_T3, S_T3))
    A.e("v_add_u32 v%d, s%d, v%d" % (t0, S_T3, t0))
    A.e("v_mul_u32_u24 v%d, 3584, v%d" % (t0, t0))
    A.e("v_lshrrev_b32 v%d, 1, v%d" % (t1, V_LANE))
    A.e("v_lshrrev_b32 v%d, 5, v%d" % (t2, V_LANE))
    A.e("v_xor_b32 v%d, v%d, v%d" % (t1, t1, t2))
    A.e("v_and_b32 v%d, 1, v%d" % (t1, t1))
    A.e("v_lshl_add_u32 v%d, v%d, 5, v%d" % (t0, t1, t0))
    A.e("v_and_b32 v%d, 1, v%d" % (t1, V_LANE))
    A.e("v_lshl_add_u32 v%d, v%d, 4, v%d" % (t0, t1, t0))
    A.e("v_add_u32 v%d, s%d, v%d" % (t0, S_T1, t0))
    A.e("v_add_u32 v%d, 256, v%d" % (t0, t0))
    A.e("v_cndmask_b32 v%d, v%d, v%d, vcc" % (V_DOFF + 4, t0, V_DOFF + 4))
    A.e("s_cmp_eq_u32 s%d, 0" % S_TYP)
    A.e("s_mov_b32 s%d, %d" % (S_T3, 32 * 2688))
    A.e("s_cselect_b32 s%d, s%d, %d" % (S_STR, S_T3, 32 * 3584))
    for r in range(5):
        A.e("s_mov_b32 s%d, 0" % (S_SOFF + r))
    A.e("v_lshrrev_b32 v%d, 3, v%d" % (t0, V_LANE))
    A.e("v_lshrrev_b32 v%d, 4, v%d" % (t1, V_LANE))
    A.e("v_and_b32 v%d, 7, v%d" % (t2, V_LANE))
    A.e("v_xor_b32 v%d, v%d, v%d" % (t1, t1, t2))
    A.e("v_mul_u32_u24 v%d, 896, v%d" % (t0, t0))
    A.e("v_lshl_add_u32 v%d, v%d, 4, v%d" % (V_XD, t1, t0))
    A.e("v_xor_b32 v%d, 64, v%d" % (V_XD + 1, V_XD))
    A.e("s_lshl_b32 s%d, s%d, 7" % (S_T0, S_RB))
    A.e("s_lshl_b32 s%d, s%d, 5" % (S_T1, SJ))
    A.e("s_add_u32 s%d, s%d, s%d" % (S_T0, S_T0, S_T1))
    A.e("s_mul_i32 s%d, s%d, 896" % (S_XO, S_T0))
    A.e("s_lshl_b32 s%d, s%d, 10" % (S_STR + 1, SJ))
    A.e("s_lshl_b32 s%d, s%d, 12" % (S_STR + 2, SJ))
    A.e("s_add_u32 s%d, s%d, %d" % (S_STR + 2, S_STR + 2, XBASE))

def k1_touch_setup(A):
    t0, t1, t2, t3 = V_T, V_T + 1, V_T + 2, V_T + 3
    A.e("v_lshrrev_b32 v%d, 3, v%d" % (t0, V_LANE))
    A.e("v_and_b32 v%d, 7, v%d" % (t1, V_LANE))
    A.e("v_mov_b32 v%d, 0x7ffffff0" % (V_T + 4))
    A.e("s_cmp_eq_u32 s%d, 3" % S_WAVE)
    A.e("s_cbranch_scc1 K1_TS_X%d" % A.uid)
    A.e("s_cmp_eq_u32 s%d, 0" % S_TYP)
    A.e("s_cbranch_scc0 K1_TS_F%d" % A.uid)
    A.e("s_cmp_eq_u32 s%d, 0" % S_WAVE)
    A.e("s_cbranch_scc0 K1_TS_PG%d" % A.uid)
    srd(A, S_R, 6, SZQ)
    A.e("v_lshrrev_b32 v%d, 1, v%d" % (t2, t1))
    A.e("v_mul_u32_u24 v%d, 896, v%d" % (t2, t2))
    A.e("v_and_b32 v%d, 1, v%d" % (t3, t1))
    A.e("v_mul_u32_u24 v%d, 116, v%d" % (t3, t3))
    A.e("v_mul_u32_u24 v%d, 2688, v%d" % (t0, t0))
    A.e("v_add3_u32 v%d, v%d, v%d, v%d" % (V_DOFF, t0, t2, t3))
    A.e("v_cmp_gt_u32 vcc, 6, v%d" % t1)
    A.e("s_mul_i32 s%d, s%d, 112" % (S_SOFF, S_PI))
    A.e("s_mul_i32 s%d, s%d, %d" % (S_T0, S_E, 8 * 2688))
    A.e("s_add_u32 s%d, s%d, s%d" % (S_SOFF, S_SOFF, S_T0))
    A.e("s_mov_b32 s%d, %d" % (S_STR, 64 * 2688))
    A.e("s_branch K1_TS_END%d" % A.uid)
    A.label("K1_TS_PG%d" % A.uid)
    A.e("s_cmp_eq_u32 s%d, 1" % S_WAVE)
    sel_srd(A, S_R, 8, 10, SZG, SZG)
    A.e("v_mul_u32_u24 v%d, 3584, v%d" % (V_DOFF, t0))
    if "t64" in EXP:
        A.e("v_lshl_add_u32 v%d, v%d, 6, v%d" % (V_DOFF, t1, V_DOFF))
        A.e("v_cmp_gt_u32 vcc, 2, v%d" % t1)
    else:
        A.e("v_cmp_gt_u32 vcc, 1, v%d" % t1)
    A.e("s_lshl_b32 s%d, s%d, 7" % (S_SOFF, S_PI))
    A.e("s_mul_i32 s%d, s%d, %d" % (S_T0, S_E, 8 * 3584))
    A.e("s_add_u32 s%d, s%d, s%d" % (S_SOFF, S_SOFF, S_T0))
    A.e("s_mov_b32 s%d, %d" % (S_STR, 64 * 3584))
    A.e("s_branch K1_TS_END%d" % A.uid)
    A.label("K1_TS_F%d" % A.uid)
    A.e("s_cmp_eq_u32 s%d, 0" % S_WAVE)
    sel_srd(A, S_R, 8, 10, SZG, SZG)
    A.e("v_lshlrev_b32 v%d, %d, v%d" % (t2, 6 if "t64" in EXP else 7, t1))
    A.e("v_min_u32 v%d, 316, v%d" % (t2, t2))
    A.e("v_mul_u32_u24 v%d, 3584, v%d" % (t0, t0))
    A.e("v_add_u32 v%d, v%d, v%d" % (V_DOFF, t0, t2))
    A.e("s_cmp_lt_u32 s%d, 2" % S_WAVE)
    A.e("s_cselect_b32 s%d, %d, 0" % (S_T0, 6 if "t64" in EXP else 4))
    A.e("v_cmp_gt_u32 vcc, s%d, v%d" % (S_T0, t1))
    A.e("s_mul_i32 s%d, s%d, 320" % (S_SOFF, S_PI))
    A.e("s_add_u32 s%d, s%d, 1024" % (S_SOFF, S_SOFF))
    A.e("s_mul_i32 s%d, s%d, %d" % (S_T0, S_E, 8 * 3584))
    A.e("s_add_u32 s%d, s%d, s%d" % (S_SOFF, S_SOFF, S_T0))
    A.e("s_mov_b32 s%d, %d" % (S_STR, 64 * 3584))
    A.e("s_branch K1_TS_END%d" % A.uid)
    A.label("K1_TS_X%d" % A.uid)
    srd(A, S_R, 4, 2048 * 896)
    if "t64" in EXP:
        A.e("v_lshrrev_b32 v%d, 1, v%d" % (t2, V_LANE))
        A.e("v_mul_u32_u24 v%d, 896, v%d" % (V_DOFF, t2))
        A.e("v_and_b32 v%d, 1, v%d" % (t2, V_LANE))
        A.e("v_lshl_add_u32 v%d, v%d, 6, v%d" % (V_DOFF, t2, V_DOFF))
        A.e("v_cmp_gt_u32 vcc, 64, v%d" % V_LANE)
    else:
        A.e("v_mul_u32_u24 v%d, 896, v%d" % (V_DOFF, V_LANE))
        A.e("v_cmp_gt_u32 vcc, 32, v%d" % V_LANE)
    A.e("s_lshl_b32 s%d, s%d, 7" % (S_T0, S_RB))
    A.e("s_and_b32 s%d, s%d, 3" % (S_T1, S_IDX))
    A.e("s_lshl_b32 s%d, s%d, 5" % (S_T1, S_T1))
    A.e("s_add_u32 s%d, s%d, s%d" % (S_T0, S_T0, S_T1))
    A.e("s_mul_i32 s%d, s%d, 896" % (S_SOFF, S_T0))
    A.e("s_mov_b32 s%d, 128" % S_STR)
    A.label("K1_TS_END%d" % A.uid)
    A.e("s_nop 1")
    A.e("v_cndmask_b32 v%d, v%d, v%d, vcc" % (V_DOFF, V_T + 4, V_DOFF))
    A.uid += 1

def k1_prefetch0(A):
    T = V_T
    A.e("s_lshl_b32 s%d, s%d, 1" % (S_T0, S_WAVE))
    A.e("s_cmp_eq_u32 s%d, 0" % S_WAVE); A.e("s_cselect_b32 s%d, s4, s6" % S_T1); A.e("s_cselect_b32 s%d, s5, s7" % S_T2)
    A.e("s_cmp_eq_u32 s%d, 2" % S_WAVE); A.e("s_cselect_b32 s%d, s8, s%d" % (S_T1, S_T1)); A.e("s_cselect_b32 s%d, s9, s%d" % (S_T2, S_T2))
    A.e("s_cmp_eq_u32 s%d, 3" % S_WAVE); A.e("s_cselect_b32 s%d, s10, s%d" % (S_T1, S_T1)); A.e("s_cselect_b32 s%d, s11, s%d" % (S_T2, S_T2))
    A.e("s_mov_b32 s%d, s%d" % (S_R + 4, S_T1))
    A.e("s_and_b32 s%d, s%d, 0xffff" % (S_R + 5, S_T2))
    A.e("s_mov_b32 s%d, %d" % (S_T3, SZQ))
    A.e("s_cmp_eq_u32 s%d, 1" % S_WAVE); A.e("s_cselect_b32 s%d, s%d, %d" % (S_R + 6, S_T3, SZG))
    A.e("s_mov_b32 s%d, %d" % (S_T3, 2048 * 896))
    A.e("s_cmp_eq_u32 s%d, 0" % S_WAVE); A.e("s_cselect_b32 s%d, s%d, s%d" % (S_R + 6, S_T3, S_R + 6))
    A.e("s_mov_b32 s%d, 0x00020000" % (S_R + 7))
    A.e("s_mov_b32 s%d, 49" % S_T3)
    A.e("s_cmp_eq_u32 s%d, 1" % S_WAVE); A.e("s_cselect_b32 s%d, 37, s%d" % (S_T3, S_T3))
    A.e("s_cmp_eq_u32 s%d, 0" % S_WAVE); A.e("s_cselect_b32 s%d, 56, s%d" % (S_T3, S_T3))
    A.e("s_mul_i32 s%d, s%d, s2" % (S_T1, S_T3))
    A.e("s_lshl_b32 s%d, s%d, 7" % (S_T1, S_T1))
    A.e("v_lshlrev_b32 v%d, 7, v%d" % (T, V_LANE))
    A.e("v_mov_b32 v%d, 0x7ffffff0" % (T + 1))
    A.e("v_cmp_gt_u32 vcc, s%d, v%d" % (S_T3, V_LANE))
    A.e("s_nop 1")
    A.e("v_cndmask_b32 v%d, v%d, v%d, vcc" % (T, T + 1, T))
    A.vmem("buffer_load_dword v%d, v%d, s[%d:%d], s%d offen" % (V_DUMP, T, S_R + 4, S_R + 7, S_T1), "pf")

def k1_prefetch2(A):
    T = V_T
    srd(A, S_GW, 96, 1792 * 896)
    if "pf2chip" in EXP:
        A.e("s_lshl_b32 s%d, s2, 2" % S_T0)
        A.e("s_add_u32 s%d, s%d, s%d" % (S_T0, S_T0, S_WAVE))
        A.e("s_mul_i32 s%d, s%d, %d" % (S_T1, S_T0, 13 * 128))
        A.e("v_lshlrev_b32 v%d, 7, v%d" % (T, V_LANE))
        A.e("v_mov_b32 v%d, 0x7ffffff0" % (T + 1))
        A.e("v_cmp_gt_u32 vcc, 13, v%d" % V_LANE)
        A.e("s_nop 1")
        A.e("v_cndmask_b32 v%d, v%d, v%d, vcc" % (T + 2, T + 1, T))
        A.vmem("buffer_load_dword v%d, v%d, s[%d:%d], s%d offen" % (V_DUMP, T + 2, S_GW, S_GW + 3, S_T1), "pf")
        srd(A, S_R + 4, 98, 448 * 896)
        A.e("s_mul_i32 s%d, s%d, %d" % (S_T1, S_T0, 4 * 128))
        A.e("v_cmp_gt_u32 vcc, 4, v%d" % V_LANE)
        A.e("s_nop 1")
        A.e("v_cndmask_b32 v%d, v%d, v%d, vcc" % (T + 2, T + 1, T))
        A.vmem("buffer_load_dword v%d, v%d, s[%d:%d], s%d offen" % (V_DUMP + 2, T + 2, S_R + 4, S_R + 7, S_T1), "pf")
        return
    A.e("s_lshl_b32 s%d, s%d, 2" % (S_T0, S_IDX))
    A.e("s_add_u32 s%d, s%d, s%d" % (S_T0, S_T0, S_WAVE))
    A.e("s_mul_i32 s%d, s%d, %d" % (S_T1, S_T0, 98 * 128))
    A.e("v_lshlrev_b32 v%d, 7, v%d" % (T, V_LANE))
    A.vmem("buffer_load_dword v%d, v%d, s[%d:%d], s%d offen" % (V_DUMP, T, S_GW, S_GW + 3, S_T1), "pf")
    A.e("v_mov_b32 v%d, 0x7ffffff0" % (T + 1))
    A.e("v_cmp_gt_u32 vcc, 34, v%d" % V_LANE)
    A.e("s_nop 1")
    A.e("v_cndmask_b32 v%d, v%d, v%d, vcc" % (T + 2, T + 1, T))
    A.e("s_add_u32 s%d, s%d, %d" % (S_T1, S_T1, 64 * 128))
    A.vmem("buffer_load_dword v%d, v%d, s[%d:%d], s%d offen" % (V_DUMP + 1, T + 2, S_GW, S_GW + 3, S_T1), "pf")
    srd(A, S_R + 4, 98, 448 * 896)
    A.e("s_mul_i32 s%d, s%d, %d" % (S_T1, S_T0, 25 * 128))
    A.e("v_cmp_gt_u32 vcc, 25, v%d" % V_LANE)
    A.e("s_nop 1")
    A.e("v_cndmask_b32 v%d, v%d, v%d, vcc" % (T + 2, T + 1, T))
    A.vmem("buffer_load_dword v%d, v%d, s[%d:%d], s%d offen" % (V_DUMP + 2, T + 2, S_R + 4, S_R + 7, S_T1), "pf")

def gen_k1_var(A, var):
    dma = var.startswith("FFN4")
    nt = 6 if var.endswith("6") else 4
    poffs = [512] * 6
    if var == "FFN6":
        poffs = [512, 512, 512, 512, 256, 256]
    if var == "QKV6":
        A.e("s_and_b32 s%d, s%d, 2" % (S_T0, S_WAVE))
        for i in range(2):
            A.e("s_add_u32 s%d, s%d, %d" % (S_T1, S_T0, i))
            emit_raddr(A, V_WA + i, "T4", "s%d" % S_T1)
        for m in (1, 2):
            for i in range(2):
                A.e("v_add_u32 v%d, %d, v%d" % (V_WA + 2 * m + i, m * 4096, V_WA + i))
    elif var == "FFN6":
        A.e("s_and_b32 s%d, s%d, 2" % (S_T0, S_WAVE))
        for p in range(2):
            A.e("s_add_u32 s%d, s%d, %d" % (S_T1, S_T0, p))
            emit_raddr(A, V_WA + 2 * p, "T4", "s%d" % S_T1)
            A.e("v_add_u32 v%d, 8192, v%d" % (V_WA + 2 * p + 1, V_WA + 2 * p))
        A.e("s_lshr_b32 s%d, s%d, 1" % (S_T1, S_WAVE))
        emit_raddr(A, V_WA + 4, "T2", "s%d" % S_T1)
        A.e("v_add_u32 v%d, 16384, v%d" % (V_WA + 4, V_WA + 4))
        A.e("v_add_u32 v%d, 2048, v%d" % (V_WA + 5, V_WA + 4))
    elif var == "FFN4":
        A.e("s_and_b32 s%d, s%d, 2" % (S_T0, S_WAVE))
        A.e("s_cmp_eq_u32 s%d, 0" % S_TYP)
        A.e("s_cselect_b32 s%d, 3, 1" % S_T3)
        A.e("s_cselect_b32 s%d, 1, 2" % S_T2)
        A.e("s_lshl_b32 s%d, s%d, 12" % (S_STR + 4, S_T3))
        A.e("s_lshl_b32 s%d, s%d, 12" % (S_STR + 3, S_T2))
        for p in range(2):
            A.e("s_add_u32 s%d, s%d, %d" % (S_T1, S_T0, p))
            emit_raddr(A, V_WA + 2 * p, "T4", "s%d" % S_T1)
            A.e("v_add_u32 v%d, s%d, v%d" % (V_WA + 2 * p, S_STR + 4, V_WA + 2 * p))
            A.e("v_add_u32 v%d, s%d, v%d" % (V_WA + 2 * p + 1, S_STR + 3, V_WA + 2 * p))
    for i in range(nt):
        A.e("v_add_u32 v%d, %d, v%d" % (V_WA + 6 + i, WHI, V_WA + i))
    if not dma:
        if "nopf" not in EXP:
            k1_touch_setup(A)

    def issue_w(stage):
        slot = stage % 4
        for r in range(5):
            A.e("s_add_u32 m0, s%d, %d" % (S_STR + 1, slot * WSTG + r * 4096))
            A.e("s_nop 0")
            A.vmem("buffer_load_dwordx4 v%d, s[%d:%d], s%d offen lds" % (V_DOFF + r, S_R + 4 * r, S_R + 4 * r + 3, S_SOFF + r), ("st", stage))
            if r < 3:
                A.e("s_add_u32 s%d, s%d, s%d" % (S_SOFF + r, S_SOFF + r, S_STR))
            else:
                A.e("s_add_u32 s%d, s%d, %d" % (S_SOFF + r, S_SOFF + r, 32 * 3584))
    def issue_x(d):
        for i in range(4):
            A.e("s_add_u32 m0, s%d, %d" % (S_STR + 2, (d % 2) * XSLOT + i * 1024))
            A.e("s_add_u32 s%d, s%d, %d" % (S_T0, S_XO, i * 8 * 896 + d * 128))
            A.vmem("buffer_load_dwordx4 v%d, s[%d:%d], s%d offen lds" % (V_XD + (i & 1), S_X, S_X + 3, S_T0), ("x", d))
    def touch(d):
        A.e("s_mul_i32 s%d, s%d, %d" % (S_T0, S_STR, d))
        A.e("s_add_u32 s%d, s%d, s%d" % (S_T0, S_T0, S_SOFF))
        A.vmem("buffer_load_dword v%d, v%d, s[%d:%d], s%d offen" % (V_DUMP + 3, V_DOFF, S_R, S_R + 3, S_T0), "pf")
    def read_list(stage):
        slot = stage % 4
        st = stage & 1
        hi = 1 if slot >= 2 else 0
        base = (slot - 2 * hi) * WSTG
        out = []
        d = stage // 2
        for rt in range(4):
            out.append("ds_read_b128 v[%d:%d], v%d offset:%d" % (V_XF + st * 16 + rt * 4, V_XF + st * 16 + rt * 4 + 3, V_XA + (stage & 1), (d % 2) * XSLOT + rt * 2048))
        for ti in range(nt):
            dd = V_WF + st * 24 + ti * 4
            for p in range(2):
                out.append("ds_read_b64_tr_b16 v[%d:%d], v%d offset:%d" % (dd + 2 * p, dd + 2 * p + 1, V_WA + ti + 6 * hi, base + p * poffs[ti]))
        return out

    A.nst = 0
    A.stamp()
    if STAMP:
        A.e("s_memrealtime s[100:101]")
    NK = 14
    if dma:
        issue_x(0); issue_w(0); issue_w(1); issue_x(1); issue_w(2)
    else:
        if "nopf" not in EXP and "latepf" not in EXP:
            for d in (1, 2, 3):
                touch(d)
    A.wait_vm("gate")
    T = V_T
    A.e("v_mov_b32 v%d, 0" % V_GATE)
    for d in range(4):
        unpack2(A, T, T + 1, 96 + d)
        unpack2(A, T + 2, T + 3, 100 + d)
        A.e("v_pk_mul_f32 v[%d:%d], v[%d:%d], v[%d:%d]" % (T, T + 1, T, T + 1, T + 2, T + 3))
        A.e("v_cvt_pk_bf16_f32 v%d, v%d, v%d" % (T + 4, T, T + 1))
        unpack2(A, T, T + 1, T + 4)
        A.e("v_add_f32 v%d, v%d, v%d" % (V_GATE, V_GATE, T))
        A.e("v_add_f32 v%d, v%d, v%d" % (V_GATE, V_GATE, T + 1))
    for mod in ("quad_perm:[1,0,3,2]", "quad_perm:[2,3,0,1]", "row_half_mirror", "row_mirror"):
        A.e("s_nop 1")
        A.e("v_add_f32_dpp v%d, v%d, v%d %s row_mask:0xf bank_mask:0xf" % (V_GATE, V_GATE, V_GATE, mod))
    A.e("s_nop 1")
    A.e("v_readlane_b32 s%d, v%d, 16" % (S_T0, V_GATE))
    A.e("v_readlane_b32 s%d, v%d, 32" % (S_T1, V_GATE))
    A.e("v_readlane_b32 s%d, v%d, 48" % (S_T2, V_GATE))
    A.e("s_nop 1")
    A.e("v_add_f32 v%d, s%d, v%d" % (V_GATE, S_T0, V_GATE))
    A.e("v_add_f32 v%d, s%d, v%d" % (V_GATE, S_T1, V_GATE))
    A.e("v_add_f32 v%d, s%d, v%d" % (V_GATE, S_T2, V_GATE))
    A.e("v_cvt_pk_bf16_f32 v%d, v%d, v%d" % (V_GATE, V_GATE, V_GATE))
    A.e("v_lshlrev_b32 v%d, 16, v%d" % (V_GATE, V_GATE))
    A.e("v_mul_f32 v%d, s%d, v%d" % (V_GATE, S_NL2E, V_GATE))
    A.e("v_exp_f32 v%d, v%d" % (V_GATE, V_GATE))
    A.e("s_nop 0")
    A.e("v_add_f32 v%d, 1.0, v%d" % (V_GATE, V_GATE))
    A.e("v_rcp_f32 v%d, v%d" % (V_GATE, V_GATE))
    A.e("s_nop 0")
    A.e("v_cvt_pk_bf16_f32 v%d, v%d, v%d" % (V_GATE, V_GATE, V_GATE))
    A.e("v_lshlrev_b32 v%d, 16, v%d" % (V_GATE, V_GATE))

    def wait_stage(stage, extra=""):
        if dma:
            tags = [("st", stage), ("x", stage // 2)]
            idx = None
            for i, t in enumerate(A.vm):
                if t in tags: idx = i
            if idx is None:
                if extra: A.e("s_waitcnt " + extra)
            else:
                n = len(A.vm) - 1 - idx
                A.e("s_waitcnt vmcnt(%d) %s" % (n, extra))
                A.vm = A.vm[idx + 1:]
        elif extra:
            A.e("s_waitcnt " + extra)

    wait_stage(0)
    A.e("s_barrier")
    if not dma and "latepf" in EXP:
        for d in (1, 2, 3):
            touch(d)
    for r in read_list(0):
        A.e(r)
    for s in range(NK):
        A.c("---- step %d ----" % s)
        if s in (1, 8):
            A.stamp()
        if s + 1 < NK:
            wait_stage(s + 1, "lgkmcnt(0)")
            A.e("s_barrier")
        else:
            A.e("s_waitcnt lgkmcnt(0)")
        if dma:
            if s + 3 < NK:
                issue_w(s + 3)
            if s % 2 == 1 and (s + 3) // 2 < 7:
                issue_x((s + 3) // 2)
        else:
            if s % 2 == 0 and s // 2 + 4 < 7 and "nopf" not in EXP:
                touch(s // 2 + 4)
            if s == PF2STEP and "nopf2" not in EXP:
                k1_prefetch2(A)
        reads = read_list(s + 1) if s + 1 < NK else []
        st = s & 1
        mf = []
        for ti in range(nt):
            for rt in range(4):
                acc = V_ACC + (ti * 4 + rt) * 4
                xf = V_XF + st * 16 + rt * 4
                wf = V_WF + st * 24 + ti * 4
                cin = "0" if s == 0 else "v[%d:%d]" % (acc, acc + 3)
                if var == "QKV6" and ti >= 2:
                    a, b = xf, wf
                else:
                    a, b = wf, xf
                mf.append("v_mfma_f32_16x16x32_bf16 v[%d:%d], v[%d:%d], v[%d:%d], %s" % (acc, acc + 3, a, a + 3, b, b + 3, cin))
        ri = 0
        for m in mf:
            A.e(m)
            if ri < len(reads):
                A.e(reads[ri]); ri += 1
        while ri < len(reads):
            A.e(reads[ri]); ri += 1

    A.c("---- epilogue ----")
    A.stamp()
    A.e("s_mov_b32 s%d, 0x%x" % (S_L2E2, LOG2E))
    A.e("s_mov_b32 s%d, 0x%x" % (S_L2E2 + 1, LOG2E))
    A.e("s_mov_b32 s%d, 0x%x" % (S_EPS2, EPS))
    A.e("s_mov_b32 s%d, 0x%x" % (S_EPS2 + 1, EPS))
    A.nop(6)
    A.e("v_mov_b32 v%d, 0x7ffffff0" % (V_T + 1))
    A.e("v_mov_b32 v%d, %d" % (V_T, WS_G))
    A.e("v_cmp_eq_u32 vcc, 0, v%d" % V_LANE)
    A.e("s_nop 1")
    A.e("v_cndmask_b32 v%d, v%d, v%d, vcc" % (V_T, V_T + 1, V_T))
    A.vmem("buffer_store_dword v%d, v%d, s[%d:%d], s%d offen" % (V_GATE, V_T, S_W, S_W + 3, S_GOFF), "out")
    VL16 = 9
    A.e("v_lshlrev_b32 v%d, 4, v%d" % (VL16, V_LANE))
    TMP = 32
    if var == "QKV6":
        S_HEAD = S_T3
        A.e("s_lshl_b32 s%d, s%d, 1" % (S_HEAD, S_PI))
        A.e("s_lshr_b32 s%d, s%d, 1" % (S_T0, S_WAVE))
        A.e("s_add_u32 s%d, s%d, s%d" % (S_HEAD, S_HEAD, S_T0))
        M48, M12, ONE12 = 2, 3, 4
        A.e("v_cmp_gt_u32 vcc, 48, v%d" % V_LANE)
        A.e("s_nop 1")
        A.e("v_cndmask_b32 v%d, 0, -1, vcc" % M48)
        A.e("v_and_b32 v%d, 15, v%d" % (V_T, V_LANE))
        A.e("v_cmp_gt_u32 vcc, 12, v%d" % V_T)
        A.e("s_nop 1")
        A.e("v_cndmask_b32 v%d, 0, -1, vcc" % M12)
        A.e("v_mov_b32 v%d, 0x3f803f80" % (V_T + 1))
        A.e("v_cmp_eq_u32 vcc, 12, v%d" % V_T)
        A.e("s_nop 1")
        A.e("v_cndmask_b32 v%d, 0, v%d, vcc" % (ONE12, V_T + 1))
        QF = 48
        for rt in range(4):
            for dt in range(2):
                acc = V_ACC + ((0 + dt) * 4 + rt) * 4
                emit_phi4(A, acc, QF + rt * 4 + dt * 2, TMP)
            A.e("v_and_b32 v%d, v%d, v%d" % (QF + rt * 4 + 2, QF + rt * 4 + 2, M48))
            A.e("v_and_b32 v%d, v%d, v%d" % (QF + rt * 4 + 3, QF + rt * 4 + 3, M48))
            A.e("s_add_u32 s%d, s%d, %d" % (S_T0, S_R0T, rt))
            A.e("s_lshl_b32 s%d, s%d, 4" % (S_T0, S_T0))
            A.e("s_add_u32 s%d, s%d, s%d" % (S_T0, S_T0, S_HEAD))
            A.e("s_lshl_b32 s%d, s%d, 10" % (S_T0, S_T0))
            A.e("s_add_u32 s%d, s%d, %d" % (S_T0, S_T0, WS_PQ))
            A.vmem("buffer_store_dwordx4 v[%d:%d], v%d, s[%d:%d], s%d offen %s" % (QF + rt * 4, QF + rt * 4 + 3, VL16, S_W, S_W + 3, S_T0, STF), "out")
        KP, VP = 64, 80
        for dt in range(2):
            for rt in range(4):
                acc = V_ACC + ((2 + dt) * 4 + rt) * 4
                d = KP + dt * 8 + rt * 2
                emit_phi4(A, acc, d, TMP)
                if dt == 1:
                    A.e("v_and_b32 v%d, v%d, v%d" % (d, d, M12))
                    A.e("v_and_b32 v%d, v%d, v%d" % (d + 1, d + 1, M12))
        for et in range(2):
            for rt in range(4):
                acc = V_ACC + ((4 + et) * 4 + rt) * 4
                d = VP + et * 8 + rt * 2
                for h in range(2):
                    A.e("v_cvt_pk_bf16_f32 v%d, v%d, v%d" % (d + h, acc + 2 * h, acc + 2 * h + 1))
                    if et == 1:
                        A.e("v_and_or_b32 v%d, v%d, v%d, v%d" % (d + h, d + h, M12, ONE12))
        A.nop(2)
        KV = 96
        for blk in range(2):
            for dt in range(2):
                for et in range(2):
                    acc = KV + (dt * 2 + et) * 4
                    a = KP + dt * 8 + blk * 4
                    b = VP + et * 8 + blk * 4
                    cin = "0" if blk == 0 else "v[%d:%d]" % (acc, acc + 3)
                    A.e("v_mfma_f32_16x16x32_bf16 v[%d:%d], v[%d:%d], v[%d:%d], %s" % (acc, acc + 3, a, a + 3, b, b + 3, cin))
        A.nop(10)
        A.e("s_lshl_b32 s%d, s%d, 5" % (S_T0, S_HEAD))
        A.e("s_lshl_b32 s%d, s%d, 1" % (S_T1, S_RB))
        A.e("s_add_u32 s%d, s%d, s%d" % (S_T0, S_T0, S_T1))
        A.e("s_add_u32 s%d, s%d, s%d" % (S_T0, S_T0, S_RH))
        A.e("s_lshl_b32 s%d, s%d, 12" % (S_T0, S_T0))
        A.e("s_add_u32 s%d, s%d, %d" % (S_T0, S_T0, WS_KVP))
        for t in range(4):
            A.vmem("buffer_store_dwordx4 v[%d:%d], v%d, s[%d:%d], s%d offen offset:%d %s" % (KV + t * 4, KV + t * 4 + 3, VL16, S_W, S_W + 3, S_T0, t * 1024, STF), "out")
    else:
        S_FT = S_T3
        if var == "FFN6":
            A.e("s_mul_i32 s%d, s%d, 10" % (S_FT, S_PI))
            A.e("s_and_b32 s%d, s%d, 2" % (S_T0, S_WAVE))
            A.e("s_add_u32 s%d, s%d, s%d" % (S_FT, S_FT, S_T0))
            A.e("s_add_u32 s%d, s%d, 32" % (S_FT, S_FT))
        else:
            A.e("s_lshl_b32 s%d, s%d, 2" % (S_T0, S_PI))
            A.e("s_mul_i32 s%d, s%d, 10" % (S_T1, S_PI))
            A.e("s_add_u32 s%d, s%d, 36" % (S_T1, S_T1))
            A.e("s_cmp_eq_u32 s%d, 0" % S_TYP)
            A.e("s_cselect_b32 s%d, s%d, s%d" % (S_FT, S_T0, S_T1))
            A.e("s_and_b32 s%d, s%d, 2" % (S_T1, S_WAVE))
            A.e("s_add_u32 s%d, s%d, s%d" % (S_FT, S_FT, S_T1))
        HP = 48
        A.e("s_lshr_b32 s%d, s%d, 1" % (S_T1, S_FT))
        A.e("s_lshl_b32 s%d, s%d, 10" % (S_T1, S_T1))
        k = 0
        for rt in range(4):
            d = HP + rt * 4
            for p in range(2):
                g = V_ACC + ((2 * p) * 4 + rt) * 4
                u = V_ACC + ((2 * p + 1) * 4 + rt) * 4
                emit_swiglu4(A, g, u, d + 2 * p, TMP + (k % 2) * 4)
                k += 1
            A.e("s_add_u32 s%d, s%d, %d" % (S_T0, S_R0T, rt))
            A.e("s_mul_i32 s%d, s%d, %d" % (S_T0, S_T0, 56 * 1024))
            A.e("s_add_u32 s%d, s%d, s%d" % (S_T0, S_T0, S_T1))
            A.vmem("buffer_store_dwordx4 v[%d:%d], v%d, s[%d:%d], s%d offen %s" % (d, d + 3, VL16, S_W, S_W + 3, S_T0, STF), "out")
        if var == "FFN6":
            A.e("s_mul_i32 s%d, s%d, 5" % (S_T1, S_PI))
            A.e("s_add_u32 s%d, s%d, 20" % (S_T1, S_T1))
            A.e("s_lshl_b32 s%d, s%d, 10" % (S_T1, S_T1))
            A.e("s_lshr_b32 s%d, s%d, 1" % (S_T2, S_WAVE))
            A.e("s_lshl_b32 s%d, s%d, 3" % (S_T2, S_T2))
            A.e("s_add_u32 s%d, s%d, s%d" % (S_T1, S_T1, S_T2))
            for rt in range(4):
                g = V_ACC + (4 * 4 + rt) * 4
                u = V_ACC + (5 * 4 + rt) * 4
                d = 64 + rt * 2
                emit_swiglu4(A, g, u, d, TMP + (k % 2) * 4)
                k += 1
                A.e("s_add_u32 s%d, s%d, %d" % (S_T0, S_R0T, rt))
                A.e("s_mul_i32 s%d, s%d, %d" % (S_T0, S_T0, 56 * 1024))
                A.e("s_add_u32 s%d, s%d, s%d" % (S_T0, S_T0, S_T1))
                A.vmem("buffer_store_dwordx2 v[%d:%d], v%d, s[%d:%d], s%d offen %s" % (d, d + 1, VL16, S_W, S_W + 3, S_T0, STF), "out")
    A.stamp()
    A.stamp(True)
    A.stamp_flush(S_W, S_WAVE, 8, WS_STAMP)

P_SW2, P_SWO, P_SOUT, P_SDBG = 28, 32, 36, 40
P_MT, P_NT = 44, 45
P_LB = 46
P_W2B = 47
P_WOB = 68
P_HB = 69
P_PB = 70
P_KVB = 71
Q_DOFF = 31
Q_L16 = 2
Q_RA = 3
Q_FLAG = 7
Q_ZOFF = 8
Q_G = 9
Q_BA = 10
Q_T = 11
Q_AF = 32
Q_BF = 64
Q_KV = 96
Q_OF = 120
Q_ACC = 128
KVSTEP = int(os.environ.get("KVSTEP", "12"))
RING = 4
SLOT = 8192
NS = 18
BFL = os.environ.get("BFL", "")

def p2_issue_w(A, step):
    slot = step % RING
    if step < 14:
        srdw = P_SW2; base = P_W2B; rowoff = (step % 3 if "k2same" in EXP else step) * 32 * 896
    else:
        srdw = P_SWO; base = P_WOB; rowoff = (step - 14) * 28 * 896
    for o in range(4):
        A.e("s_add_u32 m0, s%d, %d" % (P_LB, slot * SLOT + o * 1024))
        A.e("s_add_u32 s%d, s%d, %d" % (S_T0, base, rowoff + o * 8 * 896))
        A.vmem("buffer_load_dwordx4 v%d, s[%d:%d], s%d offen lds" % (Q_DOFF, srdw, srdw + 3, S_T0), ("w", step))

def p2_issue_b(A, step):
    slot = step % RING
    for rt in range(4):
        A.e("s_add_u32 m0, s%d, %d" % (P_LB, slot * SLOT + 4096 + rt * 1024))
        if step < 14:
            A.e("s_add_u32 s%d, s%d, %d" % (S_T0, P_HB, rt * 56 * 1024 + (step % 3 if "k2same" in EXP else step) * 1024))
        else:
            A.e("s_add_u32 s%d, s%d, %d" % (S_T0, P_PB, rt * 16 * 1024 + (step - 14) * 1024))
        A.vmem("buffer_load_dwordx4 v%d, s[%d:%d], s%d offen lds" % (Q_L16, S_W, S_W + 3, S_T0), ("b", step))

def gen_k2(A):
    A.vm = []
    A.label("k2_kernel")
    if STAMP:
        A.e("s_memrealtime s[92:93]")
    A.e("s_cmp_ge_u32 s2, 240")
    A.e("s_cbranch_scc1 K2_END")
    A.e("s_load_dwordx2 s[98:99], s[0:1], 16")
    A.e("s_load_dwordx2 s[96:97], s[0:1], 48")
    A.e("s_load_dwordx4 s[8:11], s[0:1], 64")
    A.e("s_load_dwordx2 s[14:15], s[0:1], 80")
    if "nocw" not in EXP:
        A.e("s_getpc_b64 s[100:101]")
        A.label("K2_PC")
        A.e("s_sub_u32 s100, s100, K2_PC-k2_kernel")
        A.e("s_subb_u32 s101, s101, 0")
        A.e("v_lshlrev_b32 v%d, 7, v0" % Q_T)
        A.e("v_min_u32 v%d, K2_END-k2_kernel, v%d" % (Q_T, Q_T))
        A.vmem("global_load_dword v%d, v%d, s[100:101]" % (Q_FLAG, Q_T), "cw")
    A.e("v_and_b32 v%d, 63, v0" % V_LANE)
    A.e("v_lshrrev_b32 v%d, 6, v0" % Q_T)
    A.e("s_nop 0")
    A.e("v_readfirstlane_b32 s%d, v%d" % (S_WAVE, Q_T))
    A.e("v_lshlrev_b32 v%d, 4, v%d" % (Q_L16, V_LANE))
    k1_consts(A)
    A.e("s_and_b32 s%d, s2, 7" % S_T0)
    A.e("s_lshr_b32 s%d, s2, 3" % S_IDX)
    A.e("s_sub_u32 s%d, s%d, 2" % (S_T1, S_IDX))
    A.e("s_lshl_b32 s%d, s%d, 2" % (S_T2, S_T0))
    A.e("s_and_b32 s%d, s%d, 3" % (S_T3, S_T1))
    A.e("s_add_u32 s%d, s%d, s%d" % (P_MT, S_T2, S_T3))
    A.e("s_lshr_b32 s%d, s%d, 2" % (P_NT, S_T1))
    A.e("s_waitcnt lgkmcnt(0)")
    srd(A, P_SW2, 96, 1792 * 896)
    srd(A, P_SWO, 98, 448 * 896)
    srd(A, S_W, 14, WS_SIZE)
    srd(A, P_SOUT, 8, 2048 * 896)
    srd(A, P_SDBG, 10, 256)
    A.e("s_cmp_lt_u32 s%d, 2" % S_IDX)
    A.e("s_cbranch_scc1 K2_RED")
    A.e("s_lshl_b32 s%d, s%d, 15" % (P_LB, S_WAVE))
    A.e("s_mul_i32 s%d, s%d, %d" % (S_T0, S_WAVE, 448 * 896))
    A.e("s_lshl_b32 s%d, s%d, 7" % (S_T1, P_NT))
    A.e("s_add_u32 s%d, s%d, s%d" % (P_W2B, S_T0, S_T1))
    A.e("s_mul_i32 s%d, s%d, %d" % (S_T0, S_WAVE, 112 * 896))
    A.e("s_add_u32 s%d, s%d, s%d" % (P_WOB, S_T0, S_T1))
    A.e("s_mul_i32 s%d, s%d, %d" % (S_T0, P_MT, 4 * 56 * 1024))
    A.e("s_mul_i32 s%d, s%d, %d" % (S_T1, S_WAVE, 14 * 1024))
    A.e("s_add_u32 s%d, s%d, s%d" % (P_HB, S_T0, S_T1))
    A.e("s_lshl_b32 s%d, s%d, 16" % (S_T0, P_MT))
    A.e("s_lshl_b32 s%d, s%d, 12" % (S_T1, S_WAVE))
    A.e("s_add_u32 s%d, s%d, s%d" % (S_T0, S_T0, S_T1))
    A.e("s_add_u32 s%d, s%d, %d" % (P_PB, S_T0, WS_PQ))
    A.e("s_lshl_b32 s%d, s%d, 13" % (S_T0, S_WAVE))
    A.e("s_add_u32 s%d, s%d, %d" % (P_KVB, S_T0, WS_KVF))
    t0, t1, t2 = Q_T, Q_T + 1, Q_T + 2
    A.e("v_lshrrev_b32 v%d, 3, v%d" % (t0, V_LANE))
    A.e("v_lshrrev_b32 v%d, 4, v%d" % (t1, V_LANE))
    A.e("v_lshrrev_b32 v%d, 1, v%d" % (t2, V_LANE))
    A.e("v_xor_b32 v%d, v%d, v%d" % (t1, t1, t2))
    A.e("v_and_b32 v%d, 3, v%d" % (t1, t1))
    A.e("v_lshlrev_b32 v%d, 5, v%d" % (t1, t1))
    A.e("v_mul_u32_u24 v%d, 896, v%d" % (t0, t0))
    A.e("v_and_b32 v%d, 1, v%d" % (t2, V_LANE))
    A.e("v_lshlrev_b32 v%d, 4, v%d" % (t2, t2))
    A.e("v_add3_u32 v%d, v%d, v%d, v%d" % (Q_DOFF, t0, t1, t2))
    A.nst = 0
    A.stamp()
    if STAMP:
        A.e("s_memrealtime s[100:101]")
    for st in range(3):
        p2_issue_w(A, st)
        p2_issue_b(A, st)
    global V_T
    sv = V_T
    V_T = Q_T
    for t in range(4):
        emit_raddr(A, Q_RA + t, "T4K2", t)
        A.e("v_add_u32 v%d, s%d, v%d" % (Q_RA + t, P_LB, Q_RA + t))
    V_T = sv
    A.e("v_add_u32 v%d, s%d, v%d" % (Q_BA, P_LB, Q_L16))
    A.e("v_lshrrev_b32 v%d, 4, v%d" % (Q_T, V_LANE))
    A.e("v_lshlrev_b32 v%d, 8, v%d" % (Q_T, Q_T))
    A.e("v_add_u32 v%d, %d, v%d" % (Q_ZOFF, 1024 + 12 * 16, Q_T))
    def reads(step):
        slot = step % RING
        st = step & 1
        out = []
        for rt in range(4):
            d = Q_BF + st * 16 + rt * 4
            out.append("ds_read_b128 v[%d:%d], v%d offset:%d" % (d, d + 3, Q_BA, slot * SLOT + 4096 + rt * 1024))
        for t in range(4):
            d = Q_AF + st * 16 + t * 4
            for p in range(2):
                out.append("ds_read_b64_tr_b16 v[%d:%d], v%d offset:%d" % (d + 2 * p, d + 2 * p + 1, Q_RA + t, slot * SLOT + p * 2048))
        return out
    A.wait_vm(("b", 0))
    A.stamp()
    for r in reads(0):
        A.e(r)
    for s in range(NS):
        A.c("---- k2 step %d ----" % s)
        if s in (8, 11, 14):
            A.stamp()
        rd = []
        if s + 1 < NS:
            A.wait_vm(("b", s + 1), "lgkmcnt(0)")
            rd = reads(s + 1)
        else:
            A.e("s_waitcnt lgkmcnt(0)")
        if s + 3 < NS:
            if "k2now" not in EXP: p2_issue_w(A, s + 3)
            if "k2nob" not in EXP: p2_issue_b(A, s + 3)
        if "k2nord" in EXP: rd = []
        if s == KVSTEP - 3:
            A.e("v_mov_b32 v%d, 0" % (Q_T + 2))
            A.vmem("buffer_load_dword v%d, v%d, s[%d:%d], 0 offen sc1" % (Q_FLAG, Q_T + 2, P_SDBG, P_SDBG + 3), "flag")
            A.e("v_and_b32 v%d, 15, v%d" % (Q_T + 1, V_LANE))
            A.e("v_lshlrev_b32 v%d, 2, v%d" % (Q_T + 1, Q_T + 1))
            A.e("s_lshl_b32 s%d, s%d, 8" % (S_T0, P_MT))
            A.e("s_lshl_b32 s%d, s%d, 6" % (S_T1, S_WAVE))
            A.e("s_add_u32 s%d, s%d, s%d" % (S_T0, S_T0, S_T1))
            A.e("s_add_u32 s%d, s%d, %d" % (S_T0, S_T0, WS_G))
            A.vmem("buffer_load_dword v%d, v%d, s[%d:%d], s%d offen" % (Q_G, Q_T + 1, S_W, S_W + 3, S_T0), "gate")
        if s == KVSTEP:
            A.wait_vm("gate")
            A.label("K2_CHK")
            A.e("v_readfirstlane_b32 s%d, v%d" % (S_T2, Q_FLAG))
            A.e("s_cmp_ge_u32 s%d, 16" % S_T2)
            A.e("s_cbranch_scc1 K2_KVOK")
            A.e("s_sleep 8")
            A.e("buffer_load_dword v%d, v%d, s[%d:%d], 0 offen sc1" % (Q_FLAG, Q_T + 2, P_SDBG, P_SDBG + 3))
            A.e("s_waitcnt vmcnt(0)")
            A.e("s_branch K2_CHK")
            A.label("K2_KVOK")
        def kvload(h):
            d = Q_KV + (h & 1) * 12
            A.e("s_add_u32 s%d, s%d, %d" % (S_T0, P_KVB, h * 2048))
            A.vmem("buffer_load_dwordx4 v[%d:%d], v%d, s[%d:%d], s%d offen sc1" % (d, d + 3, Q_L16, S_W, S_W + 3, S_T0), ("kv", h))
            A.vmem("buffer_load_dwordx4 v[%d:%d], v%d, s[%d:%d], s%d offen offset:1024 sc1" % (d + 4, d + 7, Q_L16, S_W, S_W + 3, S_T0), ("kv", h))
            A.vmem("buffer_load_dwordx4 v[%d:%d], v%d, s[%d:%d], s%d offen sc1" % (d + 8, d + 11, Q_ZOFF, S_W, S_W + 3, S_T0), ("kv", h))
        if s == KVSTEP:
            kvload(0); kvload(1)
        st = s & 1
        if s < 14:
            mf = []
            for t in range(4):
                for rt in range(4):
                    acc = Q_ACC + (t * 4 + rt) * 4
                    a = Q_AF + st * 16 + t * 4
                    b = Q_BF + st * 16 + rt * 4
                    cin = "0" if s == 0 else "v[%d:%d]" % (acc, acc + 3)
                    mf.append("v_mfma_f32_16x16x32_bf16 v[%d:%d], v[%d:%d], v[%d:%d], %s" % (acc, acc + 3, a, a + 3, b, b + 3, cin))
            ri = 0
            if "k2nomf" in EXP and s > 0: mf = []
            for m in mf:
                A.e(m)
                if ri < len(rd):
                    A.e(rd[ri]); ri += 1
            while ri < len(rd):
                A.e(rd[ri]); ri += 1
        else:
            h = s - 14
            A.wait_vm(("kv", h))
            if h == 0:
                A.e("v_cmp_gt_u32 vcc, 48, v%d" % V_LANE)
                A.e("s_nop 1")
                A.e("v_cndmask_b32 v%d, 0, -1, vcc" % Q_FLAG)
            kv = Q_KV + (h & 1) * 12
            ri = 0
            for half in range(2):
                for k in range(2):
                    rt = half * 2 + k
                    b = Q_BF + st * 16 + rt * 4
                    N = 12 + k * 8
                    A.e("v_mfma_f32_16x16x32_bf16 v[%d:%d], v[%d:%d], v[%d:%d], 0" % (N, N + 3, kv, kv + 3, b, b + 3))
                    if ri < len(rd): A.e(rd[ri]); ri += 1
                    A.e("v_mfma_f32_16x16x32_bf16 v[%d:%d], v[%d:%d], v[%d:%d], 0" % (N + 4, N + 7, kv + 4, kv + 7, b, b + 3))
                    if ri < len(rd): A.e(rd[ri]); ri += 1
                for k in range(2):
                    rt = half * 2 + k
                    b = Q_BF + st * 16 + rt * 4
                    N = 12 + k * 8
                    DN = Q_OF + k * 4
                    OF = Q_OF + k * 4
                    A.e("v_mfma_f32_16x16x32_bf16 v[%d:%d], v[%d:%d], v[%d:%d], 0" % (DN, DN + 3, kv + 8, kv + 11, b, b + 3))
                    if ri < len(rd): A.e(rd[ri]); ri += 1
                A.nop(8)
                for k in range(2):
                    N = 12 + k * 8
                    DN = Q_OF + k * 4
                    A.e("v_add_f32 v%d, s%d, v%d" % (28 + k, S_EPS, DN))
                for k in range(2):
                    A.e("v_rcp_f32 v%d, v%d" % (28 + k, 28 + k))
                for k in range(2):
                    N = 12 + k * 8
                    OF = Q_OF + k * 4
                    for i in range(4):
                        A.e("v_pk_mul_f32 v[%d:%d], v[%d:%d], v[28:29] op_sel:[0,%d] op_sel_hi:[1,%d]" % (N + 2 * i, N + 2 * i + 1, N + 2 * i, N + 2 * i + 1, k, k))
                    for i in range(4):
                        A.e("v_cvt_pk_bf16_f32 v%d, v%d, v%d" % (OF + i, N + 2 * i, N + 2 * i + 1))
                    A.e("v_and_b32 v%d, v%d, v%d" % (OF + 2, OF + 2, Q_FLAG))
                    A.e("v_and_b32 v%d, v%d, v%d" % (OF + 3, OF + 3, Q_FLAG))
                A.nop(2)
                for k in range(2):
                    rt = half * 2 + k
                    OF = Q_OF + k * 4
                    for t in range(4):
                        acc = Q_ACC + 64 + (t * 4 + rt) * 4
                        a = Q_AF + st * 16 + t * 4
                        cin = "0" if h == 0 else "v[%d:%d]" % (acc, acc + 3)
                        A.e("v_mfma_f32_16x16x32_bf16 v[%d:%d], v[%d:%d], v[%d:%d], %s" % (acc, acc + 3, a, a + 3, OF, OF + 3, cin))
                if half == 0:
                    A.nop(4)
            while ri < len(rd):
                A.e(rd[ri]); ri += 1
            if h + 2 < 4:
                kvload(h + 2)
    A.c("---- k2 epilogue ----")
    A.stamp()
    A.nop(10)
    A.e("s_barrier")
    A.e("s_lshl_b32 s%d, s%d, 13" % (S_T0, S_WAVE))
    A.e("v_add_u32 v%d, s%d, v%d" % (Q_T, S_T0, Q_L16))
    for rt in range(4):
        A.e("s_cmp_eq_u32 s%d, %d" % (S_WAVE, rt))
        A.e("s_cbranch_scc1 K2_SKIPW%d" % rt)
        A.e("v_add_u32 v%d, %d, v%d" % (Q_T + 1, rt * 32768, Q_T))
        for part in range(2):
            for t in range(4):
                acc = Q_ACC + part * 64 + (t * 4 + rt) * 4
                A.e("ds_write_b128 v%d, v[%d:%d] offset:%d" % (Q_T + 1, acc, acc + 3, part * 4096 + t * 1024))
        A.label("K2_SKIPW%d" % rt)
    for rt in range(4):
        A.e("s_cmp_lg_u32 s%d, %d" % (S_WAVE, rt))
        A.e("s_cbranch_scc1 K2_SKIPM%d" % rt)
        for part in range(2):
            for t in range(4):
                acc = Q_ACC + part * 64 + (t * 4 + rt) * 4
                for i in range(2):
                    A.e("v_pk_mov_b32 v[%d:%d], v[%d:%d], v[%d:%d] op_sel:[0,1]" % (32 + (part * 4 + t) * 4 + 2 * i, 33 + (part * 4 + t) * 4 + 2 * i, acc + 2 * i, acc + 2 * i + 1, acc + 2 * i, acc + 2 * i + 1))
        A.label("K2_SKIPM%d" % rt)
    A.e("s_waitcnt lgkmcnt(0)")
    A.e("s_barrier")
    A.e("s_lshl_b32 s%d, s%d, 15" % (S_T0, S_WAVE))
    A.e("v_add_u32 v%d, s%d, v%d" % (Q_T, S_T0, Q_L16))
    for k in range(1, 4):
        A.e("s_add_u32 s%d, s%d, %d" % (S_T1, S_WAVE, k))
        A.e("s_and_b32 s%d, s%d, 3" % (S_T1, S_T1))
        A.e("s_lshl_b32 s%d, s%d, 13" % (S_T1, S_T1))
        A.e("v_add_u32 v%d, s%d, v%d" % (Q_T + k, S_T1, Q_T))
        for q in range(8):
            A.e("ds_read_b128 v[%d:%d], v%d offset:%d" % (64 + (k - 1) * 32 + q * 4, 64 + (k - 1) * 32 + q * 4 + 3, Q_T + k, q * 1024))
    for k in range(1, 4):
        A.e("s_waitcnt lgkmcnt(%d)" % min(15, 8 * (3 - k)))
        for q in range(16):
            A.e("v_pk_add_f32 v[%d:%d], v[%d:%d], v[%d:%d]" % (32 + 2 * q, 33 + 2 * q, 32 + 2 * q, 33 + 2 * q, 64 + (k - 1) * 32 + 2 * q, 65 + (k - 1) * 32 + 2 * q))
    A.e("v_sub_f32 v14, 1.0, v%d" % Q_G)
    A.e("v_cvt_pk_bf16_f32 v14, v14, v14")
    A.e("v_lshlrev_b32 v14, 16, v14")
    A.e("v_mov_b32 v15, v14")
    A.e("v_mov_b32 v16, v%d" % Q_G)
    A.e("v_mov_b32 v17, v%d" % Q_G)
    A.e("v_and_b32 v18, 15, v%d" % V_LANE)
    A.e("v_mul_u32_u24 v18, 896, v18")
    A.e("v_lshrrev_b32 v19, 4, v%d" % V_LANE)
    A.e("v_lshl_add_u32 v18, v19, 3, v18")
    A.e("s_lshl_b32 s%d, s%d, 6" % (S_T0, P_MT))
    A.e("s_lshl_b32 s%d, s%d, 4" % (S_T1, S_WAVE))
    A.e("s_add_u32 s%d, s%d, s%d" % (S_T0, S_T0, S_T1))
    A.e("s_mul_i32 s%d, s%d, 896" % (S_T0, S_T0))
    A.e("s_lshl_b32 s%d, s%d, 7" % (S_T1, P_NT))
    A.e("s_add_u32 s%d, s%d, s%d" % (S_T0, S_T0, S_T1))
    X = 64
    for t in range(4):
        for h in range(2):
            bq = 32 + t * 4 + 2 * h
            aq = 48 + t * 4 + 2 * h
            A.e("v_pk_mul_f32 v[%d:%d], v[%d:%d], v[14:15]" % (bq, bq + 1, bq, bq + 1))
            A.e("v_pk_fma_f32 v[%d:%d], v[%d:%d], v[16:17], v[%d:%d]" % (bq, bq + 1, aq, aq + 1, bq, bq + 1))
            A.e("v_cvt_pk_bf16_f32 v%d, v%d, v%d" % (X + 8 + t * 2 + h, bq, bq + 1))
        A.e("buffer_store_dwordx2 v[%d:%d], v18, s[%d:%d], s%d offen offset:%d" % (X + 8 + t * 2, X + 9 + t * 2, P_SOUT, P_SOUT + 3, S_T0, t * 32))
    A.stamp()
    A.stamp(True)
    A.stamp_flush(S_W, S_WAVE, 4, WS_STAMP + 0x40000)
    A.e("s_branch K2_END")

    A.label("K2_RED")
    A.vm = []
    P_HEAD = S_T3
    A.e("s_and_b32 s%d, s2, 7" % S_T0)
    A.e("s_lshl_b32 s%d, s%d, 1" % (P_HEAD, S_T0))
    A.e("s_add_u32 s%d, s%d, s%d" % (P_HEAD, P_HEAD, S_IDX))
    A.e("s_lshl_b32 s%d, s%d, 17" % (S_T0, P_HEAD))
    A.e("s_lshl_b32 s%d, s%d, 10" % (S_T1, S_WAVE))
    A.e("s_add_u32 s%d, s%d, s%d" % (S_T0, S_T0, S_T1))
    A.e("s_add_u32 s%d, s%d, %d" % (S_T0, S_T0, WS_KVP))
    for p in range(32):
        A.e("s_add_u32 s%d, s%d, %d" % (S_T1, S_T0, p * 4096))
        A.vmem("buffer_load_dwordx4 v[%d:%d], v%d, s[%d:%d], s%d offen" % (32 + p * 4, 35 + p * 4, Q_L16, S_W, S_W + 3, S_T1), ("p", p))
    A.wait_vm(("p", 1))
    A.e("v_pk_add_f32 v[32:33], v[32:33], v[36:37]")
    A.e("v_pk_add_f32 v[34:35], v[34:35], v[38:39]")
    for p in range(2, 32):
        A.wait_vm(("p", p))
        A.e("v_pk_add_f32 v[32:33], v[32:33], v[%d:%d]" % (32 + p * 4, 33 + p * 4))
        A.e("v_pk_add_f32 v[34:35], v[34:35], v[%d:%d]" % (34 + p * 4, 35 + p * 4))
    A.e("v_cvt_pk_bf16_f32 v20, v32, v33")
    A.e("v_cvt_pk_bf16_f32 v21, v34, v35")
    A.e("s_lshl_b32 s%d, s%d, 11" % (S_T0, P_HEAD))
    A.e("s_and_b32 s%d, s%d, 1" % (S_T1, S_WAVE))
    A.e("s_lshl_b32 s%d, s%d, 10" % (S_T1, S_T1))
    A.e("s_add_u32 s%d, s%d, s%d" % (S_T0, S_T0, S_T1))
    A.e("s_lshr_b32 s%d, s%d, 1" % (S_T1, S_WAVE))
    A.e("s_lshl_b32 s%d, s%d, 3" % (S_T1, S_T1))
    A.e("s_add_u32 s%d, s%d, s%d" % (S_T0, S_T0, S_T1))
    A.e("s_add_u32 s%d, s%d, %d" % (S_T0, S_T0, WS_KVF))
    A.e("buffer_store_dwordx2 v[20:21], v%d, s[%d:%d], s%d offen sc1" % (Q_L16, S_W, S_W + 3, S_T0))
    A.e("s_waitcnt vmcnt(0)")
    A.e("s_barrier")
    A.e("v_mov_b32 v22, 0x7ffffff0")
    A.e("v_cmp_eq_u32 vcc, 0, v0")
    A.e("s_nop 1")
    A.e("v_cndmask_b32 v22, v22, 0, vcc")
    A.e("v_mov_b32 v23, 1")
    A.e("buffer_atomic_add v23, v22, s[%d:%d], 0 offen sc1" % (P_SDBG, P_SDBG + 3))
    A.label("K2_END")
    A.e("s_endpgm")

def main():
    out = []
    hdr = open("cdna_kernels/%s.s.ref" % NAME).read().splitlines()
    for l in hdr:
        if l.startswith(";") and "@launch" not in l:
            out.append(l)
        elif not l.startswith(";"):
            break
    out.append("; @launch kernel=k1_kernel grid=(256,1,1) block=(512,1,1) lds=%d" % K1_LDS)
    out.append("; @launch kernel=k2_kernel grid=(240,1,1) block=(256,1,1) lds=131072")
    out.append('.amdgcn_target "amdgcn-amd-amdhsa--gfx950"')
    out.append(".text")
    A = Asm()
    A.lines.append(".globl k1_kernel\n.p2align 8\n.type k1_kernel,@function")
    gen_k1(A)
    A.lines.append(".globl k2_kernel\n.p2align 8\n.type k2_kernel,@function")
    gen_k2(A)
    out += A.lines
    out.append('.section .rodata,"a"')
    for nm, nv in (("k1_kernel", 212), ("k2_kernel", 256)):
        out.append(".p2align 6")
        out.append(".amdhsa_kernel %s" % nm)
        out.append("  .amdhsa_next_free_vgpr %d" % nv)
        out.append("  .amdhsa_next_free_sgpr 102")
        out.append("  .amdhsa_accum_offset %d" % nv)
        out.append("  .amdhsa_group_segment_fixed_size 0")
        out.append("  .amdhsa_kernarg_size 88")
        out.append("  .amdhsa_user_sgpr_count 2")
        out.append("  .amdhsa_user_sgpr_kernarg_segment_ptr 1")
        out.append("  .amdhsa_system_sgpr_workgroup_id_x 1")
        out.append(".end_amdhsa_kernel")
    dst = sys.argv[1] if len(sys.argv) > 1 else "cdna_kernels/%s.s" % NAME
    open(dst, "w").write("\n".join(out) + "\n")

main()
```

```python
import sys

NAME = "gated_mix__linear_attn_block__glu_gated_swiglu__prompt"

WS_H    = 0x000000
WS_PQ   = 0x700000
WS_KVP  = 0x900000
WS_KVF  = 0xB00000
WS_G    = 0xB10000
WS_SIZE = 0xB20000

import os
STAMP = os.environ.get("STAMP") == "1"
EXP = os.environ.get("EXP", "pf2chip_cwr_prio")
DMAFLAGS = os.environ.get("DMAFLAGS", "")
STF = os.environ.get("STF", "")
KNAME = "k1_kernel"
PF2STEP = int(os.environ.get("PF2STEP", "12"))
CW0 = int(os.environ.get("CW0", "3"))
POLLSLEEP = int(os.environ.get("POLLSLEEP", "16"))
WS_STAMP = 0xC00000
if STAMP:
    WS_SIZE = 0xD00000
class Asm:
    def __init__(self):
        self.lines = []
        self.vm = []
        self.nst = 0
        self.uid = 0
    def stamp(self, real=False):
        if not STAMP: return
        self.e("%s s[%d:%d]" % ("s_memrealtime" if real else "s_memtime", 76 + 2 * self.nst, 77 + 2 * self.nst))
        self.nst += 1
        assert self.nst <= 8
    def stamp_flush(self, srdw, s_wave, nwave, base):
        if not STAMP: return
        self.e("s_waitcnt lgkmcnt(0)")
        self.e("s_mul_i32 s48, s2, %d" % nwave)
        self.e("s_add_u32 s48, s48, s%d" % s_wave)
        self.e("s_lshl_b32 s48, s48, 6")
        self.e("s_add_u32 s48, s48, %d" % base)
        self.e("v_mov_b32 v20, 0")
        self.e("v_mov_b32 v21, s92")
        self.e("buffer_store_dword v21, v20, s[%d:%d], s48 offen offset:56" % (srdw, srdw + 3))
        self.e("v_mov_b32 v21, s100")
        self.e("buffer_store_dword v21, v20, s[%d:%d], s48 offen offset:60" % (srdw, srdw + 3))
        for i in range(self.nst):
            self.e("v_mov_b32 v21, s%d" % (76 + 2 * i))
            self.e("buffer_store_dword v21, v20, s[%d:%d], s48 offen offset:%d" % (srdw, srdw + 3, 4 * i))
        self.nst = 0
    def e(self, s):
        self.lines.append("    " + s)
    def c(self, s):
        self.lines.append("    ; " + s)
    def label(self, l):
        self.lines.append(l + ":")
    def vmem(self, s, tag):
        self.e(s)
        self.vm.append(tag)
    def wait_vm(self, tag, extra=""):
        idx = None
        for i, t in enumerate(self.vm):
            if t == tag:
                idx = i
        if idx is None:
            if extra:
                self.e("s_waitcnt " + extra)
            return
        n = len(self.vm) - 1 - idx
        assert n <= 63, n
        self.e("s_waitcnt vmcnt(%d) %s" % (n, extra))
        self.vm = self.vm[idx + 1:]
    def wait_vm_all(self, extra=""):
        self.e("s_waitcnt vmcnt(0) %s" % extra)
        self.vm = []
    def nop(self, n):
        while n > 0:
            k = min(n, 16)
            self.e("s_nop %d" % (k - 1))
            n -= k

def vr(b, n=1):
    return "v%d" % b if n == 1 else "v[%d:%d]" % (b, b + n - 1)
def ar(b, n=1):
    return "a%d" % b if n == 1 else "a[%d:%d]" % (b, b + n - 1)
def sr(b, n=1):
    return "s%d" % b if n == 1 else "s[%d:%d]" % (b, b + n - 1)

def srd(A, d, base, size):
    A.e("s_mov_b32 s%d, s%d" % (d, base))
    A.e("s_and_b32 s%d, s%d, 0xffff" % (d + 1, base + 1))
    A.e("s_mov_b32 s%d, 0x%x" % (d + 2, size))
    A.e("s_mov_b32 s%d, 0x00020000" % (d + 3))

LOG2E = 0x3fb8aa3b
NLOG2E = 0xbfb8aa3b
EPS = 0x358637bd

WSTG = 20480
XBASE = 4 * WSTG
XSLOT = 16384
K1_LDS = XBASE + 2 * XSLOT
WHI = 2 * WSTG

S_X, S_W, S_GW = 16, 20, 24
S_R = 28
S_CG, S_RB, S_WAVE, S_RH = 48, 49, 50, 51
S_T0, S_T1, S_T2, S_T3 = 52, 53, 54, 55
S_PI, S_TYP = 56, 57
S_R0T = 58
S_GOFF = 59
S_MSK = 60
S_NL2E = 62
S_ONE = 64
S_L2E = 66
S_EPS = 67
S_SOFF = 68
S_STR = 4
S_XO = 73
S_E = 74
S_IDX = 75

V_LANE = 1
V_DOFF = 2
V_XD = 7
V_XA = 9
V_GATE = 11
V_WA = 12
V_T = 24
V_XF = 32
V_WF = 64
V_ACC = 112
V_DUMP = 208

def k1_consts(A):
    A.e("s_mov_b32 s%d, 0xffff0000" % S_MSK)
    A.e("s_mov_b32 s%d, 0x%x" % (S_NL2E, NLOG2E))
    A.e("s_mov_b32 s%d, 0x%x" % (S_NL2E + 1, NLOG2E))
    A.e("s_mov_b32 s%d, 1.0" % S_ONE)
    A.e("s_mov_b32 s%d, 1.0" % (S_ONE + 1))
    A.e("s_mov_b32 s%d, 0x%x" % (S_L2E, LOG2E))
    A.e("s_mov_b32 s%d, 0x%x" % (S_EPS, EPS))

def unpack2(A, dlo, dhi, src):
    A.e("v_lshlrev_b32 v%d, 16, v%d" % (dlo, src))
    A.e("v_and_b32 v%d, s%d, v%d" % (dhi, S_MSK, src))

def emit_raddr(A, vdst, kind, t):
    t0, t1, t2, t3 = V_T, V_T + 1, V_T + 2, V_T + 3
    ts = str(t)
    A.e("v_lshrrev_b32 v%d, 4, v%d" % (t0, V_LANE))
    A.e("v_lshrrev_b32 v%d, 2, v%d" % (t1, V_LANE))
    A.e("v_and_b32 v%d, 3, v%d" % (t1, t1))
    A.e("v_and_b32 v%d, 3, v%d" % (t2, V_LANE))
    A.e("v_lshlrev_b32 v%d, 3, v%d" % (vdst, t2))
    A.e("v_and_b32 v%d, 1, v%d" % (t2, t0))
    if kind == "T2":
        A.e("v_lshrrev_b32 v%d, 1, v%d" % (t3, t0))
        A.e("v_lshl_add_u32 v%d, v%d, 10, v%d" % (vdst, t3, vdst))
        A.e("v_lshl_add_u32 v%d, v%d, 9, v%d" % (vdst, t2, vdst))
        A.e("v_lshl_add_u32 v%d, v%d, 6, v%d" % (vdst, t1, vdst))
        A.e("v_xor_b32 v%d, %s, v%d" % (t3, ts, t2))
        A.e("v_lshl_add_u32 v%d, v%d, 5, v%d" % (vdst, t3, vdst))
    elif kind == "T4":
        A.e("v_lshl_add_u32 v%d, v%d, 10, v%d" % (vdst, t0, vdst))
        A.e("v_lshl_add_u32 v%d, v%d, 7, v%d" % (vdst, t1, vdst))
        A.e("v_lshrrev_b32 v%d, 1, v%d" % (t3, t1))
        A.e("v_lshl_or_b32 v%d, v%d, 1, v%d" % (t3, t2, t3))
        A.e("v_xor_b32 v%d, %s, v%d" % (t3, ts, t3))
        A.e("v_lshl_add_u32 v%d, v%d, 5, v%d" % (vdst, t3, vdst))
    elif kind == "T4K2":
        A.e("v_lshrrev_b32 v%d, 1, v%d" % (t3, t0))
        A.e("v_lshl_add_u32 v%d, v%d, 10, v%d" % (vdst, t3, vdst))
        A.e("v_lshl_add_u32 v%d, v%d, 9, v%d" % (vdst, t2, vdst))
        A.e("v_lshl_add_u32 v%d, v%d, 7, v%d" % (vdst, t1, vdst))
        A.e("v_lshrrev_b32 v%d, 1, v%d" % (t3, t1))
        A.e("v_lshl_or_b32 v%d, v%d, 1, v%d" % (t3, t2, t3))
        A.e("v_xor_b32 v%d, %s, v%d" % (t3, ts, t3))
        A.e("v_lshl_add_u32 v%d, v%d, 5, v%d" % (vdst, t3, vdst))
    else:
        raise ValueError(kind)

def emit_phi4(A, src, dst, tmp):
    a = tmp; b = tmp + 4
    for h in range(2):
        A.e("v_pk_mul_f32 v[%d:%d], v[%d:%d], s[%d:%d]" % (b + 2 * h, b + 2 * h + 1, src + 2 * h, src + 2 * h + 1, S_L2E2, S_L2E2 + 1))
    for i in range(4):
        A.e("v_min_f32 v%d, 0, v%d" % (b + i, b + i))
    for i in range(4):
        A.e("v_exp_f32 v%d, v%d" % (b + i, b + i))
    for i in range(4):
        A.e("v_max_f32 v%d, 0, v%d" % (a + i, src + i))
    for h in range(2):
        A.e("v_pk_add_f32 v[%d:%d], v[%d:%d], v[%d:%d]" % (a + 2 * h, a + 2 * h + 1, a + 2 * h, a + 2 * h + 1, b + 2 * h, b + 2 * h + 1))
    for h in range(2):
        A.e("v_pk_add_f32 v[%d:%d], v[%d:%d], s[%d:%d]" % (a + 2 * h, a + 2 * h + 1, a + 2 * h, a + 2 * h + 1, S_EPS2, S_EPS2 + 1))
    for h in range(2):
        A.e("v_cvt_pk_bf16_f32 v%d, v%d, v%d" % (dst + h, a + 2 * h, a + 2 * h + 1))

def emit_swiglu4(A, g, u, dst, tmp):
    E = tmp
    for h in range(2):
        A.e("v_pk_mul_f32 v[%d:%d], v[%d:%d], s[%d:%d]" % (E + 2 * h, E + 2 * h + 1, g + 2 * h, g + 2 * h + 1, S_NL2E, S_NL2E + 1))
    for i in range(4):
        A.e("v_exp_f32 v%d, v%d" % (E + i, E + i))
    for h in range(2):
        A.e("v_pk_mul_f32 v[%d:%d], v[%d:%d], v[%d:%d]" % (g + 2 * h, g + 2 * h + 1, g + 2 * h, g + 2 * h + 1, u + 2 * h, u + 2 * h + 1))
    for h in range(2):
        A.e("v_pk_add_f32 v[%d:%d], v[%d:%d], s[%d:%d]" % (E + 2 * h, E + 2 * h + 1, E + 2 * h, E + 2 * h + 1, S_ONE, S_ONE + 1))
    for i in range(4):
        A.e("v_rcp_f32 v%d, v%d" % (E + i, E + i))
    A.e("s_nop 0")
    for h in range(2):
        A.e("v_pk_mul_f32 v[%d:%d], v[%d:%d], v[%d:%d]" % (g + 2 * h, g + 2 * h + 1, g + 2 * h, g + 2 * h + 1, E + 2 * h, E + 2 * h + 1))
    for h in range(2):
        A.e("v_cvt_pk_bf16_f32 v%d, v%d, v%d" % (dst + h, g + 2 * h, g + 2 * h + 1))

S_L2E2 = 10
S_EPS2 = 12

def sel_srd(A, d, lo_a, lo_b, size_a, size_b):
    A.e("s_cselect_b32 s%d, s%d, s%d" % (d, lo_a, lo_b))
    A.e("s_cselect_b32 s%d, s%d, s%d" % (d + 1, lo_a + 1, lo_b + 1))
    if size_a == size_b:
        A.e("s_mov_b32 s%d, 0x%x" % (d + 2, size_a))
    else:
        A.e("s_mov_b32 s%d, 0x%x" % (S_T3, size_a))
        A.e("s_cselect_b32 s%d, s%d, 0x%x" % (d + 2, S_T3, size_b))
    A.e("s_and_b32 s%d, s%d, 0xffff" % (d + 1, d + 1))
    A.e("s_mov_b32 s%d, 0x00020000" % (d + 3))

SZQ = 448 * 2688
SZG = 448 * 3584

def gen_k1(A):
    A.label(KNAME)
    if STAMP:
        A.e("s_memrealtime s[92:93]")
    A.e("s_cmp_ge_u32 s2, 256")
    A.e("s_cbranch_scc1 K1_END")
    A.e("s_load_dwordx4 s[4:7], s[0:1], 0")
    A.e("s_load_dwordx4 s[8:11], s[0:1], 32")
    A.e("s_load_dwordx2 s[12:13], s[0:1], 56")
    A.e("s_load_dwordx2 s[14:15], s[0:1], 80")
    A.e("s_load_dwordx2 s[96:97], s[0:1], 48")
    A.e("s_load_dwordx2 s[98:99], s[0:1], 16")
    if "nocw" not in EXP:
        A.e("s_getpc_b64 s[100:101]")
        A.label("K1_PC")
        A.e("s_sub_u32 s100, s100, K1_PC-%s" % KNAME)
        A.e("s_subb_u32 s101, s101, 0")
        A.e("v_lshlrev_b32 v%d, 7, v0" % V_T)
        A.e("v_min_u32 v%d, K2_END-%s, v%d" % (V_T, KNAME, V_T))
        A.vmem("global_load_dword v%d, v%d, s[100:101]" % (V_DUMP + 3, V_T), "cw")
    A.e("v_and_b32 v%d, 63, v0" % V_LANE)
    A.e("v_lshrrev_b32 v%d, 6, v0" % V_T)
    A.e("s_nop 0")
    A.e("v_readfirstlane_b32 s%d, v%d" % (S_WAVE, V_T))
    k1_consts(A)
    A.e("s_and_b32 s%d, s2, 7" % S_T0)
    A.e("s_lshr_b32 s%d, s2, 3" % S_IDX)
    A.e("s_and_b32 s%d, s%d, 3" % (S_T2, S_T0))
    A.e("s_lshl_b32 s%d, s%d, 2" % (S_T2, S_T2))
    A.e("s_and_b32 s%d, s%d, 3" % (S_T3, S_IDX))
    A.e("s_add_u32 s%d, s%d, s%d" % (S_CG, S_T2, S_T3))
    A.e("s_lshr_b32 s%d, s%d, 2" % (S_T2, S_T0))
    A.e("s_lshl_b32 s%d, s%d, 3" % (S_T2, S_T2))
    A.e("s_lshr_b32 s%d, s%d, 2" % (S_E, S_IDX))
    A.e("s_add_u32 s%d, s%d, s%d" % (S_RB, S_T2, S_E))
    A.e("s_and_b32 s%d, s%d, 1" % (S_RH, S_WAVE))
    A.e("s_and_b32 s%d, s%d, 1" % (S_TYP, S_CG))
    A.e("s_lshr_b32 s%d, s%d, 1" % (S_PI, S_CG))
    A.e("s_lshl_b32 s%d, s%d, 3" % (S_R0T, S_RB))
    A.e("s_lshl_b32 s%d, s%d, 2" % (S_T0, S_RH))
    A.e("s_add_u32 s%d, s%d, s%d" % (S_R0T, S_R0T, S_T0))
    A.e("s_waitcnt lgkmcnt(0)")
    if "pf0" in EXP:
        A.e("s_cmp_ge_u32 s%d, 4" % S_WAVE)
        A.e("s_cbranch_scc1 K1_NOPF0")
        A.e("s_and_b32 s%d, s%d, 3" % (S_T0, S_WAVE))
        A.e("s_cmp_eq_u32 s%d, 0" % S_T0); A.e("s_cselect_b64 s[%d:%d], s[4:5], s[6:7]" % (S_R, S_R + 1))
        A.e("s_cselect_b32 s%d, 56, 37" % S_T1)
        A.e("s_mov_b32 s%d, %d" % (S_T3, 2048 * 896 - 4)); A.e("s_cselect_b32 s%d, s%d, %d" % (S_T2, S_T3, SZQ - 4))
        A.e("s_cmp_eq_u32 s%d, 2" % S_T0); A.e("s_cselect_b64 s[%d:%d], s[8:9], s[%d:%d]" % (S_R, S_R + 1, S_R, S_R + 1))
        A.e("s_cmp_eq_u32 s%d, 3" % S_T0); A.e("s_cselect_b64 s[%d:%d], s[10:11], s[%d:%d]" % (S_R, S_R + 1, S_R, S_R + 1))
        A.e("s_cmp_ge_u32 s%d, 2" % S_T0); A.e("s_cselect_b32 s%d, 49, s%d" % (S_T1, S_T1))
        A.e("s_mov_b32 s%d, %d" % (S_T3, SZG - 4)); A.e("s_cselect_b32 s%d, s%d, s%d" % (S_T2, S_T3, S_T2))
        A.e("s_mul_i32 s%d, s2, s%d" % (S_T3, S_T1))
        A.e("v_min_u32 v%d, s%d, v%d" % (V_T, S_T1, V_LANE))
        A.e("v_add_u32 v%d, s%d, v%d" % (V_T, S_T3, V_T))
        A.e("v_lshlrev_b32 v%d, 7, v%d" % (V_T, V_T))
        A.e("v_min_u32 v%d, s%d, v%d" % (V_T, S_T2, V_T))
        A.e("global_load_dword v%d, v%d, s[%d:%d]" % (V_DUMP, V_T, S_R, S_R + 1))
        A.label("K1_NOPF0")
    srd(A, S_X, 4, 2048 * 896)
    srd(A, S_W, 14, WS_SIZE)
    srd(A, S_GW, 12, 896)
    A.e("s_lshl_b32 s%d, s%d, 7" % (S_T0, S_RB))
    A.e("s_lshl_b32 s%d, s%d, 3" % (S_T1, S_CG))
    A.e("s_add_u32 s%d, s%d, s%d" % (S_T0, S_T0, S_T1))
    A.e("s_add_u32 s%d, s%d, s%d" % (S_T0, S_T0, S_WAVE))
    A.e("s_mul_i32 s%d, s%d, 896" % (S_T1, S_T0))
    A.e("v_lshlrev_b32 v%d, 4, v%d" % (V_T, V_LANE))
    A.e("v_mov_b32 v%d, 0x7ffffff0" % (V_T + 1))
    A.e("v_cmp_gt_u32 vcc, 56, v%d" % V_LANE)
    A.e("s_nop 1")
    A.e("v_cndmask_b32 v%d, v%d, v%d, vcc" % (V_T, V_T + 1, V_T))
    A.vmem("buffer_load_dwordx4 v[96:99], v%d, s[%d:%d], s%d offen" % (V_T, S_X, S_X + 3, S_T1), "gate")
    A.vmem("buffer_load_dwordx4 v[100:103], v%d, s[%d:%d], 0 offen" % (V_T, S_GW, S_GW + 3), "gate")
    A.e("s_lshl_b32 s%d, s%d, 2" % (S_GOFF, S_T0))
    A.e("s_cmp_eq_u32 s%d, 0" % S_TYP)
    sel_srd(A, S_R + 0, 6, 8, SZQ, SZG)
    A.e("s_cmp_eq_u32 s%d, 0" % S_TYP)
    sel_srd(A, S_R + 4, 6, 8, SZQ, SZG)
    A.e("s_cmp_eq_u32 s%d, 0" % S_TYP)
    sel_srd(A, S_R + 8, 6, 10, SZQ, SZG)
    A.e("s_cmp_eq_u32 s%d, 0" % S_TYP)
    sel_srd(A, S_R + 12, 8, 10, SZG, SZG)
    A.e("s_lshr_b32 s%d, s%d, 1" % (S_T0, S_WAVE))
    A.e("s_and_b32 s%d, s%d, 1" % (S_T0, S_T0))
    A.e("s_xor_b32 s%d, s%d, 1" % (S_T0, S_T0))
    A.e("s_and_b32 s%d, s%d, s%d" % (S_T0, S_T0, S_TYP))
    A.e("s_cmp_eq_u32 s%d, 1" % S_T0)
    sel_srd(A, S_R + 16, 8, 10, SZG, SZG)
    t0, t1, t2 = V_T, V_T + 1, V_T + 2
    A.e("v_and_b32 v%d, 15, v%d" % (t0, V_LANE))
    A.e("v_lshrrev_b32 v%d, 1, v%d" % (t1, t0))
    A.e("v_lshrrev_b32 v%d, 4, v%d" % (t2, V_LANE))
    A.e("v_xor_b32 v%d, v%d, v%d" % (t1, t1, t2))
    A.e("s_lshl_b32 s%d, s%d, 6" % (S_T0, S_RH))
    A.e("v_add_u32 v%d, s%d, v%d" % (t0, S_T0, t0))
    A.e("v_lshlrev_b32 v%d, 7, v%d" % (t0, t0))
    A.e("v_lshl_add_u32 v%d, v%d, 4, v%d" % (t0, t1, t0))
    A.e("v_add_u32 v%d, %d, v%d" % (V_XA, XBASE, t0))
    A.e("v_xor_b32 v%d, 64, v%d" % (V_XA + 1, V_XA))
    A.e("s_cmp_ge_u32 s%d, 4" % S_WAVE)
    A.e("s_cbranch_scc1 K1_DMAW")
    A.e("s_cmp_eq_u32 s%d, 0" % S_TYP)
    A.e("s_cbranch_scc1 K1_QKV6")
    base_vm = list(A.vm)
    for var in ("FFN6", "QKV6"):
        A.vm = list(base_vm)
        A.label("K1_" + var)
        gen_k1_var(A, var)
        A.e("s_branch K1_END")
    A.vm = list(base_vm)
    A.label("K1_DMAW")
    k1_dma_setup(A)
    gen_k1_var(A, "FFN4")
    A.label("K1_END")
    A.e("s_endpgm")

def k1_dma_setup(A):
    t0, t1, t2, t3 = V_T, V_T + 1, V_T + 2, V_T + 3
    SJ = S_T2
    A.e("s_and_b32 s%d, s%d, 3" % (SJ, S_WAVE))
    A.e("v_lshrrev_b32 v%d, 3, v%d" % (t0, V_LANE))
    A.e("v_lshrrev_b32 v%d, 4, v%d" % (t1, V_LANE))
    A.e("v_and_b32 v%d, 1, v%d" % (t1, t1))
    A.e("s_and_b32 s%d, s%d, 1" % (S_T3, SJ))
    A.e("s_lshl_b32 s%d, s%d, 1" % (S_T3, S_T3))
    A.e("v_or_b32 v%d, s%d, v%d" % (t1, S_T3, t1))
    A.e("v_lshrrev_b32 v%d, 1, v%d" % (t2, V_LANE))
    A.e("v_and_b32 v%d, 3, v%d" % (t2, t2))
    A.e("v_xor_b32 v%d, v%d, v%d" % (t1, t1, t2))
    A.e("v_and_b32 v%d, 1, v%d" % (t2, V_LANE))
    A.e("v_lshlrev_b32 v%d, 4, v%d" % (t2, t2))
    A.e("s_lshl_b32 s%d, s%d, 3" % (S_T3, SJ))
    A.e("v_add_u32 v%d, s%d, v%d" % (t0, S_T3, t0))
    A.e("v_lshl_add_u32 v%d, v%d, 5, v%d" % (t3, t1, t2))
    A.e("v_lshrrev_b32 v%d, 1, v%d" % (t1, t1))
    A.e("v_lshlrev_b32 v%d, 3, v%d" % (t1, t1))
    A.e("v_sub_u32 v%d, v%d, v%d" % (t1, t3, t1))
    A.e("v_mul_u32_u24 v%d, 2688, v%d" % (t2, t0))
    A.e("v_add_u32 v%d, v%d, v%d" % (t1, t1, t2))
    A.e("v_mul_u32_u24 v%d, 3584, v%d" % (t2, t0))
    A.e("v_add_u32 v%d, v%d, v%d" % (t3, t3, t2))
    A.e("s_mul_i32 s%d, s%d, 112" % (S_T0, S_PI))
    A.e("s_mul_i32 s%d, s%d, 320" % (S_T1, S_PI))
    A.e("s_add_u32 s%d, s%d, 1024" % (S_T1, S_T1))
    A.e("s_cmp_eq_u32 s%d, 0" % S_TYP)
    A.e("s_cselect_b64 vcc, -1, 0")
    for r in range(3):
        A.e("v_add_u32 v%d, s%d, v%d" % (V_DOFF + r, S_T0, t1))
        A.e("v_add_u32 v%d, %d, v%d" % (V_DOFF + r, r * 896, V_DOFF + r))
        A.e("v_add_u32 v%d, s%d, v%d" % (t2, S_T1, t3))
        if r == 1:
            A.e("v_add_u32 v%d, 128, v%d" % (t2, t2))
        A.e("v_cndmask_b32 v%d, v%d, v%d, vcc" % (V_DOFF + r, t2, V_DOFF + r))
    A.e("s_lshl_b32 s%d, s%d, 7" % (S_T0, S_PI))
    A.e("v_add_u32 v%d, s%d, v%d" % (V_DOFF + 3, S_T0, t3))
    A.e("v_add_u32 v%d, s%d, v%d" % (t2, S_T1, t3))
    A.e("v_add_u32 v%d, 128, v%d" % (t2, t2))
    A.e("v_cndmask_b32 v%d, v%d, v%d, vcc" % (V_DOFF + 3, t2, V_DOFF + 3))
    A.e("v_add_u32 v%d, s%d, v%d" % (V_DOFF + 4, S_T0, t3))
    A.e("v_lshrrev_b32 v%d, 2, v%d" % (t0, V_LANE))
    A.e("s_and_b32 s%d, s%d, 1" % (S_T3, SJ))
    A.e("s_lshl_b32 s%d, s%d, 4" % (S_T3, S_T3))
    A.e("v_add_u32 v%d, s%d, v%d" % (t0, S_T3, t0))
    A.e("v_mul_u32_u24 v%d, 3584, v%d" % (t0, t0))
    A.e("v_lshrrev_b32 v%d, 1, v%d" % (t1, V_LANE))
    A.e("v_lshrrev_b32 v%d, 5, v%d" % (t2, V_LANE))
    A.e("v_xor_b32 v%d, v%d, v%d" % (t1, t1, t2))
    A.e("v_and_b32 v%d, 1, v%d" % (t1, t1))
    A.e("v_lshl_add_u32 v%d, v%d, 5, v%d" % (t0, t1, t0))
    A.e("v_and_b32 v%d, 1, v%d" % (t1, V_LANE))
    A.e("v_lshl_add_u32 v%d, v%d, 4, v%d" % (t0, t1, t0))
    A.e("v_add_u32 v%d, s%d, v%d" % (t0, S_T1, t0))
    A.e("v_add_u32 v%d, 256, v%d" % (t0, t0))
    A.e("v_cndmask_b32 v%d, v%d, v%d, vcc" % (V_DOFF + 4, t0, V_DOFF + 4))
    A.e("s_cmp_eq_u32 s%d, 0" % S_TYP)
    A.e("s_mov_b32 s%d, %d" % (S_T3, 32 * 2688))
    A.e("s_cselect_b32 s%d, s%d, %d" % (S_STR, S_T3, 32 * 3584))
    for r in range(5):
        A.e("s_mov_b32 s%d, 0" % (S_SOFF + r))
    A.e("v_lshrrev_b32 v%d, 3, v%d" % (t0, V_LANE))
    A.e("v_lshrrev_b32 v%d, 4, v%d" % (t1, V_LANE))
    A.e("v_and_b32 v%d, 7, v%d" % (t2, V_LANE))
    A.e("v_xor_b32 v%d, v%d, v%d" % (t1, t1, t2))
    A.e("v_mul_u32_u24 v%d, 896, v%d" % (t0, t0))
    A.e("v_lshl_add_u32 v%d, v%d, 4, v%d" % (V_XD, t1, t0))
    A.e("v_xor_b32 v%d, 64, v%d" % (V_XD + 1, V_XD))
    A.e("s_lshl_b32 s%d, s%d, 7" % (S_T0, S_RB))
    A.e("s_lshl_b32 s%d, s%d, 5" % (S_T1, SJ))
    A.e("s_add_u32 s%d, s%d, s%d" % (S_T0, S_T0, S_T1))
    A.e("s_mul_i32 s%d, s%d, 896" % (S_XO, S_T0))
    A.e("s_lshl_b32 s%d, s%d, 10" % (S_STR + 1, SJ))
    A.e("s_lshl_b32 s%d, s%d, 12" % (S_STR + 2, SJ))
    A.e("s_add_u32 s%d, s%d, %d" % (S_STR + 2, S_STR + 2, XBASE))

def k1_touch_setup(A):
    t0, t1, t2, t3 = V_T, V_T + 1, V_T + 2, V_T + 3
    A.e("v_lshrrev_b32 v%d, 3, v%d" % (t0, V_LANE))
    A.e("v_and_b32 v%d, 7, v%d" % (t1, V_LANE))
    A.e("v_mov_b32 v%d, 0x7ffffff0" % (V_T + 4))
    A.e("s_cmp_eq_u32 s%d, 3" % S_WAVE)
    A.e("s_cbranch_scc1 K1_TS_X%d" % A.uid)
    A.e("s_cmp_eq_u32 s%d, 0" % S_TYP)
    A.e("s_cbranch_scc0 K1_TS_F%d" % A.uid)
    A.e("s_cmp_eq_u32 s%d, 0" % S_WAVE)
    A.e("s_cbranch_scc0 K1_TS_PG%d" % A.uid)
    srd(A, S_R, 6, SZQ)
    A.e("v_lshrrev_b32 v%d, 1, v%d" % (t2, t1))
    A.e("v_mul_u32_u24 v%d, 896, v%d" % (t2, t2))
    A.e("v_and_b32 v%d, 1, v%d" % (t3, t1))
    A.e("v_mul_u32_u24 v%d, 116, v%d" % (t3, t3))
    A.e("v_mul_u32_u24 v%d, 2688, v%d" % (t0, t0))
    A.e("v_add3_u32 v%d, v%d, v%d, v%d" % (V_DOFF, t0, t2, t3))
    A.e("v_cmp_gt_u32 vcc, 6, v%d" % t1)
    A.e("s_mul_i32 s%d, s%d, 112" % (S_SOFF, S_PI))
    A.e("s_mul_i32 s%d, s%d, %d" % (S_T0, S_E, 8 * 2688))
    A.e("s_add_u32 s%d, s%d, s%d" % (S_SOFF, S_SOFF, S_T0))
    A.e("s_mov_b32 s%d, %d" % (S_STR, 64 * 2688))
    A.e("s_branch K1_TS_END%d" % A.uid)
    A.label("K1_TS_PG%d" % A.uid)
    A.e("s_cmp_eq_u32 s%d, 1" % S_WAVE)
    sel_srd(A, S_R, 8, 10, SZG, SZG)
    A.e("v_mul_u32_u24 v%d, 3584, v%d" % (V_DOFF, t0))
    if "t64" in EXP:
        A.e("v_lshl_add_u32 v%d, v%d, 6, v%d" % (V_DOFF, t1, V_DOFF))
        A.e("v_cmp_gt_u32 vcc, 2, v%d" % t1)
    else:
        A.e("v_cmp_gt_u32 vcc, 1, v%d" % t1)
    A.e("s_lshl_b32 s%d, s%d, 7" % (S_SOFF, S_PI))
    A.e("s_mul_i32 s%d, s%d, %d" % (S_T0, S_E, 8 * 3584))
    A.e("s_add_u32 s%d, s%d, s%d" % (S_SOFF, S_SOFF, S_T0))
    A.e("s_mov_b32 s%d, %d" % (S_STR, 64 * 3584))
    A.e("s_branch K1_TS_END%d" % A.uid)
    A.label("K1_TS_F%d" % A.uid)
    A.e("s_cmp_eq_u32 s%d, 0" % S_WAVE)
    sel_srd(A, S_R, 8, 10, SZG, SZG)
    A.e("v_lshlrev_b32 v%d, %d, v%d" % (t2, 6 if "t64" in EXP else 7, t1))
    A.e("v_min_u32 v%d, 316, v%d" % (t2, t2))
    A.e("v_mul_u32_u24 v%d, 3584, v%d" % (t0, t0))
    A.e("v_add_u32 v%d, v%d, v%d" % (V_DOFF, t0, t2))
    A.e("s_cmp_lt_u32 s%d, 2" % S_WAVE)
    A.e("s_cselect_b32 s%d, %d, 0" % (S_T0, 6 if "t64" in EXP else 4))
    A.e("v_cmp_gt_u32 vcc, s%d, v%d" % (S_T0, t1))
    A.e("s_mul_i32 s%d, s%d, 320" % (S_SOFF, S_PI))
    A.e("s_add_u32 s%d, s%d, 1024" % (S_SOFF, S_SOFF))
    A.e("s_mul_i32 s%d, s%d, %d" % (S_T0, S_E, 8 * 3584))
    A.e("s_add_u32 s%d, s%d, s%d" % (S_SOFF, S_SOFF, S_T0))
    A.e("s_mov_b32 s%d, %d" % (S_STR, 64 * 3584))
    A.e("s_branch K1_TS_END%d" % A.uid)
    A.label("K1_TS_X%d" % A.uid)
    srd(A, S_R, 4, 2048 * 896)
    if "t64" in EXP:
        A.e("v_lshrrev_b32 v%d, 1, v%d" % (t2, V_LANE))
        A.e("v_mul_u32_u24 v%d, 896, v%d" % (V_DOFF, t2))
        A.e("v_and_b32 v%d, 1, v%d" % (t2, V_LANE))
        A.e("v_lshl_add_u32 v%d, v%d, 6, v%d" % (V_DOFF, t2, V_DOFF))
        A.e("v_cmp_gt_u32 vcc, 64, v%d" % V_LANE)
    else:
        A.e("v_mul_u32_u24 v%d, 896, v%d" % (V_DOFF, V_LANE))
        A.e("v_cmp_gt_u32 vcc, 32, v%d" % V_LANE)
    A.e("s_lshl_b32 s%d, s%d, 7" % (S_T0, S_RB))
    A.e("s_and_b32 s%d, s%d, 3" % (S_T1, S_IDX))
    A.e("s_lshl_b32 s%d, s%d, 5" % (S_T1, S_T1))
    A.e("s_add_u32 s%d, s%d, s%d" % (S_T0, S_T0, S_T1))
    A.e("s_mul_i32 s%d, s%d, 896" % (S_SOFF, S_T0))
    A.e("s_mov_b32 s%d, 128" % S_STR)
    A.label("K1_TS_END%d" % A.uid)
    A.e("s_nop 1")
    A.e("v_cndmask_b32 v%d, v%d, v%d, vcc" % (V_DOFF, V_T + 4, V_DOFF))
    A.uid += 1

def k1_cwr_setup(A):
    T = V_T
    A.e("s_cmp_eq_u32 s%d, 0" % S_WAVE); A.e("s_cselect_b32 s%d, s4, s6" % S_T1); A.e("s_cselect_b32 s%d, s5, s7" % S_T2)
    A.e("s_cmp_eq_u32 s%d, 2" % S_WAVE); A.e("s_cselect_b32 s%d, s8, s%d" % (S_T1, S_T1)); A.e("s_cselect_b32 s%d, s9, s%d" % (S_T2, S_T2))
    A.e("s_cmp_eq_u32 s%d, 3" % S_WAVE); A.e("s_cselect_b32 s%d, s10, s%d" % (S_T1, S_T1)); A.e("s_cselect_b32 s%d, s11, s%d" % (S_T2, S_T2))
    A.e("s_mov_b32 s%d, s%d" % (S_R, S_T1))
    A.e("s_and_b32 s%d, s%d, 0xffff" % (S_R + 1, S_T2))
    A.e("s_mov_b32 s%d, %d" % (S_T3, SZQ))
    A.e("s_cmp_eq_u32 s%d, 1" % S_WAVE); A.e("s_cselect_b32 s%d, s%d, %d" % (S_R + 2, S_T3, SZG))
    A.e("s_mov_b32 s%d, %d" % (S_T3, 2048 * 896))
    A.e("s_cmp_eq_u32 s%d, 0" % S_WAVE); A.e("s_cselect_b32 s%d, s%d, s%d" % (S_R + 2, S_T3, S_R + 2))
    A.e("s_mov_b32 s%d, 0x00020000" % (S_R + 3))
    A.e("s_mov_b32 s%d, 7" % S_T3)
    A.e("s_cmp_eq_u32 s%d, 1" % S_WAVE); A.e("s_cselect_b32 s%d, 6, s%d" % (S_T3, S_T3))
    A.e("s_cmp_eq_u32 s%d, 0" % S_WAVE); A.e("s_cselect_b32 s%d, 8, s%d" % (S_T3, S_T3))
    A.e("s_mul_i32 s%d, s2, s%d" % (S_T0, S_T3))
    A.e("s_mul_i32 s%d, s2, 21" % S_T1)
    A.e("s_lshr_b32 s%d, s%d, 2" % (S_T1, S_T1))
    A.e("s_cmp_eq_u32 s%d, 1" % S_WAVE); A.e("s_cselect_b32 s%d, s%d, s%d" % (S_T0, S_T1, S_T0))
    A.e("s_mov_b32 s%d, 128" % S_T1)
    A.e("s_cmp_eq_u32 s%d, 0" % S_WAVE); A.e("s_cselect_b32 s%d, 896, s%d" % (S_T1, S_T1))
    A.e("v_add_u32 v%d, s%d, v%d" % (T, S_T0, V_LANE))
    A.e("v_mul_lo_u32 v%d, v%d, s%d" % (T, T, S_T1))
    A.e("v_mov_b32 v%d, 0x7ffffff0" % (T + 1))
    A.e("v_cmp_gt_u32 vcc, s%d, v%d" % (S_T3, V_LANE))
    A.e("s_nop 1")
    A.e("v_cndmask_b32 v%d, v%d, v%d, vcc" % (V_DOFF, T + 1, T))
    A.e("s_mov_b32 s%d, %d" % (S_T3, 64 * 3584))
    A.e("s_mov_b32 s%d, %d" % (S_T1, 64 * 2688))
    A.e("s_cmp_eq_u32 s%d, 1" % S_WAVE); A.e("s_cselect_b32 s%d, s%d, s%d" % (S_T3, S_T1, S_T3))
    A.e("s_cmp_eq_u32 s%d, 0" % S_WAVE); A.e("s_cselect_b32 s%d, 128, s%d" % (S_STR, S_T3))
    A.e("s_mov_b32 s%d, 0" % S_SOFF)

def k1_prefetch0(A):
    T = V_T
    A.e("s_lshl_b32 s%d, s%d, 1" % (S_T0, S_WAVE))
    A.e("s_cmp_eq_u32 s%d, 0" % S_WAVE); A.e("s_cselect_b32 s%d, s4, s6" % S_T1); A.e("s_cselect_b32 s%d, s5, s7" % S_T2)
    A.e("s_cmp_eq_u32 s%d, 2" % S_WAVE); A.e("s_cselect_b32 s%d, s8, s%d" % (S_T1, S_T1)); A.e("s_cselect_b32 s%d, s9, s%d" % (S_T2, S_T2))
    A.e("s_cmp_eq_u32 s%d, 3" % S_WAVE); A.e("s_cselect_b32 s%d, s10, s%d" % (S_T1, S_T1)); A.e("s_cselect_b32 s%d, s11, s%d" % (S_T2, S_T2))
    A.e("s_mov_b32 s%d, s%d" % (S_R + 4, S_T1))
    A.e("s_and_b32 s%d, s%d, 0xffff" % (S_R + 5, S_T2))
    A.e("s_mov_b32 s%d, %d" % (S_T3, SZQ))
    A.e("s_cmp_eq_u32 s%d, 1" % S_WAVE); A.e("s_cselect_b32 s%d, s%d, %d" % (S_R + 6, S_T3, SZG))
    A.e("s_mov_b32 s%d, %d" % (S_T3, 2048 * 896))
    A.e("s_cmp_eq_u32 s%d, 0" % S_WAVE); A.e("s_cselect_b32 s%d, s%d, s%d" % (S_R + 6, S_T3, S_R + 6))
    A.e("s_mov_b32 s%d, 0x00020000" % (S_R + 7))
    A.e("s_mov_b32 s%d, 49" % S_T3)
    A.e("s_cmp_eq_u32 s%d, 1" % S_WAVE); A.e("s_cselect_b32 s%d, 37, s%d" % (S_T3, S_T3))
    A.e("s_cmp_eq_u32 s%d, 0" % S_WAVE); A.e("s_cselect_b32 s%d, 56, s%d" % (S_T3, S_T3))
    A.e("s_mul_i32 s%d, s%d, s2" % (S_T1, S_T3))
    A.e("s_lshl_b32 s%d, s%d, 7" % (S_T1, S_T1))
    A.e("v_lshlrev_b32 v%d, 7, v%d" % (T, V_LANE))
    A.e("v_mov_b32 v%d, 0x7ffffff0" % (T + 1))
    A.e("v_cmp_gt_u32 vcc, s%d, v%d" % (S_T3, V_LANE))
    A.e("s_nop 1")
    A.e("v_cndmask_b32 v%d, v%d, v%d, vcc" % (T, T + 1, T))
    A.vmem("buffer_load_dword v%d, v%d, s[%d:%d], s%d offen" % (V_DUMP, T, S_R + 4, S_R + 7, S_T1), "pf")

def k1_prefetch2(A):
    T = V_T
    srd(A, S_GW, 96, 1792 * 896)
    if "pf2chip" in EXP:
        A.e("s_lshl_b32 s%d, s2, 2" % S_T0)
        A.e("s_add_u32 s%d, s%d, s%d" % (S_T0, S_T0, S_WAVE))
        A.e("s_mul_i32 s%d, s%d, %d" % (S_T1, S_T0, 13 * 128))
        A.e("v_lshlrev_b32 v%d, 7, v%d" % (T, V_LANE))
        A.e("v_mov_b32 v%d, 0x7ffffff0" % (T + 1))
        A.e("v_cmp_gt_u32 vcc, 13, v%d" % V_LANE)
        A.e("s_nop 1")
        A.e("v_cndmask_b32 v%d, v%d, v%d, vcc" % (T + 2, T + 1, T))
        A.vmem("buffer_load_dword v%d, v%d, s[%d:%d], s%d offen" % (V_DUMP, T + 2, S_GW, S_GW + 3, S_T1), "pf")
        srd(A, S_R + 4, 98, 448 * 896)
        A.e("s_mul_i32 s%d, s%d, %d" % (S_T1, S_T0, 4 * 128))
        A.e("v_cmp_gt_u32 vcc, 4, v%d" % V_LANE)
        A.e("s_nop 1")
        A.e("v_cndmask_b32 v%d, v%d, v%d, vcc" % (T + 2, T + 1, T))
        A.vmem("buffer_load_dword v%d, v%d, s[%d:%d], s%d offen" % (V_DUMP + 2, T + 2, S_R + 4, S_R + 7, S_T1), "pf")
        return
    A.e("s_lshl_b32 s%d, s%d, 2" % (S_T0, S_IDX))
    A.e("s_add_u32 s%d, s%d, s%d" % (S_T0, S_T0, S_WAVE))
    A.e("s_mul_i32 s%d, s%d, %d" % (S_T1, S_T0, 98 * 128))
    A.e("v_lshlrev_b32 v%d, 7, v%d" % (T, V_LANE))
    A.vmem("buffer_load_dword v%d, v%d, s[%d:%d], s%d offen" % (V_DUMP, T, S_GW, S_GW + 3, S_T1), "pf")
    A.e("v_mov_b32 v%d, 0x7ffffff0" % (T + 1))
    A.e("v_cmp_gt_u32 vcc, 34, v%d" % V_LANE)
    A.e("s_nop 1")
    A.e("v_cndmask_b32 v%d, v%d, v%d, vcc" % (T + 2, T + 1, T))
    A.e("s_add_u32 s%d, s%d, %d" % (S_T1, S_T1, 64 * 128))
    A.vmem("buffer_load_dword v%d, v%d, s[%d:%d], s%d offen" % (V_DUMP + 1, T + 2, S_GW, S_GW + 3, S_T1), "pf")
    srd(A, S_R + 4, 98, 448 * 896)
    A.e("s_mul_i32 s%d, s%d, %d" % (S_T1, S_T0, 25 * 128))
    A.e("v_cmp_gt_u32 vcc, 25, v%d" % V_LANE)
    A.e("s_nop 1")
    A.e("v_cndmask_b32 v%d, v%d, v%d, vcc" % (T + 2, T + 1, T))
    A.vmem("buffer_load_dword v%d, v%d, s[%d:%d], s%d offen" % (V_DUMP + 2, T + 2, S_R + 4, S_R + 7, S_T1), "pf")

def gen_k1_var(A, var):
    dma = var.startswith("FFN4")
    nt = 6 if var.endswith("6") else 4
    poffs = [512] * 6
    if var == "FFN6":
        poffs = [512, 512, 512, 512, 256, 256]
    if var == "QKV6":
        A.e("s_and_b32 s%d, s%d, 2" % (S_T0, S_WAVE))
        for i in range(2):
            A.e("s_add_u32 s%d, s%d, %d" % (S_T1, S_T0, i))
            emit_raddr(A, V_WA + i, "T4", "s%d" % S_T1)
        for m in (1, 2):
            for i in range(2):
                A.e("v_add_u32 v%d, %d, v%d" % (V_WA + 2 * m + i, m * 4096, V_WA + i))
    elif var == "FFN6":
        A.e("s_and_b32 s%d, s%d, 2" % (S_T0, S_WAVE))
        for p in range(2):
            A.e("s_add_u32 s%d, s%d, %d" % (S_T1, S_T0, p))
            emit_raddr(A, V_WA + 2 * p, "T4", "s%d" % S_T1)
            A.e("v_add_u32 v%d, 8192, v%d" % (V_WA + 2 * p + 1, V_WA + 2 * p))
        A.e("s_lshr_b32 s%d, s%d, 1" % (S_T1, S_WAVE))
        emit_raddr(A, V_WA + 4, "T2", "s%d" % S_T1)
        A.e("v_add_u32 v%d, 16384, v%d" % (V_WA + 4, V_WA + 4))
        A.e("v_add_u32 v%d, 2048, v%d" % (V_WA + 5, V_WA + 4))
    elif var == "FFN4":
        A.e("s_and_b32 s%d, s%d, 2" % (S_T0, S_WAVE))
        A.e("s_cmp_eq_u32 s%d, 0" % S_TYP)
        A.e("s_cselect_b32 s%d, 3, 1" % S_T3)
        A.e("s_cselect_b32 s%d, 1, 2" % S_T2)
        A.e("s_lshl_b32 s%d, s%d, 12" % (S_STR + 4, S_T3))
        A.e("s_lshl_b32 s%d, s%d, 12" % (S_STR + 3, S_T2))
        for p in range(2):
            A.e("s_add_u32 s%d, s%d, %d" % (S_T1, S_T0, p))
            emit_raddr(A, V_WA + 2 * p, "T4", "s%d" % S_T1)
            A.e("v_add_u32 v%d, s%d, v%d" % (V_WA + 2 * p, S_STR + 4, V_WA + 2 * p))
            A.e("v_add_u32 v%d, s%d, v%d" % (V_WA + 2 * p + 1, S_STR + 3, V_WA + 2 * p))
    for i in range(nt):
        A.e("v_add_u32 v%d, %d, v%d" % (V_WA + 6 + i, WHI, V_WA + i))
    if not dma:
        if "cwr" in EXP:
            k1_cwr_setup(A)
        elif "nopf" not in EXP:
            k1_touch_setup(A)

    def issue_w(stage):
        slot = stage % 4
        for r in range(5):
            A.e("s_add_u32 m0, s%d, %d" % (S_STR + 1, slot * WSTG + r * 4096))
            A.e("s_nop 0")
            A.vmem("buffer_load_dwordx4 v%d, s[%d:%d], s%d offen lds" % (V_DOFF + r, S_R + 4 * r, S_R + 4 * r + 3, S_SOFF + r), ("st", stage))
            if r < 3:
                A.e("s_add_u32 s%d, s%d, s%d" % (S_SOFF + r, S_SOFF + r, S_STR))
            else:
                A.e("s_add_u32 s%d, s%d, %d" % (S_SOFF + r, S_SOFF + r, 32 * 3584))
    def issue_x(d):
        for i in range(4):
            A.e("s_add_u32 m0, s%d, %d" % (S_STR + 2, (d % 2) * XSLOT + i * 1024))
            A.e("s_add_u32 s%d, s%d, %d" % (S_T0, S_XO, i * 8 * 896 + d * 128))
            A.vmem("buffer_load_dwordx4 v%d, s[%d:%d], s%d offen lds" % (V_XD + (i & 1), S_X, S_X + 3, S_T0), ("x", d))
    def touch(d):
        A.e("s_mul_i32 s%d, s%d, %d" % (S_T0, S_STR, d))
        A.e("s_add_u32 s%d, s%d, s%d" % (S_T0, S_T0, S_SOFF))
        A.vmem("buffer_load_dword v%d, v%d, s[%d:%d], s%d offen" % (V_DUMP + 3, V_DOFF, S_R, S_R + 3, S_T0), "pf")
    def read_list(stage):
        slot = stage % 4
        st = stage & 1
        hi = 1 if slot >= 2 else 0
        base = (slot - 2 * hi) * WSTG
        out = []
        d = stage // 2
        for rt in range(4):
            out.append("ds_read_b128 v[%d:%d], v%d offset:%d" % (V_XF + st * 16 + rt * 4, V_XF + st * 16 + rt * 4 + 3, V_XA + (stage & 1), (d % 2) * XSLOT + rt * 2048))
        for ti in range(nt):
            dd = V_WF + st * 24 + ti * 4
            for p in range(2):
                out.append("ds_read_b64_tr_b16 v[%d:%d], v%d offset:%d" % (dd + 2 * p, dd + 2 * p + 1, V_WA + ti + 6 * hi, base + p * poffs[ti]))
        return out

    A.nst = 0
    A.stamp()
    if STAMP:
        A.e("s_memrealtime s[100:101]")
    NK = 14
    if dma:
        if "prio" in EXP:
            A.e("s_setprio 1")
        if "dly" in EXP:
            A.e("s_sleep %d" % int(os.environ.get("DLY", "32")))
        issue_x(0); issue_w(0); issue_w(1); issue_x(1); issue_w(2)
    else:
        if "cwr" in EXP:
            for d in range(CW0):
                touch(d)
        elif "nopf" not in EXP and "latepf" not in EXP:
            for d in (1, 2, 3):
                touch(d)
    A.wait_vm("gate")
    T = V_T
    A.e("v_mov_b32 v%d, 0" % V_GATE)
    for d in range(4):
        unpack2(A, T, T + 1, 96 + d)
        unpack2(A, T + 2, T + 3, 100 + d)
        A.e("v_pk_mul_f32 v[%d:%d], v[%d:%d], v[%d:%d]" % (T, T + 1, T, T + 1, T + 2, T + 3))
        A.e("v_cvt_pk_bf16_f32 v%d, v%d, v%d" % (T + 4, T, T + 1))
        unpack2(A, T, T + 1, T + 4)
        A.e("v_add_f32 v%d, v%d, v%d" % (V_GATE, V_GATE, T))
        A.e("v_add_f32 v%d, v%d, v%d" % (V_GATE, V_GATE, T + 1))
    for mod in ("quad_perm:[1,0,3,2]", "quad_perm:[2,3,0,1]", "row_half_mirror", "row_mirror"):
        A.e("s_nop 1")
        A.e("v_add_f32_dpp v%d, v%d, v%d %s row_mask:0xf bank_mask:0xf" % (V_GATE, V_GATE, V_GATE, mod))
    A.e("s_nop 1")
    A.e("v_readlane_b32 s%d, v%d, 16" % (S_T0, V_GATE))
    A.e("v_readlane_b32 s%d, v%d, 32" % (S_T1, V_GATE))
    A.e("v_readlane_b32 s%d, v%d, 48" % (S_T2, V_GATE))
    A.e("s_nop 1")
    A.e("v_add_f32 v%d, s%d, v%d" % (V_GATE, S_T0, V_GATE))
    A.e("v_add_f32 v%d, s%d, v%d" % (V_GATE, S_T1, V_GATE))
    A.e("v_add_f32 v%d, s%d, v%d" % (V_GATE, S_T2, V_GATE))
    A.e("v_cvt_pk_bf16_f32 v%d, v%d, v%d" % (V_GATE, V_GATE, V_GATE))
    A.e("v_lshlrev_b32 v%d, 16, v%d" % (V_GATE, V_GATE))
    A.e("v_mul_f32 v%d, s%d, v%d" % (V_GATE, S_NL2E, V_GATE))
    A.e("v_exp_f32 v%d, v%d" % (V_GATE, V_GATE))
    A.e("s_nop 0")
    A.e("v_add_f32 v%d, 1.0, v%d" % (V_GATE, V_GATE))
    A.e("v_rcp_f32 v%d, v%d" % (V_GATE, V_GATE))
    A.e("s_nop 0")
    A.e("v_cvt_pk_bf16_f32 v%d, v%d, v%d" % (V_GATE, V_GATE, V_GATE))
    A.e("v_lshlrev_b32 v%d, 16, v%d" % (V_GATE, V_GATE))

    def wait_stage(stage, extra=""):
        if dma:
            tags = [("st", stage), ("x", stage // 2)]
            idx = None
            for i, t in enumerate(A.vm):
                if t in tags: idx = i
            if idx is None:
                if extra: A.e("s_waitcnt " + extra)
            else:
                n = len(A.vm) - 1 - idx
                A.e("s_waitcnt vmcnt(%d) %s" % (n, extra))
                A.vm = A.vm[idx + 1:]
        elif extra:
            A.e("s_waitcnt " + extra)

    wait_stage(0)
    A.e("s_barrier")
    if not dma and "latepf" in EXP:
        for d in (1, 2, 3):
            touch(d)
    for r in read_list(0):
        A.e(r)
    for s in range(NK):
        A.c("---- step %d ----" % s)
        if s in (1, 8):
            A.stamp()
        if s + 1 < NK:
            wait_stage(s + 1, "lgkmcnt(0)")
            A.e("s_barrier")
        else:
            A.e("s_waitcnt lgkmcnt(0)")
        if dma:
            if s + 3 < NK:
                issue_w(s + 3)
            if s % 2 == 1 and (s + 3) // 2 < 7:
                issue_x((s + 3) // 2)
        else:
            if "cwr" in EXP:
                if s + CW0 < 7:
                    touch(s + CW0)
            elif s % 2 == 0 and s // 2 + 4 < 7 and "nopf" not in EXP:
                touch(s // 2 + 4)
            if s == PF2STEP and "nopf2" not in EXP:
                k1_prefetch2(A)
        reads = read_list(s + 1) if s + 1 < NK else []
        st = s & 1
        mf = []
        for ti in range(nt):
            for rt in range(4):
                acc = V_ACC + (ti * 4 + rt) * 4
                xf = V_XF + st * 16 + rt * 4
                wf = V_WF + st * 24 + ti * 4
                cin = "0" if s == 0 else "v[%d:%d]" % (acc, acc + 3)
                if var == "QKV6" and ti >= 2:
                    a, b = xf, wf
                else:
                    a, b = wf, xf
                mf.append("v_mfma_f32_16x16x32_bf16 v[%d:%d], v[%d:%d], v[%d:%d], %s" % (acc, acc + 3, a, a + 3, b, b + 3, cin))
        ri = 0
        for m in mf:
            A.e(m)
            if ri < len(reads):
                A.e(reads[ri]); ri += 1
        while ri < len(reads):
            A.e(reads[ri]); ri += 1

    A.c("---- epilogue ----")
    A.stamp()
    A.e("s_mov_b32 s%d, 0x%x" % (S_L2E2, LOG2E))
    A.e("s_mov_b32 s%d, 0x%x" % (S_L2E2 + 1, LOG2E))
    A.e("s_mov_b32 s%d, 0x%x" % (S_EPS2, EPS))
    A.e("s_mov_b32 s%d, 0x%x" % (S_EPS2 + 1, EPS))
    A.nop(6)
    A.e("v_mov_b32 v%d, 0x7ffffff0" % (V_T + 1))
    A.e("v_mov_b32 v%d, %d" % (V_T, WS_G))
    A.e("v_cmp_eq_u32 vcc, 0, v%d" % V_LANE)
    A.e("s_nop 1")
    A.e("v_cndmask_b32 v%d, v%d, v%d, vcc" % (V_T, V_T + 1, V_T))
    A.vmem("buffer_store_dword v%d, v%d, s[%d:%d], s%d offen" % (V_GATE, V_T, S_W, S_W + 3, S_GOFF), "out")
    VL16 = 9
    A.e("v_lshlrev_b32 v%d, 4, v%d" % (VL16, V_LANE))
    TMP = 32
    if var == "QKV6":
        S_HEAD = S_T3
        A.e("s_lshl_b32 s%d, s%d, 1" % (S_HEAD, S_PI))
        A.e("s_lshr_b32 s%d, s%d, 1" % (S_T0, S_WAVE))
        A.e("s_add_u32 s%d, s%d, s%d" % (S_HEAD, S_HEAD, S_T0))
        M48, M12, ONE12 = 2, 3, 4
        A.e("v_cmp_gt_u32 vcc, 48, v%d" % V_LANE)
        A.e("s_nop 1")
        A.e("v_cndmask_b32 v%d, 0, -1, vcc" % M48)
        A.e("v_and_b32 v%d, 15, v%d" % (V_T, V_LANE))
        A.e("v_cmp_gt_u32 vcc, 12, v%d" % V_T)
        A.e("s_nop 1")
        A.e("v_cndmask_b32 v%d, 0, -1, vcc" % M12)
        A.e("v_mov_b32 v%d, 0x3f803f80" % (V_T + 1))
        A.e("v_cmp_eq_u32 vcc, 12, v%d" % V_T)
        A.e("s_nop 1")
        A.e("v_cndmask_b32 v%d, 0, v%d, vcc" % (ONE12, V_T + 1))
        QF = 48
        for rt in range(4):
            for dt in range(2):
                acc = V_ACC + ((0 + dt) * 4 + rt) * 4
                emit_phi4(A, acc, QF + rt * 4 + dt * 2, TMP)
            A.e("v_and_b32 v%d, v%d, v%d" % (QF + rt * 4 + 2, QF + rt * 4 + 2, M48))
            A.e("v_and_b32 v%d, v%d, v%d" % (QF + rt * 4 + 3, QF + rt * 4 + 3, M48))
            A.e("s_add_u32 s%d, s%d, %d" % (S_T0, S_R0T, rt))
            A.e("s_lshl_b32 s%d, s%d, 4" % (S_T0, S_T0))
            A.e("s_add_u32 s%d, s%d, s%d" % (S_T0, S_T0, S_HEAD))
            A.e("s_lshl_b32 s%d, s%d, 10" % (S_T0, S_T0))
            A.e("s_add_u32 s%d, s%d, %d" % (S_T0, S_T0, WS_PQ))
            A.vmem("buffer_store_dwordx4 v[%d:%d], v%d, s[%d:%d], s%d offen %s" % (QF + rt * 4, QF + rt * 4 + 3, VL16, S_W, S_W + 3, S_T0, STF), "out")
        KP, VP = 64, 80
        for dt in range(2):
            for rt in range(4):
                acc = V_ACC + ((2 + dt) * 4 + rt) * 4
                d = KP + dt * 8 + rt * 2
                emit_phi4(A, acc, d, TMP)
                if dt == 1:
                    A.e("v_and_b32 v%d, v%d, v%d" % (d, d, M12))
                    A.e("v_and_b32 v%d, v%d, v%d" % (d + 1, d + 1, M12))
        for et in range(2):
            for rt in range(4):
                acc = V_ACC + ((4 + et) * 4 + rt) * 4
                d = VP + et * 8 + rt * 2
                for h in range(2):
                    A.e("v_cvt_pk_bf16_f32 v%d, v%d, v%d" % (d + h, acc + 2 * h, acc + 2 * h + 1))
                    if et == 1:
                        A.e("v_and_or_b32 v%d, v%d, v%d, v%d" % (d + h, d + h, M12, ONE12))
        A.nop(2)
        KV = 96
        for blk in range(2):
            for dt in range(2):
                for et in range(2):
                    acc = KV + (dt * 2 + et) * 4
                    a = KP + dt * 8 + blk * 4
                    b = VP + et * 8 + blk * 4
                    cin = "0" if blk == 0 else "v[%d:%d]" % (acc, acc + 3)
                    A.e("v_mfma_f32_16x16x32_bf16 v[%d:%d], v[%d:%d], v[%d:%d], %s" % (acc, acc + 3, a, a + 3, b, b + 3, cin))
        A.nop(10)
        A.e("s_lshl_b32 s%d, s%d, 5" % (S_T0, S_HEAD))
        A.e("s_lshl_b32 s%d, s%d, 1" % (S_T1, S_RB))
        A.e("s_add_u32 s%d, s%d, s%d" % (S_T0, S_T0, S_T1))
        A.e("s_add_u32 s%d, s%d, s%d" % (S_T0, S_T0, S_RH))
        A.e("s_lshl_b32 s%d, s%d, 12" % (S_T0, S_T0))
        A.e("s_add_u32 s%d, s%d, %d" % (S_T0, S_T0, WS_KVP))
        for t in range(4):
            A.vmem("buffer_store_dwordx4 v[%d:%d], v%d, s[%d:%d], s%d offen offset:%d %s" % (KV + t * 4, KV + t * 4 + 3, VL16, S_W, S_W + 3, S_T0, t * 1024, STF), "out")
    else:
        S_FT = S_T3
        if var == "FFN6":
            A.e("s_mul_i32 s%d, s%d, 10" % (S_FT, S_PI))
            A.e("s_and_b32 s%d, s%d, 2" % (S_T0, S_WAVE))
            A.e("s_add_u32 s%d, s%d, s%d" % (S_FT, S_FT, S_T0))
            A.e("s_add_u32 s%d, s%d, 32" % (S_FT, S_FT))
        else:
            A.e("s_lshl_b32 s%d, s%d, 2" % (S_T0, S_PI))
            A.e("s_mul_i32 s%d, s%d, 10" % (S_T1, S_PI))
            A.e("s_add_u32 s%d, s%d, 36" % (S_T1, S_T1))
            A.e("s_cmp_eq_u32 s%d, 0" % S_TYP)
            A.e("s_cselect_b32 s%d, s%d, s%d" % (S_FT, S_T0, S_T1))
            A.e("s_and_b32 s%d, s%d, 2" % (S_T1, S_WAVE))
            A.e("s_add_u32 s%d, s%d, s%d" % (S_FT, S_FT, S_T1))
        HP = 48
        A.e("s_lshr_b32 s%d, s%d, 1" % (S_T1, S_FT))
        A.e("s_lshl_b32 s%d, s%d, 10" % (S_T1, S_T1))
        k = 0
        for rt in range(4):
            d = HP + rt * 4
            for p in range(2):
                g = V_ACC + ((2 * p) * 4 + rt) * 4
                u = V_ACC + ((2 * p + 1) * 4 + rt) * 4
                emit_swiglu4(A, g, u, d + 2 * p, TMP + (k % 2) * 4)
                k += 1
            A.e("s_add_u32 s%d, s%d, %d" % (S_T0, S_R0T, rt))
            A.e("s_mul_i32 s%d, s%d, %d" % (S_T0, S_T0, 56 * 1024))
            A.e("s_add_u32 s%d, s%d, s%d" % (S_T0, S_T0, S_T1))
            A.vmem("buffer_store_dwordx4 v[%d:%d], v%d, s[%d:%d], s%d offen %s" % (d, d + 3, VL16, S_W, S_W + 3, S_T0, STF), "out")
        if var == "FFN6":
            A.e("s_mul_i32 s%d, s%d, 5" % (S_T1, S_PI))
            A.e("s_add_u32 s%d, s%d, 20" % (S_T1, S_T1))
            A.e("s_lshl_b32 s%d, s%d, 10" % (S_T1, S_T1))
            A.e("s_lshr_b32 s%d, s%d, 1" % (S_T2, S_WAVE))
            A.e("s_lshl_b32 s%d, s%d, 3" % (S_T2, S_T2))
            A.e("s_add_u32 s%d, s%d, s%d" % (S_T1, S_T1, S_T2))
            for rt in range(4):
                g = V_ACC + (4 * 4 + rt) * 4
                u = V_ACC + (5 * 4 + rt) * 4
                d = 64 + rt * 2
                emit_swiglu4(A, g, u, d, TMP + (k % 2) * 4)
                k += 1
                A.e("s_add_u32 s%d, s%d, %d" % (S_T0, S_R0T, rt))
                A.e("s_mul_i32 s%d, s%d, %d" % (S_T0, S_T0, 56 * 1024))
                A.e("s_add_u32 s%d, s%d, s%d" % (S_T0, S_T0, S_T1))
                A.vmem("buffer_store_dwordx2 v[%d:%d], v%d, s[%d:%d], s%d offen %s" % (d, d + 1, VL16, S_W, S_W + 3, S_T0, STF), "out")
    A.stamp()
    A.stamp(True)
    A.stamp_flush(S_W, S_WAVE, 8, WS_STAMP)

P_SW2, P_SWO, P_SOUT, P_SDBG = 28, 32, 36, 40
P_MT, P_NT = 44, 45
P_LB = 46
P_W2B = 47
P_WOB = 68
P_HB = 69
P_PB = 70
P_KVB = 71
Q_DOFF = 31
Q_L16 = 2
Q_RA = 3
Q_FLAG = 7
Q_ZOFF = 8
Q_G = 9
Q_BA = 10
Q_T = 11
Q_AF = 32
Q_BF = 64
Q_KV = 96
Q_OF = 120
Q_ACC = 128
KVSTEP = int(os.environ.get("KVSTEP", "12"))
RING = 4
SLOT = 8192
NS = 18
BFL = os.environ.get("BFL", "")

def p2_issue_w(A, step):
    slot = step % RING
    if step < 14:
        srdw = P_SW2; base = P_W2B; rowoff = (step % 3 if "k2same" in EXP else step) * 32 * 896
    else:
        srdw = P_SWO; base = P_WOB; rowoff = (step - 14) * 28 * 896
    for o in range(4):
        A.e("s_add_u32 m0, s%d, %d" % (P_LB, slot * SLOT + o * 1024))
        A.e("s_add_u32 s%d, s%d, %d" % (S_T0, base, rowoff + o * 8 * 896))
        A.vmem("buffer_load_dwordx4 v%d, s[%d:%d], s%d offen lds" % (Q_DOFF, srdw, srdw + 3, S_T0), ("w", step))

def p2_issue_b(A, step):
    slot = step % RING
    for rt in range(4):
        A.e("s_add_u32 m0, s%d, %d" % (P_LB, slot * SLOT + 4096 + rt * 1024))
        if step < 14:
            A.e("s_add_u32 s%d, s%d, %d" % (S_T0, P_HB, rt * 56 * 1024 + (step % 3 if "k2same" in EXP else step) * 1024))
        else:
            A.e("s_add_u32 s%d, s%d, %d" % (S_T0, P_PB, rt * 16 * 1024 + (step - 14) * 1024))
        A.vmem("buffer_load_dwordx4 v%d, s[%d:%d], s%d offen lds" % (Q_L16, S_W, S_W + 3, S_T0), ("b", step))

def gen_k2(A):
    A.vm = []
    A.label("k2_kernel")
    if STAMP:
        A.e("s_memrealtime s[92:93]")
    A.e("s_cmp_ge_u32 s2, 240")
    A.e("s_cbranch_scc1 K2_END")
    A.e("s_load_dwordx2 s[98:99], s[0:1], 16")
    A.e("s_load_dwordx2 s[96:97], s[0:1], 48")
    A.e("s_load_dwordx4 s[8:11], s[0:1], 64")
    A.e("s_load_dwordx2 s[14:15], s[0:1], 80")
    if "nocw" not in EXP:
        A.e("s_getpc_b64 s[100:101]")
        A.label("K2_PC")
        A.e("s_sub_u32 s100, s100, K2_PC-k2_kernel")
        A.e("s_subb_u32 s101, s101, 0")
        A.e("v_lshlrev_b32 v%d, 7, v0" % Q_T)
        A.e("v_min_u32 v%d, K2_END-k2_kernel, v%d" % (Q_T, Q_T))
        A.vmem("global_load_dword v%d, v%d, s[100:101]" % (Q_FLAG, Q_T), "cw")
    A.e("v_and_b32 v%d, 63, v0" % V_LANE)
    A.e("v_lshrrev_b32 v%d, 6, v0" % Q_T)
    A.e("s_nop 0")
    A.e("v_readfirstlane_b32 s%d, v%d" % (S_WAVE, Q_T))
    A.e("v_lshlrev_b32 v%d, 4, v%d" % (Q_L16, V_LANE))
    k1_consts(A)
    A.e("s_and_b32 s%d, s2, 7" % S_T0)
    A.e("s_lshr_b32 s%d, s2, 3" % S_IDX)
    A.e("s_sub_u32 s%d, s%d, 2" % (S_T1, S_IDX))
    A.e("s_lshl_b32 s%d, s%d, 2" % (S_T2, S_T0))
    A.e("s_and_b32 s%d, s%d, 3" % (S_T3, S_T1))
    A.e("s_add_u32 s%d, s%d, s%d" % (P_MT, S_T2, S_T3))
    A.e("s_lshr_b32 s%d, s%d, 2" % (P_NT, S_T1))
    A.e("s_waitcnt lgkmcnt(0)")
    srd(A, P_SW2, 96, 1792 * 896)
    srd(A, P_SWO, 98, 448 * 896)
    srd(A, S_W, 14, WS_SIZE)
    srd(A, P_SOUT, 8, 2048 * 896)
    srd(A, P_SDBG, 10, 256)
    A.e("s_cmp_lt_u32 s%d, 2" % S_IDX)
    A.e("s_cbranch_scc1 K2_RED")
    A.e("s_lshl_b32 s%d, s%d, 15" % (P_LB, S_WAVE))
    A.e("s_mul_i32 s%d, s%d, %d" % (S_T0, S_WAVE, 448 * 896))
    A.e("s_lshl_b32 s%d, s%d, 7" % (S_T1, P_NT))
    A.e("s_add_u32 s%d, s%d, s%d" % (P_W2B, S_T0, S_T1))
    A.e("s_mul_i32 s%d, s%d, %d" % (S_T0, S_WAVE, 112 * 896))
    A.e("s_add_u32 s%d, s%d, s%d" % (P_WOB, S_T0, S_T1))
    A.e("s_mul_i32 s%d, s%d, %d" % (S_T0, P_MT, 4 * 56 * 1024))
    A.e("s_mul_i32 s%d, s%d, %d" % (S_T1, S_WAVE, 14 * 1024))
    A.e("s_add_u32 s%d, s%d, s%d" % (P_HB, S_T0, S_T1))
    A.e("s_lshl_b32 s%d, s%d, 16" % (S_T0, P_MT))
    A.e("s_lshl_b32 s%d, s%d, 12" % (S_T1, S_WAVE))
    A.e("s_add_u32 s%d, s%d, s%d" % (S_T0, S_T0, S_T1))
    A.e("s_add_u32 s%d, s%d, %d" % (P_PB, S_T0, WS_PQ))
    A.e("s_lshl_b32 s%d, s%d, 13" % (S_T0, S_WAVE))
    A.e("s_add_u32 s%d, s%d, %d" % (P_KVB, S_T0, WS_KVF))
    t0, t1, t2 = Q_T, Q_T + 1, Q_T + 2
    A.e("v_lshrrev_b32 v%d, 3, v%d" % (t0, V_LANE))
    A.e("v_lshrrev_b32 v%d, 4, v%d" % (t1, V_LANE))
    A.e("v_lshrrev_b32 v%d, 1, v%d" % (t2, V_LANE))
    A.e("v_xor_b32 v%d, v%d, v%d" % (t1, t1, t2))
    A.e("v_and_b32 v%d, 3, v%d" % (t1, t1))
    A.e("v_lshlrev_b32 v%d, 5, v%d" % (t1, t1))
    A.e("v_mul_u32_u24 v%d, 896, v%d" % (t0, t0))
    A.e("v_and_b32 v%d, 1, v%d" % (t2, V_LANE))
    A.e("v_lshlrev_b32 v%d, 4, v%d" % (t2, t2))
    A.e("v_add3_u32 v%d, v%d, v%d, v%d" % (Q_DOFF, t0, t1, t2))
    A.nst = 0
    A.stamp()
    if STAMP:
        A.e("s_memrealtime s[100:101]")
    for st in range(3):
        p2_issue_w(A, st)
        p2_issue_b(A, st)
    global V_T
    sv = V_T
    V_T = Q_T
    for t in range(4):
        emit_raddr(A, Q_RA + t, "T4K2", t)
        A.e("v_add_u32 v%d, s%d, v%d" % (Q_RA + t, P_LB, Q_RA + t))
    V_T = sv
    A.e("v_add_u32 v%d, s%d, v%d" % (Q_BA, P_LB, Q_L16))
    A.e("v_lshrrev_b32 v%d, 4, v%d" % (Q_T, V_LANE))
    A.e("v_lshlrev_b32 v%d, 8, v%d" % (Q_T, Q_T))
    A.e("v_add_u32 v%d, %d, v%d" % (Q_ZOFF, 1024 + 12 * 16, Q_T))
    def reads(step):
        slot = step % RING
        st = step & 1
        out = []
        for rt in range(4):
            d = Q_BF + st * 16 + rt * 4
            out.append("ds_read_b128 v[%d:%d], v%d offset:%d" % (d, d + 3, Q_BA, slot * SLOT + 4096 + rt * 1024))
        for t in range(4):
            d = Q_AF + st * 16 + t * 4
            for p in range(2):
                out.append("ds_read_b64_tr_b16 v[%d:%d], v%d offset:%d" % (d + 2 * p, d + 2 * p + 1, Q_RA + t, slot * SLOT + p * 2048))
        return out
    A.wait_vm(("b", 0))
    A.stamp()
    for r in reads(0):
        A.e(r)
    for s in range(NS):
        A.c("---- k2 step %d ----" % s)
        if s in (8, 11, 14):
            A.stamp()
        rd = []
        if s + 1 < NS:
            A.wait_vm(("b", s + 1), "lgkmcnt(0)")
            rd = reads(s + 1)
        else:
            A.e("s_waitcnt lgkmcnt(0)")
        if s + 3 < NS:
            if "k2now" not in EXP: p2_issue_w(A, s + 3)
            if "k2nob" not in EXP: p2_issue_b(A, s + 3)
        if "k2nord" in EXP: rd = []
        if s == KVSTEP - 3:
            A.e("v_mov_b32 v%d, 0" % (Q_T + 2))
            A.vmem("buffer_load_dword v%d, v%d, s[%d:%d], 0 offen sc1" % (Q_FLAG, Q_T + 2, P_SDBG, P_SDBG + 3), "flag")
            A.e("v_and_b32 v%d, 15, v%d" % (Q_T + 1, V_LANE))
            A.e("v_lshlrev_b32 v%d, 2, v%d" % (Q_T + 1, Q_T + 1))
            A.e("s_lshl_b32 s%d, s%d, 8" % (S_T0, P_MT))
            A.e("s_lshl_b32 s%d, s%d, 6" % (S_T1, S_WAVE))
            A.e("s_add_u32 s%d, s%d, s%d" % (S_T0, S_T0, S_T1))
            A.e("s_add_u32 s%d, s%d, %d" % (S_T0, S_T0, WS_G))
            A.vmem("buffer_load_dword v%d, v%d, s[%d:%d], s%d offen" % (Q_G, Q_T + 1, S_W, S_W + 3, S_T0), "gate")
        if s == KVSTEP:
            A.wait_vm("gate")
            A.label("K2_CHK")
            A.e("v_readfirstlane_b32 s%d, v%d" % (S_T2, Q_FLAG))
            A.e("s_cmp_ge_u32 s%d, 16" % S_T2)
            A.e("s_cbranch_scc1 K2_KVOK")
            A.e("s_sleep 8")
            A.e("buffer_load_dword v%d, v%d, s[%d:%d], 0 offen sc1" % (Q_FLAG, Q_T + 2, P_SDBG, P_SDBG + 3))
            A.e("s_waitcnt vmcnt(0)")
            A.e("s_branch K2_CHK")
            A.label("K2_KVOK")
        def kvload(h):
            d = Q_KV + (h & 1) * 12
            A.e("s_add_u32 s%d, s%d, %d" % (S_T0, P_KVB, h * 2048))
            A.vmem("buffer_load_dwordx4 v[%d:%d], v%d, s[%d:%d], s%d offen sc1" % (d, d + 3, Q_L16, S_W, S_W + 3, S_T0), ("kv", h))
            A.vmem("buffer_load_dwordx4 v[%d:%d], v%d, s[%d:%d], s%d offen offset:1024 sc1" % (d + 4, d + 7, Q_L16, S_W, S_W + 3, S_T0), ("kv", h))
            A.vmem("buffer_load_dwordx4 v[%d:%d], v%d, s[%d:%d], s%d offen sc1" % (d + 8, d + 11, Q_ZOFF, S_W, S_W + 3, S_T0), ("kv", h))
        if s == KVSTEP:
            kvload(0); kvload(1)
        st = s & 1
        if s < 14:
            mf = []
            for t in range(4):
                for rt in range(4):
                    acc = Q_ACC + (t * 4 + rt) * 4
                    a = Q_AF + st * 16 + t * 4
                    b = Q_BF + st * 16 + rt * 4
                    cin = "0" if s == 0 else "v[%d:%d]" % (acc, acc + 3)
                    mf.append("v_mfma_f32_16x16x32_bf16 v[%d:%d], v[%d:%d], v[%d:%d], %s" % (acc, acc + 3, a, a + 3, b, b + 3, cin))
            ri = 0
            if "k2nomf" in EXP and s > 0: mf = []
            for m in mf:
                A.e(m)
                if ri < len(rd):
                    A.e(rd[ri]); ri += 1
            while ri < len(rd):
                A.e(rd[ri]); ri += 1
        else:
            h = s - 14
            A.wait_vm(("kv", h))
            if h == 0:
                A.e("v_cmp_gt_u32 vcc, 48, v%d" % V_LANE)
                A.e("s_nop 1")
                A.e("v_cndmask_b32 v%d, 0, -1, vcc" % Q_FLAG)
            kv = Q_KV + (h & 1) * 12
            ri = 0
            for half in range(2):
                for k in range(2):
                    rt = half * 2 + k
                    b = Q_BF + st * 16 + rt * 4
                    N = 12 + k * 8
                    A.e("v_mfma_f32_16x16x32_bf16 v[%d:%d], v[%d:%d], v[%d:%d], 0" % (N, N + 3, kv, kv + 3, b, b + 3))
                    if ri < len(rd): A.e(rd[ri]); ri += 1
                    A.e("v_mfma_f32_16x16x32_bf16 v[%d:%d], v[%d:%d], v[%d:%d], 0" % (N + 4, N + 7, kv + 4, kv + 7, b, b + 3))
                    if ri < len(rd): A.e(rd[ri]); ri += 1
                for k in range(2):
                    rt = half * 2 + k
                    b = Q_BF + st * 16 + rt * 4
                    N = 12 + k * 8
                    DN = Q_OF + k * 4
                    OF = Q_OF + k * 4
                    A.e("v_mfma_f32_16x16x32_bf16 v[%d:%d], v[%d:%d], v[%d:%d], 0" % (DN, DN + 3, kv + 8, kv + 11, b, b + 3))
                    if ri < len(rd): A.e(rd[ri]); ri += 1
                A.nop(8)
                for k in range(2):
                    N = 12 + k * 8
                    DN = Q_OF + k * 4
                    A.e("v_add_f32 v%d, s%d, v%d" % (28 + k, S_EPS, DN))
                for k in range(2):
                    A.e("v_rcp_f32 v%d, v%d" % (28 + k, 28 + k))
                for k in range(2):
                    N = 12 + k * 8
                    OF = Q_OF + k * 4
                    for i in range(4):
                        A.e("v_pk_mul_f32 v[%d:%d], v[%d:%d], v[28:29] op_sel:[0,%d] op_sel_hi:[1,%d]" % (N + 2 * i, N + 2 * i + 1, N + 2 * i, N + 2 * i + 1, k, k))
                    for i in range(4):
                        A.e("v_cvt_pk_bf16_f32 v%d, v%d, v%d" % (OF + i, N + 2 * i, N + 2 * i + 1))
                    A.e("v_and_b32 v%d, v%d, v%d" % (OF + 2, OF + 2, Q_FLAG))
                    A.e("v_and_b32 v%d, v%d, v%d" % (OF + 3, OF + 3, Q_FLAG))
                A.nop(2)
                for k in range(2):
                    rt = half * 2 + k
                    OF = Q_OF + k * 4
                    for t in range(4):
                        acc = Q_ACC + 64 + (t * 4 + rt) * 4
                        a = Q_AF + st * 16 + t * 4
                        cin = "0" if h == 0 else "v[%d:%d]" % (acc, acc + 3)
                        A.e("v_mfma_f32_16x16x32_bf16 v[%d:%d], v[%d:%d], v[%d:%d], %s" % (acc, acc + 3, a, a + 3, OF, OF + 3, cin))
                if half == 0:
                    A.nop(4)
            while ri < len(rd):
                A.e(rd[ri]); ri += 1
            if h + 2 < 4:
                kvload(h + 2)
    A.c("---- k2 epilogue ----")
    A.stamp()
    A.nop(10)
    A.e("s_barrier")
    A.e("s_lshl_b32 s%d, s%d, 13" % (S_T0, S_WAVE))
    A.e("v_add_u32 v%d, s%d, v%d" % (Q_T, S_T0, Q_L16))
    for rt in range(4):
        A.e("s_cmp_eq_u32 s%d, %d" % (S_WAVE, rt))
        A.e("s_cbranch_scc1 K2_SKIPW%d" % rt)
        A.e("v_add_u32 v%d, %d, v%d" % (Q_T + 1, rt * 32768, Q_T))
        for part in range(2):
            for t in range(4):
                acc = Q_ACC + part * 64 + (t * 4 + rt) * 4
                A.e("ds_write_b128 v%d, v[%d:%d] offset:%d" % (Q_T + 1, acc, acc + 3, part * 4096 + t * 1024))
        A.label("K2_SKIPW%d" % rt)
    for rt in range(4):
        A.e("s_cmp_lg_u32 s%d, %d" % (S_WAVE, rt))
        A.e("s_cbranch_scc1 K2_SKIPM%d" % rt)
        for part in range(2):
            for t in range(4):
                acc = Q_ACC + part * 64 + (t * 4 + rt) * 4
                for i in range(2):
                    A.e("v_pk_mov_b32 v[%d:%d], v[%d:%d], v[%d:%d] op_sel:[0,1]" % (32 + (part * 4 + t) * 4 + 2 * i, 33 + (part * 4 + t) * 4 + 2 * i, acc + 2 * i, acc + 2 * i + 1, acc + 2 * i, acc + 2 * i + 1))
        A.label("K2_SKIPM%d" % rt)
    A.e("s_waitcnt lgkmcnt(0)")
    A.e("s_barrier")
    A.e("s_lshl_b32 s%d, s%d, 15" % (S_T0, S_WAVE))
    A.e("v_add_u32 v%d, s%d, v%d" % (Q_T, S_T0, Q_L16))
    for k in range(1, 4):
        A.e("s_add_u32 s%d, s%d, %d" % (S_T1, S_WAVE, k))
        A.e("s_and_b32 s%d, s%d, 3" % (S_T1, S_T1))
        A.e("s_lshl_b32 s%d, s%d, 13" % (S_T1, S_T1))
        A.e("v_add_u32 v%d, s%d, v%d" % (Q_T + k, S_T1, Q_T))
        for q in range(8):
            A.e("ds_read_b128 v[%d:%d], v%d offset:%d" % (64 + (k - 1) * 32 + q * 4, 64 + (k - 1) * 32 + q * 4 + 3, Q_T + k, q * 1024))
    for k in range(1, 4):
        A.e("s_waitcnt lgkmcnt(%d)" % min(15, 8 * (3 - k)))
        for q in range(16):
            A.e("v_pk_add_f32 v[%d:%d], v[%d:%d], v[%d:%d]" % (32 + 2 * q, 33 + 2 * q, 32 + 2 * q, 33 + 2 * q, 64 + (k - 1) * 32 + 2 * q, 65 + (k - 1) * 32 + 2 * q))
    A.e("v_sub_f32 v14, 1.0, v%d" % Q_G)
    A.e("v_cvt_pk_bf16_f32 v14, v14, v14")
    A.e("v_lshlrev_b32 v14, 16, v14")
    A.e("v_mov_b32 v15, v14")
    A.e("v_mov_b32 v16, v%d" % Q_G)
    A.e("v_mov_b32 v17, v%d" % Q_G)
    A.e("v_and_b32 v18, 15, v%d" % V_LANE)
    A.e("v_mul_u32_u24 v18, 896, v18")
    A.e("v_lshrrev_b32 v19, 4, v%d" % V_LANE)
    A.e("v_lshl_add_u32 v18, v19, 3, v18")
    A.e("s_lshl_b32 s%d, s%d, 6" % (S_T0, P_MT))
    A.e("s_lshl_b32 s%d, s%d, 4" % (S_T1, S_WAVE))
    A.e("s_add_u32 s%d, s%d, s%d" % (S_T0, S_T0, S_T1))
    A.e("s_mul_i32 s%d, s%d, 896" % (S_T0, S_T0))
    A.e("s_lshl_b32 s%d, s%d, 7" % (S_T1, P_NT))
    A.e("s_add_u32 s%d, s%d, s%d" % (S_T0, S_T0, S_T1))
    X = 64
    for t in range(4):
        for h in range(2):
            bq = 32 + t * 4 + 2 * h
            aq = 48 + t * 4 + 2 * h
            A.e("v_pk_mul_f32 v[%d:%d], v[%d:%d], v[14:15]" % (bq, bq + 1, bq, bq + 1))
            A.e("v_pk_fma_f32 v[%d:%d], v[%d:%d], v[16:17], v[%d:%d]" % (bq, bq + 1, aq, aq + 1, bq, bq + 1))
            A.e("v_cvt_pk_bf16_f32 v%d, v%d, v%d" % (X + 8 + t * 2 + h, bq, bq + 1))
        A.e("buffer_store_dwordx2 v[%d:%d], v18, s[%d:%d], s%d offen offset:%d" % (X + 8 + t * 2, X + 9 + t * 2, P_SOUT, P_SOUT + 3, S_T0, t * 32))
    A.stamp()
    A.stamp(True)
    A.stamp_flush(S_W, S_WAVE, 4, WS_STAMP + 0x40000)
    A.e("s_branch K2_END")

    A.label("K2_RED")
    A.vm = []
    P_HEAD = S_T3
    A.e("s_and_b32 s%d, s2, 7" % S_T0)
    A.e("s_lshl_b32 s%d, s%d, 1" % (P_HEAD, S_T0))
    A.e("s_add_u32 s%d, s%d, s%d" % (P_HEAD, P_HEAD, S_IDX))
    A.e("s_lshl_b32 s%d, s%d, 17" % (S_T0, P_HEAD))
    A.e("s_lshl_b32 s%d, s%d, 10" % (S_T1, S_WAVE))
    A.e("s_add_u32 s%d, s%d, s%d" % (S_T0, S_T0, S_T1))
    A.e("s_add_u32 s%d, s%d, %d" % (S_T0, S_T0, WS_KVP))
    for p in range(32):
        A.e("s_add_u32 s%d, s%d, %d" % (S_T1, S_T0, p * 4096))
        A.vmem("buffer_load_dwordx4 v[%d:%d], v%d, s[%d:%d], s%d offen" % (32 + p * 4, 35 + p * 4, Q_L16, S_W, S_W + 3, S_T1), ("p", p))
    A.wait_vm(("p", 1))
    A.e("v_pk_add_f32 v[32:33], v[32:33], v[36:37]")
    A.e("v_pk_add_f32 v[34:35], v[34:35], v[38:39]")
    for p in range(2, 32):
        A.wait_vm(("p", p))
        A.e("v_pk_add_f32 v[32:33], v[32:33], v[%d:%d]" % (32 + p * 4, 33 + p * 4))
        A.e("v_pk_add_f32 v[34:35], v[34:35], v[%d:%d]" % (34 + p * 4, 35 + p * 4))
    A.e("v_cvt_pk_bf16_f32 v20, v32, v33")
    A.e("v_cvt_pk_bf16_f32 v21, v34, v35")
    A.e("s_lshl_b32 s%d, s%d, 11" % (S_T0, P_HEAD))
    A.e("s_and_b32 s%d, s%d, 1" % (S_T1, S_WAVE))
    A.e("s_lshl_b32 s%d, s%d, 10" % (S_T1, S_T1))
    A.e("s_add_u32 s%d, s%d, s%d" % (S_T0, S_T0, S_T1))
    A.e("s_lshr_b32 s%d, s%d, 1" % (S_T1, S_WAVE))
    A.e("s_lshl_b32 s%d, s%d, 3" % (S_T1, S_T1))
    A.e("s_add_u32 s%d, s%d, s%d" % (S_T0, S_T0, S_T1))
    A.e("s_add_u32 s%d, s%d, %d" % (S_T0, S_T0, WS_KVF))
    A.e("buffer_store_dwordx2 v[20:21], v%d, s[%d:%d], s%d offen sc1" % (Q_L16, S_W, S_W + 3, S_T0))
    A.e("s_waitcnt vmcnt(0)")
    A.e("s_barrier")
    A.e("v_mov_b32 v22, 0x7ffffff0")
    A.e("v_cmp_eq_u32 vcc, 0, v0")
    A.e("s_nop 1")
    A.e("v_cndmask_b32 v22, v22, 0, vcc")
    A.e("v_mov_b32 v23, 1")
    A.e("buffer_atomic_add v23, v22, s[%d:%d], 0 offen sc1" % (P_SDBG, P_SDBG + 3))
    A.label("K2_END")
    A.e("s_endpgm")

def main():
    out = []
    hdr = open("cdna_kernels/%s.s.ref" % NAME).read().splitlines()
    for l in hdr:
        if l.startswith(";") and "@launch" not in l:
            out.append(l)
        elif not l.startswith(";"):
            break
    out.append("; @launch kernel=k1_kernel grid=(256,1,1) block=(512,1,1) lds=%d" % K1_LDS)
    out.append("; @launch kernel=k2_kernel grid=(240,1,1) block=(256,1,1) lds=131072")
    out.append('.amdgcn_target "amdgcn-amd-amdhsa--gfx950"')
    out.append(".text")
    A = Asm()
    A.lines.append(".globl k1_kernel\n.p2align 8\n.type k1_kernel,@function")
    gen_k1(A)
    A.lines.append(".globl k2_kernel\n.p2align 8\n.type k2_kernel,@function")
    gen_k2(A)
    out += A.lines
    out.append('.section .rodata,"a"')
    for nm, nv in (("k1_kernel", 212), ("k2_kernel", 256)):
        out.append(".p2align 6")
        out.append(".amdhsa_kernel %s" % nm)
        out.append("  .amdhsa_next_free_vgpr %d" % nv)
        out.append("  .amdhsa_next_free_sgpr 102")
        out.append("  .amdhsa_accum_offset %d" % nv)
        out.append("  .amdhsa_group_segment_fixed_size 0")
        out.append("  .amdhsa_kernarg_size 88")
        out.append("  .amdhsa_user_sgpr_count 2")
        out.append("  .amdhsa_user_sgpr_kernarg_segment_ptr 1")
        out.append("  .amdhsa_system_sgpr_workgroup_id_x 1")
        out.append(".end_amdhsa_kernel")
    dst = sys.argv[1] if len(sys.argv) > 1 else "cdna_kernels/%s.s" % NAME
    open(dst, "w").write("\n".join(out) + "\n")

main()
```

```python
import sys

NAME = "gated_mix__linear_attn_block__glu_gated_swiglu__prompt"

WS_H    = 0x000000
WS_PQ   = 0x700000
WS_KVP  = 0x900000
WS_KVF  = 0xB00000
WS_G    = 0xB10000
WS_SIZE = 0xB20000

import os
STAMP = os.environ.get("STAMP") == "1"
EXP = os.environ.get("EXP", "pf2chip_cwr_prio2")
DMAFLAGS = os.environ.get("DMAFLAGS", "")
STF = os.environ.get("STF", "")
KNAME = "k1_kernel"
PF2STEP = int(os.environ.get("PF2STEP", "12"))
CW0 = int(os.environ.get("CW0", "3"))
PSW = int(os.environ.get("PSW", "11"))
POLLSLEEP = int(os.environ.get("POLLSLEEP", "16"))
WS_STAMP = 0xC00000
if STAMP:
    WS_SIZE = 0xD00000
class Asm:
    def __init__(self):
        self.lines = []
        self.vm = []
        self.nst = 0
        self.uid = 0
    def stamp(self, real=False):
        if not STAMP: return
        self.e("%s s[%d:%d]" % ("s_memrealtime" if real else "s_memtime", 76 + 2 * self.nst, 77 + 2 * self.nst))
        self.nst += 1
        assert self.nst <= 8
    def stamp_flush(self, srdw, s_wave, nwave, base):
        if not STAMP: return
        self.e("s_waitcnt lgkmcnt(0)")
        self.e("s_mul_i32 s48, s2, %d" % nwave)
        self.e("s_add_u32 s48, s48, s%d" % s_wave)
        self.e("s_lshl_b32 s48, s48, 6")
        self.e("s_add_u32 s48, s48, %d" % base)
        self.e("v_mov_b32 v20, 0")
        self.e("v_mov_b32 v21, s92")
        self.e("buffer_store_dword v21, v20, s[%d:%d], s48 offen offset:56" % (srdw, srdw + 3))
        self.e("v_mov_b32 v21, s100")
        self.e("buffer_store_dword v21, v20, s[%d:%d], s48 offen offset:60" % (srdw, srdw + 3))
        for i in range(self.nst):
            self.e("v_mov_b32 v21, s%d" % (76 + 2 * i))
            self.e("buffer_store_dword v21, v20, s[%d:%d], s48 offen offset:%d" % (srdw, srdw + 3, 4 * i))
        self.nst = 0
    def e(self, s):
        self.lines.append("    " + s)
    def c(self, s):
        self.lines.append("    ; " + s)
    def label(self, l):
        self.lines.append(l + ":")
    def vmem(self, s, tag):
        self.e(s)
        self.vm.append(tag)
    def wait_vm(self, tag, extra=""):
        idx = None
        for i, t in enumerate(self.vm):
            if t == tag:
                idx = i
        if idx is None:
            if extra:
                self.e("s_waitcnt " + extra)
            return
        n = len(self.vm) - 1 - idx
        assert n <= 63, n
        self.e("s_waitcnt vmcnt(%d) %s" % (n, extra))
        self.vm = self.vm[idx + 1:]
    def wait_vm_all(self, extra=""):
        self.e("s_waitcnt vmcnt(0) %s" % extra)
        self.vm = []
    def nop(self, n):
        while n > 0:
            k = min(n, 16)
            self.e("s_nop %d" % (k - 1))
            n -= k

def vr(b, n=1):
    return "v%d" % b if n == 1 else "v[%d:%d]" % (b, b + n - 1)
def ar(b, n=1):
    return "a%d" % b if n == 1 else "a[%d:%d]" % (b, b + n - 1)
def sr(b, n=1):
    return "s%d" % b if n == 1 else "s[%d:%d]" % (b, b + n - 1)

def srd(A, d, base, size):
    A.e("s_mov_b32 s%d, s%d" % (d, base))
    A.e("s_and_b32 s%d, s%d, 0xffff" % (d + 1, base + 1))
    A.e("s_mov_b32 s%d, 0x%x" % (d + 2, size))
    A.e("s_mov_b32 s%d, 0x00020000" % (d + 3))

LOG2E = 0x3fb8aa3b
NLOG2E = 0xbfb8aa3b
EPS = 0x358637bd

WSTG = 20480
XBASE = 4 * WSTG
XSLOT = 16384
K1_LDS = XBASE + 2 * XSLOT
WHI = 2 * WSTG

S_X, S_W, S_GW = 16, 20, 24
S_R = 28
S_CG, S_RB, S_WAVE, S_RH = 48, 49, 50, 51
S_T0, S_T1, S_T2, S_T3 = 52, 53, 54, 55
S_PI, S_TYP = 56, 57
S_R0T = 58
S_GOFF = 59
S_MSK = 60
S_NL2E = 62
S_ONE = 64
S_L2E = 66
S_EPS = 67
S_SOFF = 68
S_STR = 4
S_XO = 73
S_E = 74
S_IDX = 75

V_LANE = 1
V_DOFF = 2
V_XD = 7
V_XA = 9
V_GATE = 11
V_WA = 12
V_T = 24
V_XF = 32
V_WF = 64
V_ACC = 112
V_DUMP = 208

def k1_consts(A):
    A.e("s_mov_b32 s%d, 0xffff0000" % S_MSK)
    A.e("s_mov_b32 s%d, 0x%x" % (S_NL2E, NLOG2E))
    A.e("s_mov_b32 s%d, 0x%x" % (S_NL2E + 1, NLOG2E))
    A.e("s_mov_b32 s%d, 1.0" % S_ONE)
    A.e("s_mov_b32 s%d, 1.0" % (S_ONE + 1))
    A.e("s_mov_b32 s%d, 0x%x" % (S_L2E, LOG2E))
    A.e("s_mov_b32 s%d, 0x%x" % (S_EPS, EPS))

def unpack2(A, dlo, dhi, src):
    A.e("v_lshlrev_b32 v%d, 16, v%d" % (dlo, src))
    A.e("v_and_b32 v%d, s%d, v%d" % (dhi, S_MSK, src))

def emit_raddr(A, vdst, kind, t):
    t0, t1, t2, t3 = V_T, V_T + 1, V_T + 2, V_T + 3
    ts = str(t)
    A.e("v_lshrrev_b32 v%d, 4, v%d" % (t0, V_LANE))
    A.e("v_lshrrev_b32 v%d, 2, v%d" % (t1, V_LANE))
    A.e("v_and_b32 v%d, 3, v%d" % (t1, t1))
    A.e("v_and_b32 v%d, 3, v%d" % (t2, V_LANE))
    A.e("v_lshlrev_b32 v%d, 3, v%d" % (vdst, t2))
    A.e("v_and_b32 v%d, 1, v%d" % (t2, t0))
    if kind == "T2":
        A.e("v_lshrrev_b32 v%d, 1, v%d" % (t3, t0))
        A.e("v_lshl_add_u32 v%d, v%d, 10, v%d" % (vdst, t3, vdst))
        A.e("v_lshl_add_u32 v%d, v%d, 9, v%d" % (vdst, t2, vdst))
        A.e("v_lshl_add_u32 v%d, v%d, 6, v%d" % (vdst, t1, vdst))
        A.e("v_xor_b32 v%d, %s, v%d" % (t3, ts, t2))
        A.e("v_lshl_add_u32 v%d, v%d, 5, v%d" % (vdst, t3, vdst))
    elif kind == "T4":
        A.e("v_lshl_add_u32 v%d, v%d, 10, v%d" % (vdst, t0, vdst))
        A.e("v_lshl_add_u32 v%d, v%d, 7, v%d" % (vdst, t1, vdst))
        A.e("v_lshrrev_b32 v%d, 1, v%d" % (t3, t1))
        A.e("v_lshl_or_b32 v%d, v%d, 1, v%d" % (t3, t2, t3))
        A.e("v_xor_b32 v%d, %s, v%d" % (t3, ts, t3))
        A.e("v_lshl_add_u32 v%d, v%d, 5, v%d" % (vdst, t3, vdst))
    elif kind == "T4K2":
        A.e("v_lshrrev_b32 v%d, 1, v%d" % (t3, t0))
        A.e("v_lshl_add_u32 v%d, v%d, 10, v%d" % (vdst, t3, vdst))
        A.e("v_lshl_add_u32 v%d, v%d, 9, v%d" % (vdst, t2, vdst))
        A.e("v_lshl_add_u32 v%d, v%d, 7, v%d" % (vdst, t1, vdst))
        A.e("v_lshrrev_b32 v%d, 1, v%d" % (t3, t1))
        A.e("v_lshl_or_b32 v%d, v%d, 1, v%d" % (t3, t2, t3))
        A.e("v_xor_b32 v%d, %s, v%d" % (t3, ts, t3))
        A.e("v_lshl_add_u32 v%d, v%d, 5, v%d" % (vdst, t3, vdst))
    else:
        raise ValueError(kind)

def emit_phi4(A, src, dst, tmp):
    a = tmp; b = tmp + 4
    for h in range(2):
        A.e("v_pk_mul_f32 v[%d:%d], v[%d:%d], s[%d:%d]" % (b + 2 * h, b + 2 * h + 1, src + 2 * h, src + 2 * h + 1, S_L2E2, S_L2E2 + 1))
    for i in range(4):
        A.e("v_exp_f32_e64 v%d, v%d clamp" % (b + i, b + i))
    for i in range(4):
        A.e("v_max_f32 v%d, 0, v%d" % (a + i, src + i))
    for h in range(2):
        A.e("v_pk_add_f32 v[%d:%d], v[%d:%d], v[%d:%d]" % (a + 2 * h, a + 2 * h + 1, a + 2 * h, a + 2 * h + 1, b + 2 * h, b + 2 * h + 1))
    for h in range(2):
        A.e("v_pk_add_f32 v[%d:%d], v[%d:%d], s[%d:%d]" % (a + 2 * h, a + 2 * h + 1, a + 2 * h, a + 2 * h + 1, S_EPS2, S_EPS2 + 1))
    for h in range(2):
        A.e("v_cvt_pk_bf16_f32 v%d, v%d, v%d" % (dst + h, a + 2 * h, a + 2 * h + 1))

def emit_swiglu4(A, g, u, dst, tmp):
    E = tmp
    for h in range(2):
        A.e("v_pk_mul_f32 v[%d:%d], v[%d:%d], s[%d:%d]" % (E + 2 * h, E + 2 * h + 1, g + 2 * h, g + 2 * h + 1, S_NL2E, S_NL2E + 1))
    for i in range(4):
        A.e("v_exp_f32 v%d, v%d" % (E + i, E + i))
    for h in range(2):
        A.e("v_pk_mul_f32 v[%d:%d], v[%d:%d], v[%d:%d]" % (g + 2 * h, g + 2 * h + 1, g + 2 * h, g + 2 * h + 1, u + 2 * h, u + 2 * h + 1))
    for h in range(2):
        A.e("v_pk_add_f32 v[%d:%d], v[%d:%d], s[%d:%d]" % (E + 2 * h, E + 2 * h + 1, E + 2 * h, E + 2 * h + 1, S_ONE, S_ONE + 1))
    for i in range(4):
        A.e("v_rcp_f32 v%d, v%d" % (E + i, E + i))
    A.e("s_nop 0")
    for h in range(2):
        A.e("v_pk_mul_f32 v[%d:%d], v[%d:%d], v[%d:%d]" % (g + 2 * h, g + 2 * h + 1, g + 2 * h, g + 2 * h + 1, E + 2 * h, E + 2 * h + 1))
    for h in range(2):
        A.e("v_cvt_pk_bf16_f32 v%d, v%d, v%d" % (dst + h, g + 2 * h, g + 2 * h + 1))

S_L2E2 = 10
S_EPS2 = 12

def sel_srd(A, d, lo_a, lo_b, size_a, size_b):
    A.e("s_cselect_b32 s%d, s%d, s%d" % (d, lo_a, lo_b))
    A.e("s_cselect_b32 s%d, s%d, s%d" % (d + 1, lo_a + 1, lo_b + 1))
    if size_a == size_b:
        A.e("s_mov_b32 s%d, 0x%x" % (d + 2, size_a))
    else:
        A.e("s_mov_b32 s%d, 0x%x" % (S_T3, size_a))
        A.e("s_cselect_b32 s%d, s%d, 0x%x" % (d + 2, S_T3, size_b))
    A.e("s_and_b32 s%d, s%d, 0xffff" % (d + 1, d + 1))
    A.e("s_mov_b32 s%d, 0x00020000" % (d + 3))

SZQ = 448 * 2688
SZG = 448 * 3584

def gen_k1(A):
    A.label(KNAME)
    if STAMP:
        A.e("s_memrealtime s[92:93]")
    A.e("s_cmp_ge_u32 s2, 256")
    A.e("s_cbranch_scc1 K1_END")
    A.e("s_load_dwordx4 s[4:7], s[0:1], 0")
    A.e("s_load_dwordx4 s[8:11], s[0:1], 32")
    A.e("s_load_dwordx2 s[12:13], s[0:1], 56")
    A.e("s_load_dwordx2 s[14:15], s[0:1], 80")
    A.e("s_load_dwordx2 s[96:97], s[0:1], 48")
    A.e("s_load_dwordx2 s[98:99], s[0:1], 16")
    if "nocw" not in EXP:
        A.e("s_getpc_b64 s[100:101]")
        A.label("K1_PC")
        A.e("s_sub_u32 s100, s100, K1_PC-%s" % KNAME)
        A.e("s_subb_u32 s101, s101, 0")
        A.e("v_lshlrev_b32 v%d, 7, v0" % V_T)
        A.e("v_min_u32 v%d, K2_END-%s, v%d" % (V_T, KNAME, V_T))
        A.vmem("global_load_dword v%d, v%d, s[100:101]" % (V_DUMP + 3, V_T), "cw")
    A.e("v_and_b32 v%d, 63, v0" % V_LANE)
    A.e("v_lshrrev_b32 v%d, 6, v0" % V_T)
    A.e("s_nop 0")
    A.e("v_readfirstlane_b32 s%d, v%d" % (S_WAVE, V_T))
    k1_consts(A)
    A.e("s_and_b32 s%d, s2, 7" % S_T0)
    A.e("s_lshr_b32 s%d, s2, 3" % S_IDX)
    A.e("s_and_b32 s%d, s%d, 3" % (S_T2, S_T0))
    A.e("s_lshl_b32 s%d, s%d, 2" % (S_T2, S_T2))
    A.e("s_and_b32 s%d, s%d, 3" % (S_T3, S_IDX))
    A.e("s_add_u32 s%d, s%d, s%d" % (S_CG, S_T2, S_T3))
    A.e("s_lshr_b32 s%d, s%d, 2" % (S_T2, S_T0))
    A.e("s_lshl_b32 s%d, s%d, 3" % (S_T2, S_T2))
    A.e("s_lshr_b32 s%d, s%d, 2" % (S_E, S_IDX))
    A.e("s_add_u32 s%d, s%d, s%d" % (S_RB, S_T2, S_E))
    A.e("s_and_b32 s%d, s%d, 1" % (S_RH, S_WAVE))
    A.e("s_and_b32 s%d, s%d, 1" % (S_TYP, S_CG))
    A.e("s_lshr_b32 s%d, s%d, 1" % (S_PI, S_CG))
    A.e("s_lshl_b32 s%d, s%d, 3" % (S_R0T, S_RB))
    A.e("s_lshl_b32 s%d, s%d, 2" % (S_T0, S_RH))
    A.e("s_add_u32 s%d, s%d, s%d" % (S_R0T, S_R0T, S_T0))
    A.e("s_waitcnt lgkmcnt(0)")
    if "pf0" in EXP:
        A.e("s_cmp_ge_u32 s%d, 4" % S_WAVE)
        A.e("s_cbranch_scc1 K1_NOPF0")
        A.e("s_and_b32 s%d, s%d, 3" % (S_T0, S_WAVE))
        A.e("s_cmp_eq_u32 s%d, 0" % S_T0); A.e("s_cselect_b64 s[%d:%d], s[4:5], s[6:7]" % (S_R, S_R + 1))
        A.e("s_cselect_b32 s%d, 56, 37" % S_T1)
        A.e("s_mov_b32 s%d, %d" % (S_T3, 2048 * 896 - 4)); A.e("s_cselect_b32 s%d, s%d, %d" % (S_T2, S_T3, SZQ - 4))
        A.e("s_cmp_eq_u32 s%d, 2" % S_T0); A.e("s_cselect_b64 s[%d:%d], s[8:9], s[%d:%d]" % (S_R, S_R + 1, S_R, S_R + 1))
        A.e("s_cmp_eq_u32 s%d, 3" % S_T0); A.e("s_cselect_b64 s[%d:%d], s[10:11], s[%d:%d]" % (S_R, S_R + 1, S_R, S_R + 1))
        A.e("s_cmp_ge_u32 s%d, 2" % S_T0); A.e("s_cselect_b32 s%d, 49, s%d" % (S_T1, S_T1))
        A.e("s_mov_b32 s%d, %d" % (S_T3, SZG - 4)); A.e("s_cselect_b32 s%d, s%d, s%d" % (S_T2, S_T3, S_T2))
        A.e("s_mul_i32 s%d, s2, s%d" % (S_T3, S_T1))
        A.e("v_min_u32 v%d, s%d, v%d" % (V_T, S_T1, V_LANE))
        A.e("v_add_u32 v%d, s%d, v%d" % (V_T, S_T3, V_T))
        A.e("v_lshlrev_b32 v%d, 7, v%d" % (V_T, V_T))
        A.e("v_min_u32 v%d, s%d, v%d" % (V_T, S_T2, V_T))
        A.e("global_load_dword v%d, v%d, s[%d:%d]" % (V_DUMP, V_T, S_R, S_R + 1))
        A.label("K1_NOPF0")
    srd(A, S_X, 4, 2048 * 896)
    srd(A, S_W, 14, WS_SIZE)
    srd(A, S_GW, 12, 896)
    A.e("s_lshl_b32 s%d, s%d, 7" % (S_T0, S_RB))
    A.e("s_lshl_b32 s%d, s%d, 3" % (S_T1, S_CG))
    A.e("s_add_u32 s%d, s%d, s%d" % (S_T0, S_T0, S_T1))
    A.e("s_add_u32 s%d, s%d, s%d" % (S_T0, S_T0, S_WAVE))
    A.e("s_mul_i32 s%d, s%d, 896" % (S_T1, S_T0))
    A.e("v_lshlrev_b32 v%d, 4, v%d" % (V_T, V_LANE))
    A.e("v_mov_b32 v%d, 0x7ffffff0" % (V_T + 1))
    A.e("v_cmp_gt_u32 vcc, 56, v%d" % V_LANE)
    A.e("s_nop 1")
    A.e("v_cndmask_b32 v%d, v%d, v%d, vcc" % (V_T, V_T + 1, V_T))
    A.vmem("buffer_load_dwordx4 v[96:99], v%d, s[%d:%d], s%d offen" % (V_T, S_X, S_X + 3, S_T1), "gate")
    A.vmem("buffer_load_dwordx4 v[100:103], v%d, s[%d:%d], 0 offen" % (V_T, S_GW, S_GW + 3), "gate")
    A.e("s_lshl_b32 s%d, s%d, 2" % (S_GOFF, S_T0))
    A.e("s_cmp_eq_u32 s%d, 0" % S_TYP)
    sel_srd(A, S_R + 0, 6, 8, SZQ, SZG)
    A.e("s_cmp_eq_u32 s%d, 0" % S_TYP)
    sel_srd(A, S_R + 4, 6, 8, SZQ, SZG)
    A.e("s_cmp_eq_u32 s%d, 0" % S_TYP)
    sel_srd(A, S_R + 8, 6, 10, SZQ, SZG)
    A.e("s_cmp_eq_u32 s%d, 0" % S_TYP)
    sel_srd(A, S_R + 12, 8, 10, SZG, SZG)
    A.e("s_lshr_b32 s%d, s%d, 1" % (S_T0, S_WAVE))
    A.e("s_and_b32 s%d, s%d, 1" % (S_T0, S_T0))
    A.e("s_xor_b32 s%d, s%d, 1" % (S_T0, S_T0))
    A.e("s_and_b32 s%d, s%d, s%d" % (S_T0, S_T0, S_TYP))
    A.e("s_cmp_eq_u32 s%d, 1" % S_T0)
    sel_srd(A, S_R + 16, 8, 10, SZG, SZG)
    t0, t1, t2 = V_T, V_T + 1, V_T + 2
    A.e("v_and_b32 v%d, 15, v%d" % (t0, V_LANE))
    A.e("v_lshrrev_b32 v%d, 1, v%d" % (t1, t0))
    A.e("v_lshrrev_b32 v%d, 4, v%d" % (t2, V_LANE))
    A.e("v_xor_b32 v%d, v%d, v%d" % (t1, t1, t2))
    A.e("s_lshl_b32 s%d, s%d, 6" % (S_T0, S_RH))
    A.e("v_add_u32 v%d, s%d, v%d" % (t0, S_T0, t0))
    A.e("v_lshlrev_b32 v%d, 7, v%d" % (t0, t0))
    A.e("v_lshl_add_u32 v%d, v%d, 4, v%d" % (t0, t1, t0))
    A.e("v_add_u32 v%d, %d, v%d" % (V_XA, XBASE, t0))
    A.e("v_xor_b32 v%d, 64, v%d" % (V_XA + 1, V_XA))
    A.e("s_cmp_ge_u32 s%d, 4" % S_WAVE)
    A.e("s_cbranch_scc1 K1_DMAW")
    A.e("s_cmp_eq_u32 s%d, 0" % S_TYP)
    A.e("s_cbranch_scc1 K1_QKV6")
    base_vm = list(A.vm)
    for var in ("FFN6", "QKV6"):
        A.vm = list(base_vm)
        A.label("K1_" + var)
        gen_k1_var(A, var)
        A.e("s_branch K1_END")
    A.vm = list(base_vm)
    A.label("K1_DMAW")
    k1_dma_setup(A)
    gen_k1_var(A, "FFN4")
    A.label("K1_END")
    A.e("s_endpgm")

def k1_dma_setup(A):
    t0, t1, t2, t3 = V_T, V_T + 1, V_T + 2, V_T + 3
    SJ = S_T2
    A.e("s_and_b32 s%d, s%d, 3" % (SJ, S_WAVE))
    A.e("v_lshrrev_b32 v%d, 3, v%d" % (t0, V_LANE))
    A.e("v_lshrrev_b32 v%d, 4, v%d" % (t1, V_LANE))
    A.e("v_and_b32 v%d, 1, v%d" % (t1, t1))
    A.e("s_and_b32 s%d, s%d, 1" % (S_T3, SJ))
    A.e("s_lshl_b32 s%d, s%d, 1" % (S_T3, S_T3))
    A.e("v_or_b32 v%d, s%d, v%d" % (t1, S_T3, t1))
    A.e("v_lshrrev_b32 v%d, 1, v%d" % (t2, V_LANE))
    A.e("v_and_b32 v%d, 3, v%d" % (t2, t2))
    A.e("v_xor_b32 v%d, v%d, v%d" % (t1, t1, t2))
    A.e("v_and_b32 v%d, 1, v%d" % (t2, V_LANE))
    A.e("v_lshlrev_b32 v%d, 4, v%d" % (t2, t2))
    A.e("s_lshl_b32 s%d, s%d, 3" % (S_T3, SJ))
    A.e("v_add_u32 v%d, s%d, v%d" % (t0, S_T3, t0))
    A.e("v_lshl_add_u32 v%d, v%d, 5, v%d" % (t3, t1, t2))
    A.e("v_lshrrev_b32 v%d, 1, v%d" % (t1, t1))
    A.e("v_lshlrev_b32 v%d, 3, v%d" % (t1, t1))
    A.e("v_sub_u32 v%d, v%d, v%d" % (t1, t3, t1))
    A.e("v_mul_u32_u24 v%d, 2688, v%d" % (t2, t0))
    A.e("v_add_u32 v%d, v%d, v%d" % (t1, t1, t2))
    A.e("v_mul_u32_u24 v%d, 3584, v%d" % (t2, t0))
    A.e("v_add_u32 v%d, v%d, v%d" % (t3, t3, t2))
    A.e("s_mul_i32 s%d, s%d, 112" % (S_T0, S_PI))
    A.e("s_mul_i32 s%d, s%d, 320" % (S_T1, S_PI))
    A.e("s_add_u32 s%d, s%d, 1024" % (S_T1, S_T1))
    A.e("s_cmp_eq_u32 s%d, 0" % S_TYP)
    A.e("s_cselect_b64 vcc, -1, 0")
    for r in range(3):
        A.e("v_add_u32 v%d, s%d, v%d" % (V_DOFF + r, S_T0, t1))
        A.e("v_add_u32 v%d, %d, v%d" % (V_DOFF + r, r * 896, V_DOFF + r))
        A.e("v_add_u32 v%d, s%d, v%d" % (t2, S_T1, t3))
        if r == 1:
            A.e("v_add_u32 v%d, 128, v%d" % (t2, t2))
        A.e("v_cndmask_b32 v%d, v%d, v%d, vcc" % (V_DOFF + r, t2, V_DOFF + r))
    A.e("s_lshl_b32 s%d, s%d, 7" % (S_T0, S_PI))
    A.e("v_add_u32 v%d, s%d, v%d" % (V_DOFF + 3, S_T0, t3))
    A.e("v_add_u32 v%d, s%d, v%d" % (t2, S_T1, t3))
    A.e("v_add_u32 v%d, 128, v%d" % (t2, t2))
    A.e("v_cndmask_b32 v%d, v%d, v%d, vcc" % (V_DOFF + 3, t2, V_DOFF + 3))
    A.e("v_add_u32 v%d, s%d, v%d" % (V_DOFF + 4, S_T0, t3))
    A.e("v_lshrrev_b32 v%d, 2, v%d" % (t0, V_LANE))
    A.e("s_and_b32 s%d, s%d, 1" % (S_T3, SJ))
    A.e("s_lshl_b32 s%d, s%d, 4" % (S_T3, S_T3))
    A.e("v_add_u32 v%d, s%d, v%d" % (t0, S_T3, t0))
    A.e("v_mul_u32_u24 v%d, 3584, v%d" % (t0, t0))
    A.e("v_lshrrev_b32 v%d, 1, v%d" % (t1, V_LANE))
    A.e("v_lshrrev_b32 v%d, 5, v%d" % (t2, V_LANE))
    A.e("v_xor_b32 v%d, v%d, v%d" % (t1, t1, t2))
    A.e("v_and_b32 v%d, 1, v%d" % (t1, t1))
    A.e("v_lshl_add_u32 v%d, v%d, 5, v%d" % (t0, t1, t0))
    A.e("v_and_b32 v%d, 1, v%d" % (t1, V_LANE))
    A.e("v_lshl_add_u32 v%d, v%d, 4, v%d" % (t0, t1, t0))
    A.e("v_add_u32 v%d, s%d, v%d" % (t0, S_T1, t0))
    A.e("v_add_u32 v%d, 256, v%d" % (t0, t0))
    A.e("v_cndmask_b32 v%d, v%d, v%d, vcc" % (V_DOFF + 4, t0, V_DOFF + 4))
    A.e("s_cmp_eq_u32 s%d, 0" % S_TYP)
    A.e("s_mov_b32 s%d, %d" % (S_T3, 32 * 2688))
    A.e("s_cselect_b32 s%d, s%d, %d" % (S_STR, S_T3, 32 * 3584))
    for r in range(5):
        A.e("s_mov_b32 s%d, 0" % (S_SOFF + r))
    A.e("v_lshrrev_b32 v%d, 3, v%d" % (t0, V_LANE))
    A.e("v_lshrrev_b32 v%d, 4, v%d" % (t1, V_LANE))
    A.e("v_and_b32 v%d, 7, v%d" % (t2, V_LANE))
    A.e("v_xor_b32 v%d, v%d, v%d" % (t1, t1, t2))
    A.e("v_mul_u32_u24 v%d, 896, v%d" % (t0, t0))
    A.e("v_lshl_add_u32 v%d, v%d, 4, v%d" % (V_XD, t1, t0))
    A.e("v_xor_b32 v%d, 64, v%d" % (V_XD + 1, V_XD))
    A.e("s_lshl_b32 s%d, s%d, 7" % (S_T0, S_RB))
    A.e("s_lshl_b32 s%d, s%d, 5" % (S_T1, SJ))
    A.e("s_add_u32 s%d, s%d, s%d" % (S_T0, S_T0, S_T1))
    A.e("s_mul_i32 s%d, s%d, 896" % (S_XO, S_T0))
    A.e("s_lshl_b32 s%d, s%d, 10" % (S_STR + 1, SJ))
    A.e("s_lshl_b32 s%d, s%d, 12" % (S_STR + 2, SJ))
    A.e("s_add_u32 s%d, s%d, %d" % (S_STR + 2, S_STR + 2, XBASE))

def k1_touch_setup(A):
    t0, t1, t2, t3 = V_T, V_T + 1, V_T + 2, V_T + 3
    A.e("v_lshrrev_b32 v%d, 3, v%d" % (t0, V_LANE))
    A.e("v_and_b32 v%d, 7, v%d" % (t1, V_LANE))
    A.e("v_mov_b32 v%d, 0x7ffffff0" % (V_T + 4))
    A.e("s_cmp_eq_u32 s%d, 3" % S_WAVE)
    A.e("s_cbranch_scc1 K1_TS_X%d" % A.uid)
    A.e("s_cmp_eq_u32 s%d, 0" % S_TYP)
    A.e("s_cbranch_scc0 K1_TS_F%d" % A.uid)
    A.e("s_cmp_eq_u32 s%d, 0" % S_WAVE)
    A.e("s_cbranch_scc0 K1_TS_PG%d" % A.uid)
    srd(A, S_R, 6, SZQ)
    A.e("v_lshrrev_b32 v%d, 1, v%d" % (t2, t1))
    A.e("v_mul_u32_u24 v%d, 896, v%d" % (t2, t2))
    A.e("v_and_b32 v%d, 1, v%d" % (t3, t1))
    A.e("v_mul_u32_u24 v%d, 116, v%d" % (t3, t3))
    A.e("v_mul_u32_u24 v%d, 2688, v%d" % (t0, t0))
    A.e("v_add3_u32 v%d, v%d, v%d, v%d" % (V_DOFF, t0, t2, t3))
    A.e("v_cmp_gt_u32 vcc, 6, v%d" % t1)
    A.e("s_mul_i32 s%d, s%d, 112" % (S_SOFF, S_PI))
    A.e("s_mul_i32 s%d, s%d, %d" % (S_T0, S_E, 8 * 2688))
    A.e("s_add_u32 s%d, s%d, s%d" % (S_SOFF, S_SOFF, S_T0))
    A.e("s_mov_b32 s%d, %d" % (S_STR, 64 * 2688))
    A.e("s_branch K1_TS_END%d" % A.uid)
    A.label("K1_TS_PG%d" % A.uid)
    A.e("s_cmp_eq_u32 s%d, 1" % S_WAVE)
    sel_srd(A, S_R, 8, 10, SZG, SZG)
    A.e("v_mul_u32_u24 v%d, 3584, v%d" % (V_DOFF, t0))
    if "t64" in EXP:
        A.e("v_lshl_add_u32 v%d, v%d, 6, v%d" % (V_DOFF, t1, V_DOFF))
        A.e("v_cmp_gt_u32 vcc, 2, v%d" % t1)
    else:
        A.e("v_cmp_gt_u32 vcc, 1, v%d" % t1)
    A.e("s_lshl_b32 s%d, s%d, 7" % (S_SOFF, S_PI))
    A.e("s_mul_i32 s%d, s%d, %d" % (S_T0, S_E, 8 * 3584))
    A.e("s_add_u32 s%d, s%d, s%d" % (S_SOFF, S_SOFF, S_T0))
    A.e("s_mov_b32 s%d, %d" % (S_STR, 64 * 3584))
    A.e("s_branch K1_TS_END%d" % A.uid)
    A.label("K1_TS_F%d" % A.uid)
    A.e("s_cmp_eq_u32 s%d, 0" % S_WAVE)
    sel_srd(A, S_R, 8, 10, SZG, SZG)
    A.e("v_lshlrev_b32 v%d, %d, v%d" % (t2, 6 if "t64" in EXP else 7, t1))
    A.e("v_min_u32 v%d, 316, v%d" % (t2, t2))
    A.e("v_mul_u32_u24 v%d, 3584, v%d" % (t0, t0))
    A.e("v_add_u32 v%d, v%d, v%d" % (V_DOFF, t0, t2))
    A.e("s_cmp_lt_u32 s%d, 2" % S_WAVE)
    A.e("s_cselect_b32 s%d, %d, 0" % (S_T0, 6 if "t64" in EXP else 4))
    A.e("v_cmp_gt_u32 vcc, s%d, v%d" % (S_T0, t1))
    A.e("s_mul_i32 s%d, s%d, 320" % (S_SOFF, S_PI))
    A.e("s_add_u32 s%d, s%d, 1024" % (S_SOFF, S_SOFF))
    A.e("s_mul_i32 s%d, s%d, %d" % (S_T0, S_E, 8 * 3584))
    A.e("s_add_u32 s%d, s%d, s%d" % (S_SOFF, S_SOFF, S_T0))
    A.e("s_mov_b32 s%d, %d" % (S_STR, 64 * 3584))
    A.e("s_branch K1_TS_END%d" % A.uid)
    A.label("K1_TS_X%d" % A.uid)
    srd(A, S_R, 4, 2048 * 896)
    if "t64" in EXP:
        A.e("v_lshrrev_b32 v%d, 1, v%d" % (t2, V_LANE))
        A.e("v_mul_u32_u24 v%d, 896, v%d" % (V_DOFF, t2))
        A.e("v_and_b32 v%d, 1, v%d" % (t2, V_LANE))
        A.e("v_lshl_add_u32 v%d, v%d, 6, v%d" % (V_DOFF, t2, V_DOFF))
        A.e("v_cmp_gt_u32 vcc, 64, v%d" % V_LANE)
    else:
        A.e("v_mul_u32_u24 v%d, 896, v%d" % (V_DOFF, V_LANE))
        A.e("v_cmp_gt_u32 vcc, 32, v%d" % V_LANE)
    A.e("s_lshl_b32 s%d, s%d, 7" % (S_T0, S_RB))
    A.e("s_and_b32 s%d, s%d, 3" % (S_T1, S_IDX))
    A.e("s_lshl_b32 s%d, s%d, 5" % (S_T1, S_T1))
    A.e("s_add_u32 s%d, s%d, s%d" % (S_T0, S_T0, S_T1))
    A.e("s_mul_i32 s%d, s%d, 896" % (S_SOFF, S_T0))
    A.e("s_mov_b32 s%d, 128" % S_STR)
    A.label("K1_TS_END%d" % A.uid)
    A.e("s_nop 1")
    A.e("v_cndmask_b32 v%d, v%d, v%d, vcc" % (V_DOFF, V_T + 4, V_DOFF))
    A.uid += 1

def k1_cwr_setup(A):
    T = V_T
    A.e("s_cmp_eq_u32 s%d, 0" % S_WAVE); A.e("s_cselect_b32 s%d, s4, s6" % S_T1); A.e("s_cselect_b32 s%d, s5, s7" % S_T2)
    A.e("s_cmp_eq_u32 s%d, 2" % S_WAVE); A.e("s_cselect_b32 s%d, s8, s%d" % (S_T1, S_T1)); A.e("s_cselect_b32 s%d, s9, s%d" % (S_T2, S_T2))
    A.e("s_cmp_eq_u32 s%d, 3" % S_WAVE); A.e("s_cselect_b32 s%d, s10, s%d" % (S_T1, S_T1)); A.e("s_cselect_b32 s%d, s11, s%d" % (S_T2, S_T2))
    A.e("s_mov_b32 s%d, s%d" % (S_R, S_T1))
    A.e("s_and_b32 s%d, s%d, 0xffff" % (S_R + 1, S_T2))
    A.e("s_mov_b32 s%d, %d" % (S_T3, SZQ))
    A.e("s_cmp_eq_u32 s%d, 1" % S_WAVE); A.e("s_cselect_b32 s%d, s%d, %d" % (S_R + 2, S_T3, SZG))
    A.e("s_mov_b32 s%d, %d" % (S_T3, 2048 * 896))
    A.e("s_cmp_eq_u32 s%d, 0" % S_WAVE); A.e("s_cselect_b32 s%d, s%d, s%d" % (S_R + 2, S_T3, S_R + 2))
    A.e("s_mov_b32 s%d, 0x00020000" % (S_R + 3))
    A.e("s_mov_b32 s%d, 7" % S_T3)
    A.e("s_cmp_eq_u32 s%d, 1" % S_WAVE); A.e("s_cselect_b32 s%d, 6, s%d" % (S_T3, S_T3))
    A.e("s_cmp_eq_u32 s%d, 0" % S_WAVE); A.e("s_cselect_b32 s%d, 8, s%d" % (S_T3, S_T3))
    A.e("s_mul_i32 s%d, s2, s%d" % (S_T0, S_T3))
    A.e("s_mul_i32 s%d, s2, 21" % S_T1)
    A.e("s_lshr_b32 s%d, s%d, 2" % (S_T1, S_T1))
    A.e("s_cmp_eq_u32 s%d, 1" % S_WAVE); A.e("s_cselect_b32 s%d, s%d, s%d" % (S_T0, S_T1, S_T0))
    A.e("s_mov_b32 s%d, 128" % S_T1)
    A.e("s_cmp_eq_u32 s%d, 0" % S_WAVE); A.e("s_cselect_b32 s%d, 896, s%d" % (S_T1, S_T1))
    A.e("v_add_u32 v%d, s%d, v%d" % (T, S_T0, V_LANE))
    A.e("v_mul_lo_u32 v%d, v%d, s%d" % (T, T, S_T1))
    A.e("v_mov_b32 v%d, 0x7ffffff0" % (T + 1))
    A.e("v_cmp_gt_u32 vcc, s%d, v%d" % (S_T3, V_LANE))
    A.e("s_nop 1")
    A.e("v_cndmask_b32 v%d, v%d, v%d, vcc" % (V_DOFF, T + 1, T))
    A.e("s_mov_b32 s%d, %d" % (S_T3, 64 * 3584))
    A.e("s_mov_b32 s%d, %d" % (S_T1, 64 * 2688))
    A.e("s_cmp_eq_u32 s%d, 1" % S_WAVE); A.e("s_cselect_b32 s%d, s%d, s%d" % (S_T3, S_T1, S_T3))
    A.e("s_cmp_eq_u32 s%d, 0" % S_WAVE); A.e("s_cselect_b32 s%d, 128, s%d" % (S_STR, S_T3))
    A.e("s_mov_b32 s%d, 0" % S_SOFF)

def k1_prefetch0(A):
    T = V_T
    A.e("s_lshl_b32 s%d, s%d, 1" % (S_T0, S_WAVE))
    A.e("s_cmp_eq_u32 s%d, 0" % S_WAVE); A.e("s_cselect_b32 s%d, s4, s6" % S_T1); A.e("s_cselect_b32 s%d, s5, s7" % S_T2)
    A.e("s_cmp_eq_u32 s%d, 2" % S_WAVE); A.e("s_cselect_b32 s%d, s8, s%d" % (S_T1, S_T1)); A.e("s_cselect_b32 s%d, s9, s%d" % (S_T2, S_T2))
    A.e("s_cmp_eq_u32 s%d, 3" % S_WAVE); A.e("s_cselect_b32 s%d, s10, s%d" % (S_T1, S_T1)); A.e("s_cselect_b32 s%d, s11, s%d" % (S_T2, S_T2))
    A.e("s_mov_b32 s%d, s%d" % (S_R + 4, S_T1))
    A.e("s_and_b32 s%d, s%d, 0xffff" % (S_R + 5, S_T2))
    A.e("s_mov_b32 s%d, %d" % (S_T3, SZQ))
    A.e("s_cmp_eq_u32 s%d, 1" % S_WAVE); A.e("s_cselect_b32 s%d, s%d, %d" % (S_R + 6, S_T3, SZG))
    A.e("s_mov_b32 s%d, %d" % (S_T3, 2048 * 896))
    A.e("s_cmp_eq_u32 s%d, 0" % S_WAVE); A.e("s_cselect_b32 s%d, s%d, s%d" % (S_R + 6, S_T3, S_R + 6))
    A.e("s_mov_b32 s%d, 0x00020000" % (S_R + 7))
    A.e("s_mov_b32 s%d, 49" % S_T3)
    A.e("s_cmp_eq_u32 s%d, 1" % S_WAVE); A.e("s_cselect_b32 s%d, 37, s%d" % (S_T3, S_T3))
    A.e("s_cmp_eq_u32 s%d, 0" % S_WAVE); A.e("s_cselect_b32 s%d, 56, s%d" % (S_T3, S_T3))
    A.e("s_mul_i32 s%d, s%d, s2" % (S_T1, S_T3))
    A.e("s_lshl_b32 s%d, s%d, 7" % (S_T1, S_T1))
    A.e("v_lshlrev_b32 v%d, 7, v%d" % (T, V_LANE))
    A.e("v_mov_b32 v%d, 0x7ffffff0" % (T + 1))
    A.e("v_cmp_gt_u32 vcc, s%d, v%d" % (S_T3, V_LANE))
    A.e("s_nop 1")
    A.e("v_cndmask_b32 v%d, v%d, v%d, vcc" % (T, T + 1, T))
    A.vmem("buffer_load_dword v%d, v%d, s[%d:%d], s%d offen" % (V_DUMP, T, S_R + 4, S_R + 7, S_T1), "pf")

def k1_prefetch2(A):
    T = V_T
    srd(A, S_GW, 96, 1792 * 896)
    if "pf2chip" in EXP:
        A.e("s_lshl_b32 s%d, s2, 2" % S_T0)
        A.e("s_add_u32 s%d, s%d, s%d" % (S_T0, S_T0, S_WAVE))
        A.e("s_mul_i32 s%d, s%d, %d" % (S_T1, S_T0, 13 * 128))
        A.e("v_lshlrev_b32 v%d, 7, v%d" % (T, V_LANE))
        A.e("v_mov_b32 v%d, 0x7ffffff0" % (T + 1))
        A.e("v_cmp_gt_u32 vcc, 13, v%d" % V_LANE)
        A.e("s_nop 1")
        A.e("v_cndmask_b32 v%d, v%d, v%d, vcc" % (T + 2, T + 1, T))
        A.vmem("buffer_load_dword v%d, v%d, s[%d:%d], s%d offen" % (V_DUMP, T + 2, S_GW, S_GW + 3, S_T1), "pf")
        srd(A, S_R + 4, 98, 448 * 896)
        A.e("s_mul_i32 s%d, s%d, %d" % (S_T1, S_T0, 4 * 128))
        A.e("v_cmp_gt_u32 vcc, 4, v%d" % V_LANE)
        A.e("s_nop 1")
        A.e("v_cndmask_b32 v%d, v%d, v%d, vcc" % (T + 2, T + 1, T))
        A.vmem("buffer_load_dword v%d, v%d, s[%d:%d], s%d offen" % (V_DUMP + 2, T + 2, S_R + 4, S_R + 7, S_T1), "pf")
        return
    A.e("s_lshl_b32 s%d, s%d, 2" % (S_T0, S_IDX))
    A.e("s_add_u32 s%d, s%d, s%d" % (S_T0, S_T0, S_WAVE))
    A.e("s_mul_i32 s%d, s%d, %d" % (S_T1, S_T0, 98 * 128))
    A.e("v_lshlrev_b32 v%d, 7, v%d" % (T, V_LANE))
    A.vmem("buffer_load_dword v%d, v%d, s[%d:%d], s%d offen" % (V_DUMP, T, S_GW, S_GW + 3, S_T1), "pf")
    A.e("v_mov_b32 v%d, 0x7ffffff0" % (T + 1))
    A.e("v_cmp_gt_u32 vcc, 34, v%d" % V_LANE)
    A.e("s_nop 1")
    A.e("v_cndmask_b32 v%d, v%d, v%d, vcc" % (T + 2, T + 1, T))
    A.e("s_add_u32 s%d, s%d, %d" % (S_T1, S_T1, 64 * 128))
    A.vmem("buffer_load_dword v%d, v%d, s[%d:%d], s%d offen" % (V_DUMP + 1, T + 2, S_GW, S_GW + 3, S_T1), "pf")
    srd(A, S_R + 4, 98, 448 * 896)
    A.e("s_mul_i32 s%d, s%d, %d" % (S_T1, S_T0, 25 * 128))
    A.e("v_cmp_gt_u32 vcc, 25, v%d" % V_LANE)
    A.e("s_nop 1")
    A.e("v_cndmask_b32 v%d, v%d, v%d, vcc" % (T + 2, T + 1, T))
    A.vmem("buffer_load_dword v%d, v%d, s[%d:%d], s%d offen" % (V_DUMP + 2, T + 2, S_R + 4, S_R + 7, S_T1), "pf")

def gen_k1_var(A, var):
    dma = var.startswith("FFN4")
    nt = 6 if var.endswith("6") else 4
    poffs = [512] * 6
    if var == "FFN6":
        poffs = [512, 512, 512, 512, 256, 256]
    if var == "QKV6":
        A.e("s_and_b32 s%d, s%d, 2" % (S_T0, S_WAVE))
        for i in range(2):
            A.e("s_add_u32 s%d, s%d, %d" % (S_T1, S_T0, i))
            emit_raddr(A, V_WA + i, "T4", "s%d" % S_T1)
        for m in (1, 2):
            for i in range(2):
                A.e("v_add_u32 v%d, %d, v%d" % (V_WA + 2 * m + i, m * 4096, V_WA + i))
    elif var == "FFN6":
        A.e("s_and_b32 s%d, s%d, 2" % (S_T0, S_WAVE))
        for p in range(2):
            A.e("s_add_u32 s%d, s%d, %d" % (S_T1, S_T0, p))
            emit_raddr(A, V_WA + 2 * p, "T4", "s%d" % S_T1)
            A.e("v_add_u32 v%d, 8192, v%d" % (V_WA + 2 * p + 1, V_WA + 2 * p))
        A.e("s_lshr_b32 s%d, s%d, 1" % (S_T1, S_WAVE))
        emit_raddr(A, V_WA + 4, "T2", "s%d" % S_T1)
        A.e("v_add_u32 v%d, 16384, v%d" % (V_WA + 4, V_WA + 4))
        A.e("v_add_u32 v%d, 2048, v%d" % (V_WA + 5, V_WA + 4))
    elif var == "FFN4":
        A.e("s_and_b32 s%d, s%d, 2" % (S_T0, S_WAVE))
        A.e("s_cmp_eq_u32 s%d, 0" % S_TYP)
        A.e("s_cselect_b32 s%d, 3, 1" % S_T3)
        A.e("s_cselect_b32 s%d, 1, 2" % S_T2)
        A.e("s_lshl_b32 s%d, s%d, 12" % (S_STR + 4, S_T3))
        A.e("s_lshl_b32 s%d, s%d, 12" % (S_STR + 3, S_T2))
        for p in range(2):
            A.e("s_add_u32 s%d, s%d, %d" % (S_T1, S_T0, p))
            emit_raddr(A, V_WA + 2 * p, "T4", "s%d" % S_T1)
            A.e("v_add_u32 v%d, s%d, v%d" % (V_WA + 2 * p, S_STR + 4, V_WA + 2 * p))
            A.e("v_add_u32 v%d, s%d, v%d" % (V_WA + 2 * p + 1, S_STR + 3, V_WA + 2 * p))
    for i in range(nt):
        A.e("v_add_u32 v%d, %d, v%d" % (V_WA + 6 + i, WHI, V_WA + i))
    if not dma:
        if "cwr" in EXP:
            k1_cwr_setup(A)
        elif "nopf" not in EXP:
            k1_touch_setup(A)

    def issue_w(stage):
        slot = stage % 4
        for r in range(5):
            A.e("s_add_u32 m0, s%d, %d" % (S_STR + 1, slot * WSTG + r * 4096))
            A.e("s_nop 0")
            A.vmem("buffer_load_dwordx4 v%d, s[%d:%d], s%d offen lds" % (V_DOFF + r, S_R + 4 * r, S_R + 4 * r + 3, S_SOFF + r), ("st", stage))
            if r < 3:
                A.e("s_add_u32 s%d, s%d, s%d" % (S_SOFF + r, S_SOFF + r, S_STR))
            else:
                A.e("s_add_u32 s%d, s%d, %d" % (S_SOFF + r, S_SOFF + r, 32 * 3584))
    def issue_x(d):
        for i in range(4):
            A.e("s_add_u32 m0, s%d, %d" % (S_STR + 2, (d % 2) * XSLOT + i * 1024))
            A.e("s_add_u32 s%d, s%d, %d" % (S_T0, S_XO, i * 8 * 896 + d * 128))
            A.vmem("buffer_load_dwordx4 v%d, s[%d:%d], s%d offen lds" % (V_XD + (i & 1), S_X, S_X + 3, S_T0), ("x", d))
    def touch(d):
        A.e("s_mul_i32 s%d, s%d, %d" % (S_T0, S_STR, d))
        A.e("s_add_u32 s%d, s%d, s%d" % (S_T0, S_T0, S_SOFF))
        A.vmem("buffer_load_dword v%d, v%d, s[%d:%d], s%d offen" % (V_DUMP + 3, V_DOFF, S_R, S_R + 3, S_T0), "pf")
    def read_list(stage):
        slot = stage % 4
        st = stage & 1
        hi = 1 if slot >= 2 else 0
        base = (slot - 2 * hi) * WSTG
        out = []
        d = stage // 2
        for rt in range(4):
            out.append("ds_read_b128 v[%d:%d], v%d offset:%d" % (V_XF + st * 16 + rt * 4, V_XF + st * 16 + rt * 4 + 3, V_XA + (stage & 1), (d % 2) * XSLOT + rt * 2048))
        for ti in range(nt):
            dd = V_WF + st * 24 + ti * 4
            for p in range(2):
                out.append("ds_read_b64_tr_b16 v[%d:%d], v%d offset:%d" % (dd + 2 * p, dd + 2 * p + 1, V_WA + ti + 6 * hi, base + p * poffs[ti]))
        return out

    A.nst = 0
    A.stamp()
    if STAMP:
        A.e("s_memrealtime s[100:101]")
    NK = 14
    if dma:
        if "prio" in EXP:
            A.e("s_setprio 1")
        if "dly" in EXP:
            A.e("s_sleep %d" % int(os.environ.get("DLY", "32")))
        issue_x(0); issue_w(0); issue_w(1); issue_x(1); issue_w(2)
    else:
        if "cwr" in EXP:
            for d in range(CW0):
                touch(d)
        elif "nopf" not in EXP and "latepf" not in EXP:
            for d in (1, 2, 3):
                touch(d)
    A.wait_vm("gate")
    T = V_T
    A.e("v_mov_b32 v%d, 0" % V_GATE)
    for d in range(4):
        unpack2(A, T, T + 1, 96 + d)
        unpack2(A, T + 2, T + 3, 100 + d)
        A.e("v_pk_mul_f32 v[%d:%d], v[%d:%d], v[%d:%d]" % (T, T + 1, T, T + 1, T + 2, T + 3))
        A.e("v_cvt_pk_bf16_f32 v%d, v%d, v%d" % (T + 4, T, T + 1))
        unpack2(A, T, T + 1, T + 4)
        A.e("v_add_f32 v%d, v%d, v%d" % (V_GATE, V_GATE, T))
        A.e("v_add_f32 v%d, v%d, v%d" % (V_GATE, V_GATE, T + 1))
    for mod in ("quad_perm:[1,0,3,2]", "quad_perm:[2,3,0,1]", "row_half_mirror", "row_mirror"):
        A.e("s_nop 1")
        A.e("v_add_f32_dpp v%d, v%d, v%d %s row_mask:0xf bank_mask:0xf" % (V_GATE, V_GATE, V_GATE, mod))
    A.e("s_nop 1")
    A.e("v_readlane_b32 s%d, v%d, 16" % (S_T0, V_GATE))
    A.e("v_readlane_b32 s%d, v%d, 32" % (S_T1, V_GATE))
    A.e("v_readlane_b32 s%d, v%d, 48" % (S_T2, V_GATE))
    A.e("s_nop 1")
    A.e("v_add_f32 v%d, s%d, v%d" % (V_GATE, S_T0, V_GATE))
    A.e("v_add_f32 v%d, s%d, v%d" % (V_GATE, S_T1, V_GATE))
    A.e("v_add_f32 v%d, s%d, v%d" % (V_GATE, S_T2, V_GATE))
    A.e("v_cvt_pk_bf16_f32 v%d, v%d, v%d" % (V_GATE, V_GATE, V_GATE))
    A.e("v_lshlrev_b32 v%d, 16, v%d" % (V_GATE, V_GATE))
    A.e("v_mul_f32 v%d, s%d, v%d" % (V_GATE, S_NL2E, V_GATE))
    A.e("v_exp_f32 v%d, v%d" % (V_GATE, V_GATE))
    A.e("s_nop 0")
    A.e("v_add_f32 v%d, 1.0, v%d" % (V_GATE, V_GATE))
    A.e("v_rcp_f32 v%d, v%d" % (V_GATE, V_GATE))
    A.e("s_nop 0")
    A.e("v_cvt_pk_bf16_f32 v%d, v%d, v%d" % (V_GATE, V_GATE, V_GATE))
    A.e("v_lshlrev_b32 v%d, 16, v%d" % (V_GATE, V_GATE))

    def wait_stage(stage, extra=""):
        if dma:
            tags = [("st", stage), ("x", stage // 2)]
            idx = None
            for i, t in enumerate(A.vm):
                if t in tags: idx = i
            if idx is None:
                if extra: A.e("s_waitcnt " + extra)
            else:
                n = len(A.vm) - 1 - idx
                A.e("s_waitcnt vmcnt(%d) %s" % (n, extra))
                A.vm = A.vm[idx + 1:]
        elif extra:
            A.e("s_waitcnt " + extra)

    wait_stage(0)
    A.e("s_barrier")
    if not dma and "latepf" in EXP:
        for d in (1, 2, 3):
            touch(d)
    for r in read_list(0):
        A.e(r)
    for s in range(NK):
        A.c("---- step %d ----" % s)
        if s in (1, 8):
            A.stamp()
        if s + 1 < NK:
            wait_stage(s + 1, "lgkmcnt(0)")
            A.e("s_barrier")
        else:
            A.e("s_waitcnt lgkmcnt(0)")
        if "prio2" in EXP and s == PSW:
            A.e("s_setprio %d" % (0 if dma else 2))
        if dma:
            if s + 3 < NK:
                issue_w(s + 3)
            if s % 2 == 1 and (s + 3) // 2 < 7:
                issue_x((s + 3) // 2)
        else:
            if "cwr" in EXP:
                if s + CW0 < 7:
                    touch(s + CW0)
            elif s % 2 == 0 and s // 2 + 4 < 7 and "nopf" not in EXP:
                touch(s // 2 + 4)
            if s == PF2STEP and "nopf2" not in EXP:
                k1_prefetch2(A)
        reads = read_list(s + 1) if s + 1 < NK else []
        st = s & 1
        mf = []
        for ti in range(nt):
            for rt in range(4):
                acc = V_ACC + (ti * 4 + rt) * 4
                xf = V_XF + st * 16 + rt * 4
                wf = V_WF + st * 24 + ti * 4
                cin = "0" if s == 0 else "v[%d:%d]" % (acc, acc + 3)
                if var == "QKV6" and ti >= 2:
                    a, b = xf, wf
                else:
                    a, b = wf, xf
                mf.append("v_mfma_f32_16x16x32_bf16 v[%d:%d], v[%d:%d], v[%d:%d], %s" % (acc, acc + 3, a, a + 3, b, b + 3, cin))
        ri = 0
        for m in mf:
            A.e(m)
            if ri < len(reads):
                A.e(reads[ri]); ri += 1
        while ri < len(reads):
            A.e(reads[ri]); ri += 1

    A.c("---- epilogue ----")
    A.stamp()
    A.e("s_mov_b32 s%d, 0x%x" % (S_L2E2, LOG2E))
    A.e("s_mov_b32 s%d, 0x%x" % (S_L2E2 + 1, LOG2E))
    A.e("s_mov_b32 s%d, 0x%x" % (S_EPS2, EPS))
    A.e("s_mov_b32 s%d, 0x%x" % (S_EPS2 + 1, EPS))
    A.nop(6)
    A.e("v_mov_b32 v%d, 0x7ffffff0" % (V_T + 1))
    A.e("v_mov_b32 v%d, %d" % (V_T, WS_G))
    A.e("v_cmp_eq_u32 vcc, 0, v%d" % V_LANE)
    A.e("s_nop 1")
    A.e("v_cndmask_b32 v%d, v%d, v%d, vcc" % (V_T, V_T + 1, V_T))
    A.vmem("buffer_store_dword v%d, v%d, s[%d:%d], s%d offen" % (V_GATE, V_T, S_W, S_W + 3, S_GOFF), "out")
    VL16 = 9
    A.e("v_lshlrev_b32 v%d, 4, v%d" % (VL16, V_LANE))
    TMP = 32
    if var == "QKV6":
        S_HEAD = S_T3
        A.e("s_lshl_b32 s%d, s%d, 1" % (S_HEAD, S_PI))
        A.e("s_lshr_b32 s%d, s%d, 1" % (S_T0, S_WAVE))
        A.e("s_add_u32 s%d, s%d, s%d" % (S_HEAD, S_HEAD, S_T0))
        M48, M12, ONE12 = 2, 3, 4
        A.e("v_cmp_gt_u32 vcc, 48, v%d" % V_LANE)
        A.e("s_nop 1")
        A.e("v_cndmask_b32 v%d, 0, -1, vcc" % M48)
        A.e("v_and_b32 v%d, 15, v%d" % (V_T, V_LANE))
        A.e("v_cmp_gt_u32 vcc, 12, v%d" % V_T)
        A.e("s_nop 1")
        A.e("v_cndmask_b32 v%d, 0, -1, vcc" % M12)
        A.e("v_mov_b32 v%d, 0x3f803f80" % (V_T + 1))
        A.e("v_cmp_eq_u32 vcc, 12, v%d" % V_T)
        A.e("s_nop 1")
        A.e("v_cndmask_b32 v%d, 0, v%d, vcc" % (ONE12, V_T + 1))
        QF = 48
        for rt in range(4):
            for dt in range(2):
                acc = V_ACC + ((0 + dt) * 4 + rt) * 4
                emit_phi4(A, acc, QF + rt * 4 + dt * 2, TMP)
            A.e("v_and_b32 v%d, v%d, v%d" % (QF + rt * 4 + 2, QF + rt * 4 + 2, M48))
            A.e("v_and_b32 v%d, v%d, v%d" % (QF + rt * 4 + 3, QF + rt * 4 + 3, M48))
            A.e("s_add_u32 s%d, s%d, %d" % (S_T0, S_R0T, rt))
            A.e("s_lshl_b32 s%d, s%d, 4" % (S_T0, S_T0))
            A.e("s_add_u32 s%d, s%d, s%d" % (S_T0, S_T0, S_HEAD))
            A.e("s_lshl_b32 s%d, s%d, 10" % (S_T0, S_T0))
            A.e("s_add_u32 s%d, s%d, %d" % (S_T0, S_T0, WS_PQ))
            A.vmem("buffer_store_dwordx4 v[%d:%d], v%d, s[%d:%d], s%d offen %s" % (QF + rt * 4, QF + rt * 4 + 3, VL16, S_W, S_W + 3, S_T0, STF), "out")
        KP, VP = 64, 80
        for dt in range(2):
            for rt in range(4):
                acc = V_ACC + ((2 + dt) * 4 + rt) * 4
                d = KP + dt * 8 + rt * 2
                emit_phi4(A, acc, d, TMP)
                if dt == 1:
                    A.e("v_and_b32 v%d, v%d, v%d" % (d, d, M12))
                    A.e("v_and_b32 v%d, v%d, v%d" % (d + 1, d + 1, M12))
        for et in range(2):
            for rt in range(4):
                acc = V_ACC + ((4 + et) * 4 + rt) * 4
                d = VP + et * 8 + rt * 2
                for h in range(2):
                    A.e("v_cvt_pk_bf16_f32 v%d, v%d, v%d" % (d + h, acc + 2 * h, acc + 2 * h + 1))
                    if et == 1:
                        A.e("v_and_or_b32 v%d, v%d, v%d, v%d" % (d + h, d + h, M12, ONE12))
        A.nop(2)
        KV = 96
        for blk in range(2):
            for dt in range(2):
                for et in range(2):
                    acc = KV + (dt * 2 + et) * 4
                    a = KP + dt * 8 + blk * 4
                    b = VP + et * 8 + blk * 4
                    cin = "0" if blk == 0 else "v[%d:%d]" % (acc, acc + 3)
                    A.e("v_mfma_f32_16x16x32_bf16 v[%d:%d], v[%d:%d], v[%d:%d], %s" % (acc, acc + 3, a, a + 3, b, b + 3, cin))
        A.nop(10)
        A.e("s_lshl_b32 s%d, s%d, 5" % (S_T0, S_HEAD))
        A.e("s_lshl_b32 s%d, s%d, 1" % (S_T1, S_RB))
        A.e("s_add_u32 s%d, s%d, s%d" % (S_T0, S_T0, S_T1))
        A.e("s_add_u32 s%d, s%d, s%d" % (S_T0, S_T0, S_RH))
        A.e("s_lshl_b32 s%d, s%d, 12" % (S_T0, S_T0))
        A.e("s_add_u32 s%d, s%d, %d" % (S_T0, S_T0, WS_KVP))
        for t in range(4):
            A.vmem("buffer_store_dwordx4 v[%d:%d], v%d, s[%d:%d], s%d offen offset:%d %s" % (KV + t * 4, KV + t * 4 + 3, VL16, S_W, S_W + 3, S_T0, t * 1024, STF), "out")
    else:
        S_FT = S_T3
        if var == "FFN6":
            A.e("s_mul_i32 s%d, s%d, 10" % (S_FT, S_PI))
            A.e("s_and_b32 s%d, s%d, 2" % (S_T0, S_WAVE))
            A.e("s_add_u32 s%d, s%d, s%d" % (S_FT, S_FT, S_T0))
            A.e("s_add_u32 s%d, s%d, 32" % (S_FT, S_FT))
        else:
            A.e("s_lshl_b32 s%d, s%d, 2" % (S_T0, S_PI))
            A.e("s_mul_i32 s%d, s%d, 10" % (S_T1, S_PI))
            A.e("s_add_u32 s%d, s%d, 36" % (S_T1, S_T1))
            A.e("s_cmp_eq_u32 s%d, 0" % S_TYP)
            A.e("s_cselect_b32 s%d, s%d, s%d" % (S_FT, S_T0, S_T1))
            A.e("s_and_b32 s%d, s%d, 2" % (S_T1, S_WAVE))
            A.e("s_add_u32 s%d, s%d, s%d" % (S_FT, S_FT, S_T1))
        HP = 48
        A.e("s_lshr_b32 s%d, s%d, 1" % (S_T1, S_FT))
        A.e("s_lshl_b32 s%d, s%d, 10" % (S_T1, S_T1))
        k = 0
        for rt in range(4):
            d = HP + rt * 4
            for p in range(2):
                g = V_ACC + ((2 * p) * 4 + rt) * 4
                u = V_ACC + ((2 * p + 1) * 4 + rt) * 4
                emit_swiglu4(A, g, u, d + 2 * p, TMP + (k % 2) * 4)
                k += 1
            A.e("s_add_u32 s%d, s%d, %d" % (S_T0, S_R0T, rt))
            A.e("s_mul_i32 s%d, s%d, %d" % (S_T0, S_T0, 56 * 1024))
            A.e("s_add_u32 s%d, s%d, s%d" % (S_T0, S_T0, S_T1))
            A.vmem("buffer_store_dwordx4 v[%d:%d], v%d, s[%d:%d], s%d offen %s" % (d, d + 3, VL16, S_W, S_W + 3, S_T0, STF), "out")
        if var == "FFN6":
            A.e("s_mul_i32 s%d, s%d, 5" % (S_T1, S_PI))
            A.e("s_add_u32 s%d, s%d, 20" % (S_T1, S_T1))
            A.e("s_lshl_b32 s%d, s%d, 10" % (S_T1, S_T1))
            A.e("s_lshr_b32 s%d, s%d, 1" % (S_T2, S_WAVE))
            A.e("s_lshl_b32 s%d, s%d, 3" % (S_T2, S_T2))
            A.e("s_add_u32 s%d, s%d, s%d" % (S_T1, S_T1, S_T2))
            for rt in range(4):
                g = V_ACC + (4 * 4 + rt) * 4
                u = V_ACC + (5 * 4 + rt) * 4
                d = 64 + rt * 2
                emit_swiglu4(A, g, u, d, TMP + (k % 2) * 4)
                k += 1
                A.e("s_add_u32 s%d, s%d, %d" % (S_T0, S_R0T, rt))
                A.e("s_mul_i32 s%d, s%d, %d" % (S_T0, S_T0, 56 * 1024))
                A.e("s_add_u32 s%d, s%d, s%d" % (S_T0, S_T0, S_T1))
                A.vmem("buffer_store_dwordx2 v[%d:%d], v%d, s[%d:%d], s%d offen %s" % (d, d + 1, VL16, S_W, S_W + 3, S_T0, STF), "out")
    A.stamp()
    A.stamp(True)
    A.stamp_flush(S_W, S_WAVE, 8, WS_STAMP)

P_SW2, P_SWO, P_SOUT, P_SDBG = 28, 32, 36, 40
P_MT, P_NT = 44, 45
P_LB = 46
P_W2B = 47
P_WOB = 68
P_HB = 69
P_PB = 70
P_KVB = 71
Q_DOFF = 31
Q_L16 = 2
Q_RA = 3
Q_FLAG = 7
Q_ZOFF = 8
Q_G = 9
Q_BA = 10
Q_T = 11
Q_AF = 32
Q_BF = 64
Q_KV = 96
Q_OF = 120
Q_ACC = 128
KVSTEP = int(os.environ.get("KVSTEP", "12"))
RING = 4
SLOT = 8192
NS = 18
BFL = os.environ.get("BFL", "")

def p2_issue_w(A, step):
    slot = step % RING
    if step < 14:
        srdw = P_SW2; base = P_W2B; rowoff = (step % 3 if "k2same" in EXP else step) * 32 * 896
    else:
        srdw = P_SWO; base = P_WOB; rowoff = (step - 14) * 28 * 896
    for o in range(4):
        A.e("s_add_u32 m0, s%d, %d" % (P_LB, slot * SLOT + o * 1024))
        A.e("s_add_u32 s%d, s%d, %d" % (S_T0, base, rowoff + o * 8 * 896))
        A.vmem("buffer_load_dwordx4 v%d, s[%d:%d], s%d offen lds" % (Q_DOFF, srdw, srdw + 3, S_T0), ("w", step))

def p2_issue_b(A, step):
    slot = step % RING
    for rt in range(4):
        A.e("s_add_u32 m0, s%d, %d" % (P_LB, slot * SLOT + 4096 + rt * 1024))
        if step < 14:
            A.e("s_add_u32 s%d, s%d, %d" % (S_T0, P_HB, rt * 56 * 1024 + (step % 3 if "k2same" in EXP else step) * 1024))
        else:
            A.e("s_add_u32 s%d, s%d, %d" % (S_T0, P_PB, rt * 16 * 1024 + (step - 14) * 1024))
        A.vmem("buffer_load_dwordx4 v%d, s[%d:%d], s%d offen lds" % (Q_L16, S_W, S_W + 3, S_T0), ("b", step))

def gen_k2(A):
    A.vm = []
    A.label("k2_kernel")
    if STAMP:
        A.e("s_memrealtime s[92:93]")
    A.e("s_cmp_ge_u32 s2, 240")
    A.e("s_cbranch_scc1 K2_END")
    A.e("s_load_dwordx2 s[98:99], s[0:1], 16")
    A.e("s_load_dwordx2 s[96:97], s[0:1], 48")
    A.e("s_load_dwordx4 s[8:11], s[0:1], 64")
    A.e("s_load_dwordx2 s[14:15], s[0:1], 80")
    if "nocw" not in EXP:
        A.e("s_getpc_b64 s[100:101]")
        A.label("K2_PC")
        A.e("s_sub_u32 s100, s100, K2_PC-k2_kernel")
        A.e("s_subb_u32 s101, s101, 0")
        A.e("v_lshlrev_b32 v%d, 7, v0" % Q_T)
        A.e("v_min_u32 v%d, K2_END-k2_kernel, v%d" % (Q_T, Q_T))
        A.vmem("global_load_dword v%d, v%d, s[100:101]" % (Q_FLAG, Q_T), "cw")
    A.e("v_and_b32 v%d, 63, v0" % V_LANE)
    A.e("v_lshrrev_b32 v%d, 6, v0" % Q_T)
    A.e("s_nop 0")
    A.e("v_readfirstlane_b32 s%d, v%d" % (S_WAVE, Q_T))
    A.e("v_lshlrev_b32 v%d, 4, v%d" % (Q_L16, V_LANE))
    k1_consts(A)
    A.e("s_and_b32 s%d, s2, 7" % S_T0)
    A.e("s_lshr_b32 s%d, s2, 3" % S_IDX)
    A.e("s_sub_u32 s%d, s%d, 2" % (S_T1, S_IDX))
    A.e("s_lshl_b32 s%d, s%d, 2" % (S_T2, S_T0))
    A.e("s_and_b32 s%d, s%d, 3" % (S_T3, S_T1))
    A.e("s_add_u32 s%d, s%d, s%d" % (P_MT, S_T2, S_T3))
    A.e("s_lshr_b32 s%d, s%d, 2" % (P_NT, S_T1))
    A.e("s_waitcnt lgkmcnt(0)")
    srd(A, P_SW2, 96, 1792 * 896)
    srd(A, P_SWO, 98, 448 * 896)
    srd(A, S_W, 14, WS_SIZE)
    srd(A, P_SOUT, 8, 2048 * 896)
    srd(A, P_SDBG, 10, 256)
    A.e("s_cmp_lt_u32 s%d, 2" % S_IDX)
    A.e("s_cbranch_scc1 K2_RED")
    A.e("s_lshl_b32 s%d, s%d, 15" % (P_LB, S_WAVE))
    A.e("s_mul_i32 s%d, s%d, %d" % (S_T0, S_WAVE, 448 * 896))
    A.e("s_lshl_b32 s%d, s%d, 7" % (S_T1, P_NT))
    A.e("s_add_u32 s%d, s%d, s%d" % (P_W2B, S_T0, S_T1))
    A.e("s_mul_i32 s%d, s%d, %d" % (S_T0, S_WAVE, 112 * 896))
    A.e("s_add_u32 s%d, s%d, s%d" % (P_WOB, S_T0, S_T1))
    A.e("s_mul_i32 s%d, s%d, %d" % (S_T0, P_MT, 4 * 56 * 1024))
    A.e("s_mul_i32 s%d, s%d, %d" % (S_T1, S_WAVE, 14 * 1024))
    A.e("s_add_u32 s%d, s%d, s%d" % (P_HB, S_T0, S_T1))
    A.e("s_lshl_b32 s%d, s%d, 16" % (S_T0, P_MT))
    A.e("s_lshl_b32 s%d, s%d, 12" % (S_T1, S_WAVE))
    A.e("s_add_u32 s%d, s%d, s%d" % (S_T0, S_T0, S_T1))
    A.e("s_add_u32 s%d, s%d, %d" % (P_PB, S_T0, WS_PQ))
    A.e("s_lshl_b32 s%d, s%d, 13" % (S_T0, S_WAVE))
    A.e("s_add_u32 s%d, s%d, %d" % (P_KVB, S_T0, WS_KVF))
    t0, t1, t2 = Q_T, Q_T + 1, Q_T + 2
    A.e("v_lshrrev_b32 v%d, 3, v%d" % (t0, V_LANE))
    A.e("v_lshrrev_b32 v%d, 4, v%d" % (t1, V_LANE))
    A.e("v_lshrrev_b32 v%d, 1, v%d" % (t2, V_LANE))
    A.e("v_xor_b32 v%d, v%d, v%d" % (t1, t1, t2))
    A.e("v_and_b32 v%d, 3, v%d" % (t1, t1))
    A.e("v_lshlrev_b32 v%d, 5, v%d" % (t1, t1))
    A.e("v_mul_u32_u24 v%d, 896, v%d" % (t0, t0))
    A.e("v_and_b32 v%d, 1, v%d" % (t2, V_LANE))
    A.e("v_lshlrev_b32 v%d, 4, v%d" % (t2, t2))
    A.e("v_add3_u32 v%d, v%d, v%d, v%d" % (Q_DOFF, t0, t1, t2))
    A.nst = 0
    A.stamp()
    if STAMP:
        A.e("s_memrealtime s[100:101]")
    for st in range(3):
        p2_issue_w(A, st)
        p2_issue_b(A, st)
    global V_T
    sv = V_T
    V_T = Q_T
    for t in range(4):
        emit_raddr(A, Q_RA + t, "T4K2", t)
        A.e("v_add_u32 v%d, s%d, v%d" % (Q_RA + t, P_LB, Q_RA + t))
    V_T = sv
    A.e("v_add_u32 v%d, s%d, v%d" % (Q_BA, P_LB, Q_L16))
    A.e("v_lshrrev_b32 v%d, 4, v%d" % (Q_T, V_LANE))
    A.e("v_lshlrev_b32 v%d, 8, v%d" % (Q_T, Q_T))
    A.e("v_add_u32 v%d, %d, v%d" % (Q_ZOFF, 1024 + 12 * 16, Q_T))
    def reads(step):
        slot = step % RING
        st = step & 1
        out = []
        for rt in range(4):
            d = Q_BF + st * 16 + rt * 4
            out.append("ds_read_b128 v[%d:%d], v%d offset:%d" % (d, d + 3, Q_BA, slot * SLOT + 4096 + rt * 1024))
        for t in range(4):
            d = Q_AF + st * 16 + t * 4
            for p in range(2):
                out.append("ds_read_b64_tr_b16 v[%d:%d], v%d offset:%d" % (d + 2 * p, d + 2 * p + 1, Q_RA + t, slot * SLOT + p * 2048))
        return out
    A.wait_vm(("b", 0))
    A.stamp()
    for r in reads(0):
        A.e(r)
    for s in range(NS):
        A.c("---- k2 step %d ----" % s)
        if s in (8, 11, 14):
            A.stamp()
        rd = []
        if s + 1 < NS:
            A.wait_vm(("b", s + 1), "lgkmcnt(0)")
            rd = reads(s + 1)
        else:
            A.e("s_waitcnt lgkmcnt(0)")
        if s + 3 < NS:
            if "k2now" not in EXP: p2_issue_w(A, s + 3)
            if "k2nob" not in EXP: p2_issue_b(A, s + 3)
        if "k2nord" in EXP: rd = []
        if s == KVSTEP - 3:
            A.e("v_mov_b32 v%d, 0" % (Q_T + 2))
            A.vmem("buffer_load_dword v%d, v%d, s[%d:%d], 0 offen sc1" % (Q_FLAG, Q_T + 2, P_SDBG, P_SDBG + 3), "flag")
            A.e("v_and_b32 v%d, 15, v%d" % (Q_T + 1, V_LANE))
            A.e("v_lshlrev_b32 v%d, 2, v%d" % (Q_T + 1, Q_T + 1))
            A.e("s_lshl_b32 s%d, s%d, 8" % (S_T0, P_MT))
            A.e("s_lshl_b32 s%d, s%d, 6" % (S_T1, S_WAVE))
            A.e("s_add_u32 s%d, s%d, s%d" % (S_T0, S_T0, S_T1))
            A.e("s_add_u32 s%d, s%d, %d" % (S_T0, S_T0, WS_G))
            A.vmem("buffer_load_dword v%d, v%d, s[%d:%d], s%d offen" % (Q_G, Q_T + 1, S_W, S_W + 3, S_T0), "gate")
        if s == KVSTEP:
            A.wait_vm("gate")
            A.label("K2_CHK")
            A.e("v_readfirstlane_b32 s%d, v%d" % (S_T2, Q_FLAG))
            A.e("s_cmp_ge_u32 s%d, 16" % S_T2)
            A.e("s_cbranch_scc1 K2_KVOK")
            A.e("s_sleep 8")
            A.e("buffer_load_dword v%d, v%d, s[%d:%d], 0 offen sc1" % (Q_FLAG, Q_T + 2, P_SDBG, P_SDBG + 3))
            A.e("s_waitcnt vmcnt(0)")
            A.e("s_branch K2_CHK")
            A.label("K2_KVOK")
        def kvload(h):
            d = Q_KV + (h & 1) * 12
            A.e("s_add_u32 s%d, s%d, %d" % (S_T0, P_KVB, h * 2048))
            A.vmem("buffer_load_dwordx4 v[%d:%d], v%d, s[%d:%d], s%d offen sc1" % (d, d + 3, Q_L16, S_W, S_W + 3, S_T0), ("kv", h))
            A.vmem("buffer_load_dwordx4 v[%d:%d], v%d, s[%d:%d], s%d offen offset:1024 sc1" % (d + 4, d + 7, Q_L16, S_W, S_W + 3, S_T0), ("kv", h))
            A.vmem("buffer_load_dwordx4 v[%d:%d], v%d, s[%d:%d], s%d offen sc1" % (d + 8, d + 11, Q_ZOFF, S_W, S_W + 3, S_T0), ("kv", h))
        if s == KVSTEP:
            kvload(0); kvload(1)
        st = s & 1
        if s < 14:
            mf = []
            for t in range(4):
                for rt in range(4):
                    acc = Q_ACC + (t * 4 + rt) * 4
                    a = Q_AF + st * 16 + t * 4
                    b = Q_BF + st * 16 + rt * 4
                    cin = "0" if s == 0 else "v[%d:%d]" % (acc, acc + 3)
                    mf.append("v_mfma_f32_16x16x32_bf16 v[%d:%d], v[%d:%d], v[%d:%d], %s" % (acc, acc + 3, a, a + 3, b, b + 3, cin))
            ri = 0
            if "k2nomf" in EXP and s > 0: mf = []
            for m in mf:
                A.e(m)
                if ri < len(rd):
                    A.e(rd[ri]); ri += 1
            while ri < len(rd):
                A.e(rd[ri]); ri += 1
        else:
            h = s - 14
            A.wait_vm(("kv", h))
            if h == 0:
                A.e("v_cmp_gt_u32 vcc, 48, v%d" % V_LANE)
                A.e("s_nop 1")
                A.e("v_cndmask_b32 v%d, 0, -1, vcc" % Q_FLAG)
            kv = Q_KV + (h & 1) * 12
            ri = 0
            for half in range(2):
                for k in range(2):
                    rt = half * 2 + k
                    b = Q_BF + st * 16 + rt * 4
                    N = 12 + k * 8
                    A.e("v_mfma_f32_16x16x32_bf16 v[%d:%d], v[%d:%d], v[%d:%d], 0" % (N, N + 3, kv, kv + 3, b, b + 3))
                    if ri < len(rd): A.e(rd[ri]); ri += 1
                    A.e("v_mfma_f32_16x16x32_bf16 v[%d:%d], v[%d:%d], v[%d:%d], 0" % (N + 4, N + 7, kv + 4, kv + 7, b, b + 3))
                    if ri < len(rd): A.e(rd[ri]); ri += 1
                for k in range(2):
                    rt = half * 2 + k
                    b = Q_BF + st * 16 + rt * 4
                    N = 12 + k * 8
                    DN = Q_OF + k * 4
                    OF = Q_OF + k * 4
                    A.e("v_mfma_f32_16x16x32_bf16 v[%d:%d], v[%d:%d], v[%d:%d], 0" % (DN, DN + 3, kv + 8, kv + 11, b, b + 3))
                    if ri < len(rd): A.e(rd[ri]); ri += 1
                A.nop(8)
                for k in range(2):
                    N = 12 + k * 8
                    DN = Q_OF + k * 4
                    A.e("v_add_f32 v%d, s%d, v%d" % (28 + k, S_EPS, DN))
                for k in range(2):
                    A.e("v_rcp_f32 v%d, v%d" % (28 + k, 28 + k))
                for k in range(2):
                    N = 12 + k * 8
                    OF = Q_OF + k * 4
                    for i in range(4):
                        A.e("v_pk_mul_f32 v[%d:%d], v[%d:%d], v[28:29] op_sel:[0,%d] op_sel_hi:[1,%d]" % (N + 2 * i, N + 2 * i + 1, N + 2 * i, N + 2 * i + 1, k, k))
                    for i in range(4):
                        A.e("v_cvt_pk_bf16_f32 v%d, v%d, v%d" % (OF + i, N + 2 * i, N + 2 * i + 1))
                    A.e("v_and_b32 v%d, v%d, v%d" % (OF + 2, OF + 2, Q_FLAG))
                    A.e("v_and_b32 v%d, v%d, v%d" % (OF + 3, OF + 3, Q_FLAG))
                A.nop(2)
                for k in range(2):
                    rt = half * 2 + k
                    OF = Q_OF + k * 4
                    for t in range(4):
                        acc = Q_ACC + 64 + (t * 4 + rt) * 4
                        a = Q_AF + st * 16 + t * 4
                        cin = "0" if h == 0 else "v[%d:%d]" % (acc, acc + 3)
                        A.e("v_mfma_f32_16x16x32_bf16 v[%d:%d], v[%d:%d], v[%d:%d], %s" % (acc, acc + 3, a, a + 3, OF, OF + 3, cin))
                if half == 0:
                    A.nop(4)
            while ri < len(rd):
                A.e(rd[ri]); ri += 1
            if h + 2 < 4:
                kvload(h + 2)
    A.c("---- k2 epilogue ----")
    A.stamp()
    A.nop(10)
    A.e("s_barrier")
    A.e("s_lshl_b32 s%d, s%d, 13" % (S_T0, S_WAVE))
    A.e("v_add_u32 v%d, s%d, v%d" % (Q_T, S_T0, Q_L16))
    for rt in range(4):
        A.e("s_cmp_eq_u32 s%d, %d" % (S_WAVE, rt))
        A.e("s_cbranch_scc1 K2_SKIPW%d" % rt)
        A.e("v_add_u32 v%d, %d, v%d" % (Q_T + 1, rt * 32768, Q_T))
        for part in range(2):
            for t in range(4):
                acc = Q_ACC + part * 64 + (t * 4 + rt) * 4
                A.e("ds_write_b128 v%d, v[%d:%d] offset:%d" % (Q_T + 1, acc, acc + 3, part * 4096 + t * 1024))
        A.label("K2_SKIPW%d" % rt)
    for rt in range(4):
        A.e("s_cmp_lg_u32 s%d, %d" % (S_WAVE, rt))
        A.e("s_cbranch_scc1 K2_SKIPM%d" % rt)
        for part in range(2):
            for t in range(4):
                acc = Q_ACC + part * 64 + (t * 4 + rt) * 4
                for i in range(2):
                    A.e("v_pk_mov_b32 v[%d:%d], v[%d:%d], v[%d:%d] op_sel:[0,1]" % (32 + (part * 4 + t) * 4 + 2 * i, 33 + (part * 4 + t) * 4 + 2 * i, acc + 2 * i, acc + 2 * i + 1, acc + 2 * i, acc + 2 * i + 1))
        A.label("K2_SKIPM%d" % rt)
    A.e("s_waitcnt lgkmcnt(0)")
    A.e("s_barrier")
    A.e("s_lshl_b32 s%d, s%d, 15" % (S_T0, S_WAVE))
    A.e("v_add_u32 v%d, s%d, v%d" % (Q_T, S_T0, Q_L16))
    for k in range(1, 4):
        A.e("s_add_u32 s%d, s%d, %d" % (S_T1, S_WAVE, k))
        A.e("s_and_b32 s%d, s%d, 3" % (S_T1, S_T1))
        A.e("s_lshl_b32 s%d, s%d, 13" % (S_T1, S_T1))
        A.e("v_add_u32 v%d, s%d, v%d" % (Q_T + k, S_T1, Q_T))
        for q in range(8):
            A.e("ds_read_b128 v[%d:%d], v%d offset:%d" % (64 + (k - 1) * 32 + q * 4, 64 + (k - 1) * 32 + q * 4 + 3, Q_T + k, q * 1024))
    for k in range(1, 4):
        A.e("s_waitcnt lgkmcnt(%d)" % min(15, 8 * (3 - k)))
        for q in range(16):
            A.e("v_pk_add_f32 v[%d:%d], v[%d:%d], v[%d:%d]" % (32 + 2 * q, 33 + 2 * q, 32 + 2 * q, 33 + 2 * q, 64 + (k - 1) * 32 + 2 * q, 65 + (k - 1) * 32 + 2 * q))
    A.e("v_sub_f32 v14, 1.0, v%d" % Q_G)
    A.e("v_cvt_pk_bf16_f32 v14, v14, v14")
    A.e("v_lshlrev_b32 v14, 16, v14")
    A.e("v_mov_b32 v15, v14")
    A.e("v_mov_b32 v16, v%d" % Q_G)
    A.e("v_mov_b32 v17, v%d" % Q_G)
    A.e("v_and_b32 v18, 15, v%d" % V_LANE)
    A.e("v_mul_u32_u24 v18, 896, v18")
    A.e("v_lshrrev_b32 v19, 4, v%d" % V_LANE)
    A.e("v_lshl_add_u32 v18, v19, 3, v18")
    A.e("s_lshl_b32 s%d, s%d, 6" % (S_T0, P_MT))
    A.e("s_lshl_b32 s%d, s%d, 4" % (S_T1, S_WAVE))
    A.e("s_add_u32 s%d, s%d, s%d" % (S_T0, S_T0, S_T1))
    A.e("s_mul_i32 s%d, s%d, 896" % (S_T0, S_T0))
    A.e("s_lshl_b32 s%d, s%d, 7" % (S_T1, P_NT))
    A.e("s_add_u32 s%d, s%d, s%d" % (S_T0, S_T0, S_T1))
    X = 64
    for t in range(4):
        for h in range(2):
            bq = 32 + t * 4 + 2 * h
            aq = 48 + t * 4 + 2 * h
            A.e("v_pk_mul_f32 v[%d:%d], v[%d:%d], v[14:15]" % (bq, bq + 1, bq, bq + 1))
            A.e("v_pk_fma_f32 v[%d:%d], v[%d:%d], v[16:17], v[%d:%d]" % (bq, bq + 1, aq, aq + 1, bq, bq + 1))
            A.e("v_cvt_pk_bf16_f32 v%d, v%d, v%d" % (X + 8 + t * 2 + h, bq, bq + 1))
        A.e("buffer_store_dwordx2 v[%d:%d], v18, s[%d:%d], s%d offen offset:%d" % (X + 8 + t * 2, X + 9 + t * 2, P_SOUT, P_SOUT + 3, S_T0, t * 32))
    A.stamp()
    A.stamp(True)
    A.stamp_flush(S_W, S_WAVE, 4, WS_STAMP + 0x40000)
    A.e("s_branch K2_END")

    A.label("K2_RED")
    A.vm = []
    P_HEAD = S_T3
    A.e("s_and_b32 s%d, s2, 7" % S_T0)
    A.e("s_lshl_b32 s%d, s%d, 1" % (P_HEAD, S_T0))
    A.e("s_add_u32 s%d, s%d, s%d" % (P_HEAD, P_HEAD, S_IDX))
    A.e("s_lshl_b32 s%d, s%d, 17" % (S_T0, P_HEAD))
    A.e("s_lshl_b32 s%d, s%d, 10" % (S_T1, S_WAVE))
    A.e("s_add_u32 s%d, s%d, s%d" % (S_T0, S_T0, S_T1))
    A.e("s_add_u32 s%d, s%d, %d" % (S_T0, S_T0, WS_KVP))
    for p in range(32):
        A.e("s_add_u32 s%d, s%d, %d" % (S_T1, S_T0, p * 4096))
        A.vmem("buffer_load_dwordx4 v[%d:%d], v%d, s[%d:%d], s%d offen" % (32 + p * 4, 35 + p * 4, Q_L16, S_W, S_W + 3, S_T1), ("p", p))
    A.wait_vm(("p", 1))
    A.e("v_pk_add_f32 v[32:33], v[32:33], v[36:37]")
    A.e("v_pk_add_f32 v[34:35], v[34:35], v[38:39]")
    for p in range(2, 32):
        A.wait_vm(("p", p))
        A.e("v_pk_add_f32 v[32:33], v[32:33], v[%d:%d]" % (32 + p * 4, 33 + p * 4))
        A.e("v_pk_add_f32 v[34:35], v[34:35], v[%d:%d]" % (34 + p * 4, 35 + p * 4))
    A.e("v_cvt_pk_bf16_f32 v20, v32, v33")
    A.e("v_cvt_pk_bf16_f32 v21, v34, v35")
    A.e("s_lshl_b32 s%d, s%d, 11" % (S_T0, P_HEAD))
    A.e("s_and_b32 s%d, s%d, 1" % (S_T1, S_WAVE))
    A.e("s_lshl_b32 s%d, s%d, 10" % (S_T1, S_T1))
    A.e("s_add_u32 s%d, s%d, s%d" % (S_T0, S_T0, S_T1))
    A.e("s_lshr_b32 s%d, s%d, 1" % (S_T1, S_WAVE))
    A.e("s_lshl_b32 s%d, s%d, 3" % (S_T1, S_T1))
    A.e("s_add_u32 s%d, s%d, s%d" % (S_T0, S_T0, S_T1))
    A.e("s_add_u32 s%d, s%d, %d" % (S_T0, S_T0, WS_KVF))
    A.e("buffer_store_dwordx2 v[20:21], v%d, s[%d:%d], s%d offen sc1" % (Q_L16, S_W, S_W + 3, S_T0))
    A.e("s_waitcnt vmcnt(0)")
    A.e("s_barrier")
    A.e("v_mov_b32 v22, 0x7ffffff0")
    A.e("v_cmp_eq_u32 vcc, 0, v0")
    A.e("s_nop 1")
    A.e("v_cndmask_b32 v22, v22, 0, vcc")
    A.e("v_mov_b32 v23, 1")
    A.e("buffer_atomic_add v23, v22, s[%d:%d], 0 offen sc1" % (P_SDBG, P_SDBG + 3))
    A.label("K2_END")
    A.e("s_endpgm")

def main():
    out = []
    hdr = open("cdna_kernels/%s.s.ref" % NAME).read().splitlines()
    for l in hdr:
        if l.startswith(";") and "@launch" not in l:
            out.append(l)
        elif not l.startswith(";"):
            break
    out.append("; @launch kernel=k1_kernel grid=(256,1,1) block=(512,1,1) lds=%d" % K1_LDS)
    out.append("; @launch kernel=k2_kernel grid=(240,1,1) block=(256,1,1) lds=131072")
    out.append('.amdgcn_target "amdgcn-amd-amdhsa--gfx950"')
    out.append(".text")
    A = Asm()
    A.lines.append(".globl k1_kernel\n.p2align 8\n.type k1_kernel,@function")
    gen_k1(A)
    A.lines.append(".globl k2_kernel\n.p2align 8\n.type k2_kernel,@function")
    gen_k2(A)
    out += A.lines
    out.append('.section .rodata,"a"')
    for nm, nv in (("k1_kernel", 212), ("k2_kernel", 256)):
        out.append(".p2align 6")
        out.append(".amdhsa_kernel %s" % nm)
        out.append("  .amdhsa_next_free_vgpr %d" % nv)
        out.append("  .amdhsa_next_free_sgpr 102")
        out.append("  .amdhsa_accum_offset %d" % nv)
        out.append("  .amdhsa_group_segment_fixed_size 0")
        out.append("  .amdhsa_kernarg_size 88")
        out.append("  .amdhsa_user_sgpr_count 2")
        out.append("  .amdhsa_user_sgpr_kernarg_segment_ptr 1")
        out.append("  .amdhsa_system_sgpr_workgroup_id_x 1")
        out.append(".end_amdhsa_kernel")
    dst = sys.argv[1] if len(sys.argv) > 1 else "cdna_kernels/%s.s" % NAME
    open(dst, "w").write("\n".join(out) + "\n")

main()
```

```python
import sys

NAME = "gated_mix__linear_attn_block__glu_gated_swiglu__prompt"

WS_H    = 0x000000
WS_PQ   = 0x700000
WS_KVP  = 0x900000
WS_KVF  = 0xB00000
WS_G    = 0xB10000
WS_SIZE = 0xB20000

import os
STAMP = os.environ.get("STAMP") == "1"
EXP = os.environ.get("EXP", "pf2chip_cwr_prio2")
DMAFLAGS = os.environ.get("DMAFLAGS", "")
STF = os.environ.get("STF", "")
KNAME = "k1_kernel"
PF2STEP = int(os.environ.get("PF2STEP", "12"))
CW0 = int(os.environ.get("CW0", "3"))
PSW = int(os.environ.get("PSW", "11"))
POLLSLEEP = int(os.environ.get("POLLSLEEP", "16"))
WS_STAMP = 0xC00000
if STAMP:
    WS_SIZE = 0xD00000
class Asm:
    def __init__(self):
        self.lines = []
        self.vm = []
        self.nst = 0
        self.uid = 0
    def stamp(self, real=False):
        if not STAMP: return
        self.e("%s s[%d:%d]" % ("s_memrealtime" if real else "s_memtime", 76 + 2 * self.nst, 77 + 2 * self.nst))
        self.nst += 1
        assert self.nst <= 8
    def stamp_flush(self, srdw, s_wave, nwave, base):
        if not STAMP: return
        self.e("s_waitcnt lgkmcnt(0)")
        self.e("s_mul_i32 s48, s2, %d" % nwave)
        self.e("s_add_u32 s48, s48, s%d" % s_wave)
        self.e("s_lshl_b32 s48, s48, 6")
        self.e("s_add_u32 s48, s48, %d" % base)
        self.e("v_mov_b32 v20, 0")
        self.e("v_mov_b32 v21, s92")
        self.e("buffer_store_dword v21, v20, s[%d:%d], s48 offen offset:56" % (srdw, srdw + 3))
        self.e("v_mov_b32 v21, s100")
        self.e("buffer_store_dword v21, v20, s[%d:%d], s48 offen offset:60" % (srdw, srdw + 3))
        for i in range(self.nst):
            self.e("v_mov_b32 v21, s%d" % (76 + 2 * i))
            self.e("buffer_store_dword v21, v20, s[%d:%d], s48 offen offset:%d" % (srdw, srdw + 3, 4 * i))
        self.nst = 0
    def e(self, s):
        self.lines.append("    " + s)
    def c(self, s):
        self.lines.append("    ; " + s)
    def label(self, l):
        self.lines.append(l + ":")
    def vmem(self, s, tag):
        self.e(s)
        self.vm.append(tag)
    def wait_vm(self, tag, extra=""):
        idx = None
        for i, t in enumerate(self.vm):
            if t == tag:
                idx = i
        if idx is None:
            if extra:
                self.e("s_waitcnt " + extra)
            return
        n = len(self.vm) - 1 - idx
        assert n <= 63, n
        self.e("s_waitcnt vmcnt(%d) %s" % (n, extra))
        self.vm = self.vm[idx + 1:]
    def wait_vm_all(self, extra=""):
        self.e("s_waitcnt vmcnt(0) %s" % extra)
        self.vm = []
    def nop(self, n):
        while n > 0:
            k = min(n, 16)
            self.e("s_nop %d" % (k - 1))
            n -= k

def vr(b, n=1):
    return "v%d" % b if n == 1 else "v[%d:%d]" % (b, b + n - 1)
def ar(b, n=1):
    return "a%d" % b if n == 1 else "a[%d:%d]" % (b, b + n - 1)
def sr(b, n=1):
    return "s%d" % b if n == 1 else "s[%d:%d]" % (b, b + n - 1)

def srd(A, d, base, size):
    A.e("s_mov_b32 s%d, s%d" % (d, base))
    A.e("s_and_b32 s%d, s%d, 0xffff" % (d + 1, base + 1))
    A.e("s_mov_b32 s%d, 0x%x" % (d + 2, size))
    A.e("s_mov_b32 s%d, 0x00020000" % (d + 3))

LOG2E = 0x3fb8aa3b
NLOG2E = 0xbfb8aa3b
EPS = 0x358637bd

WSTG = 20480
XBASE = 4 * WSTG
XSLOT = 16384
K1_LDS = XBASE + 2 * XSLOT
WHI = 2 * WSTG

S_X, S_W, S_GW = 16, 20, 24
S_R = 28
S_CG, S_RB, S_WAVE, S_RH = 48, 49, 50, 51
S_T0, S_T1, S_T2, S_T3 = 52, 53, 54, 55
S_PI, S_TYP = 56, 57
S_R0T = 58
S_GOFF = 59
S_MSK = 60
S_NL2E = 62
S_ONE = 64
S_L2E = 66
S_EPS = 67
S_SOFF = 68
S_STR = 4
S_XO = 73
S_E = 74
S_IDX = 75

V_LANE = 1
V_DOFF = 2
V_XD = 7
V_XA = 9
V_GATE = 11
V_WA = 12
V_T = 24
V_XF = 32
V_WF = 64
V_ACC = 112
V_DUMP = 208

def k1_consts(A):
    A.e("s_mov_b32 s%d, 0xffff0000" % S_MSK)
    A.e("s_mov_b32 s%d, 0x%x" % (S_NL2E, NLOG2E))
    A.e("s_mov_b32 s%d, 0x%x" % (S_NL2E + 1, NLOG2E))
    A.e("s_mov_b32 s%d, 1.0" % S_ONE)
    A.e("s_mov_b32 s%d, 1.0" % (S_ONE + 1))
    A.e("s_mov_b32 s%d, 0x%x" % (S_L2E, LOG2E))
    A.e("s_mov_b32 s%d, 0x%x" % (S_EPS, EPS))

def unpack2(A, dlo, dhi, src):
    A.e("v_lshlrev_b32 v%d, 16, v%d" % (dlo, src))
    A.e("v_and_b32 v%d, s%d, v%d" % (dhi, S_MSK, src))

def emit_raddr(A, vdst, kind, t):
    t0, t1, t2, t3 = V_T, V_T + 1, V_T + 2, V_T + 3
    ts = str(t)
    A.e("v_lshrrev_b32 v%d, 4, v%d" % (t0, V_LANE))
    A.e("v_lshrrev_b32 v%d, 2, v%d" % (t1, V_LANE))
    A.e("v_and_b32 v%d, 3, v%d" % (t1, t1))
    A.e("v_and_b32 v%d, 3, v%d" % (t2, V_LANE))
    A.e("v_lshlrev_b32 v%d, 3, v%d" % (vdst, t2))
    A.e("v_and_b32 v%d, 1, v%d" % (t2, t0))
    if kind == "T2":
        A.e("v_lshrrev_b32 v%d, 1, v%d" % (t3, t0))
        A.e("v_lshl_add_u32 v%d, v%d, 10, v%d" % (vdst, t3, vdst))
        A.e("v_lshl_add_u32 v%d, v%d, 9, v%d" % (vdst, t2, vdst))
        A.e("v_lshl_add_u32 v%d, v%d, 6, v%d" % (vdst, t1, vdst))
        A.e("v_xor_b32 v%d, %s, v%d" % (t3, ts, t2))
        A.e("v_lshl_add_u32 v%d, v%d, 5, v%d" % (vdst, t3, vdst))
    elif kind == "T4":
        A.e("v_lshl_add_u32 v%d, v%d, 10, v%d" % (vdst, t0, vdst))
        A.e("v_lshl_add_u32 v%d, v%d, 7, v%d" % (vdst, t1, vdst))
        A.e("v_lshrrev_b32 v%d, 1, v%d" % (t3, t1))
        A.e("v_lshl_or_b32 v%d, v%d, 1, v%d" % (t3, t2, t3))
        A.e("v_xor_b32 v%d, %s, v%d" % (t3, ts, t3))
        A.e("v_lshl_add_u32 v%d, v%d, 5, v%d" % (vdst, t3, vdst))
    elif kind == "T4K2":
        A.e("v_lshrrev_b32 v%d, 1, v%d" % (t3, t0))
        A.e("v_lshl_add_u32 v%d, v%d, 10, v%d" % (vdst, t3, vdst))
        A.e("v_lshl_add_u32 v%d, v%d, 9, v%d" % (vdst, t2, vdst))
        A.e("v_lshl_add_u32 v%d, v%d, 7, v%d" % (vdst, t1, vdst))
        A.e("v_lshrrev_b32 v%d, 1, v%d" % (t3, t1))
        A.e("v_lshl_or_b32 v%d, v%d, 1, v%d" % (t3, t2, t3))
        A.e("v_xor_b32 v%d, %s, v%d" % (t3, ts, t3))
        A.e("v_lshl_add_u32 v%d, v%d, 5, v%d" % (vdst, t3, vdst))
    else:
        raise ValueError(kind)

def emit_phi4(A, src, dst, tmp):
    a = tmp; b = tmp + 4
    for h in range(2):
        A.e("v_pk_mul_f32 v[%d:%d], v[%d:%d], s[%d:%d]" % (b + 2 * h, b + 2 * h + 1, src + 2 * h, src + 2 * h + 1, S_L2E2, S_L2E2 + 1))
    for i in range(4):
        A.e("v_exp_f32_e64 v%d, v%d clamp" % (b + i, b + i))
    for i in range(4):
        A.e("v_max_f32 v%d, 0, v%d" % (a + i, src + i))
    for h in range(2):
        A.e("v_pk_add_f32 v[%d:%d], v[%d:%d], v[%d:%d]" % (a + 2 * h, a + 2 * h + 1, a + 2 * h, a + 2 * h + 1, b + 2 * h, b + 2 * h + 1))
    for h in range(2):
        A.e("v_pk_add_f32 v[%d:%d], v[%d:%d], s[%d:%d]" % (a + 2 * h, a + 2 * h + 1, a + 2 * h, a + 2 * h + 1, S_EPS2, S_EPS2 + 1))
    for h in range(2):
        A.e("v_cvt_pk_bf16_f32 v%d, v%d, v%d" % (dst + h, a + 2 * h, a + 2 * h + 1))

def emit_swiglu4(A, g, u, dst, tmp):
    E = tmp
    for h in range(2):
        A.e("v_pk_mul_f32 v[%d:%d], v[%d:%d], s[%d:%d]" % (E + 2 * h, E + 2 * h + 1, g + 2 * h, g + 2 * h + 1, S_NL2E, S_NL2E + 1))
    for i in range(4):
        A.e("v_exp_f32 v%d, v%d" % (E + i, E + i))
    for h in range(2):
        A.e("v_pk_mul_f32 v[%d:%d], v[%d:%d], v[%d:%d]" % (g + 2 * h, g + 2 * h + 1, g + 2 * h, g + 2 * h + 1, u + 2 * h, u + 2 * h + 1))
    for h in range(2):
        A.e("v_pk_add_f32 v[%d:%d], v[%d:%d], s[%d:%d]" % (E + 2 * h, E + 2 * h + 1, E + 2 * h, E + 2 * h + 1, S_ONE, S_ONE + 1))
    for i in range(4):
        A.e("v_rcp_f32 v%d, v%d" % (E + i, E + i))
    A.e("s_nop 0")
    for h in range(2):
        A.e("v_pk_mul_f32 v[%d:%d], v[%d:%d], v[%d:%d]" % (g + 2 * h, g + 2 * h + 1, g + 2 * h, g + 2 * h + 1, E + 2 * h, E + 2 * h + 1))
    for h in range(2):
        A.e("v_cvt_pk_bf16_f32 v%d, v%d, v%d" % (dst + h, g + 2 * h, g + 2 * h + 1))

S_L2E2 = 10
S_EPS2 = 12

def sel_srd(A, d, lo_a, lo_b, size_a, size_b):
    A.e("s_cselect_b32 s%d, s%d, s%d" % (d, lo_a, lo_b))
    A.e("s_cselect_b32 s%d, s%d, s%d" % (d + 1, lo_a + 1, lo_b + 1))
    if size_a == size_b:
        A.e("s_mov_b32 s%d, 0x%x" % (d + 2, size_a))
    else:
        A.e("s_mov_b32 s%d, 0x%x" % (S_T3, size_a))
        A.e("s_cselect_b32 s%d, s%d, 0x%x" % (d + 2, S_T3, size_b))
    A.e("s_and_b32 s%d, s%d, 0xffff" % (d + 1, d + 1))
    A.e("s_mov_b32 s%d, 0x00020000" % (d + 3))

SZQ = 448 * 2688
SZG = 448 * 3584

def gen_k1(A):
    A.label(KNAME)
    if STAMP:
        A.e("s_memrealtime s[92:93]")
    A.e("s_cmp_ge_u32 s2, 256")
    A.e("s_cbranch_scc1 K1_END")
    A.e("s_load_dwordx4 s[4:7], s[0:1], 0")
    A.e("s_load_dwordx4 s[8:11], s[0:1], 32")
    A.e("s_load_dwordx2 s[12:13], s[0:1], 56")
    A.e("s_load_dwordx2 s[14:15], s[0:1], 80")
    A.e("s_load_dwordx2 s[96:97], s[0:1], 48")
    A.e("s_load_dwordx2 s[98:99], s[0:1], 16")
    if "nocw" not in EXP:
        A.e("s_getpc_b64 s[100:101]")
        A.label("K1_PC")
        A.e("s_sub_u32 s100, s100, K1_PC-%s" % KNAME)
        A.e("s_subb_u32 s101, s101, 0")
        A.e("v_lshlrev_b32 v%d, 7, v0" % V_T)
        A.e("v_min_u32 v%d, K2_END-%s, v%d" % (V_T, KNAME, V_T))
        A.vmem("global_load_dword v%d, v%d, s[100:101]" % (V_DUMP + 3, V_T), "cw")
    A.e("v_and_b32 v%d, 63, v0" % V_LANE)
    A.e("v_lshrrev_b32 v%d, 6, v0" % V_T)
    A.e("s_nop 0")
    A.e("v_readfirstlane_b32 s%d, v%d" % (S_WAVE, V_T))
    k1_consts(A)
    A.e("s_and_b32 s%d, s2, 7" % S_T0)
    A.e("s_lshr_b32 s%d, s2, 3" % S_IDX)
    A.e("s_and_b32 s%d, s%d, 3" % (S_T2, S_T0))
    A.e("s_lshl_b32 s%d, s%d, 2" % (S_T2, S_T2))
    A.e("s_and_b32 s%d, s%d, 3" % (S_T3, S_IDX))
    A.e("s_add_u32 s%d, s%d, s%d" % (S_CG, S_T2, S_T3))
    A.e("s_lshr_b32 s%d, s%d, 2" % (S_T2, S_T0))
    A.e("s_lshl_b32 s%d, s%d, 3" % (S_T2, S_T2))
    A.e("s_lshr_b32 s%d, s%d, 2" % (S_E, S_IDX))
    A.e("s_add_u32 s%d, s%d, s%d" % (S_RB, S_T2, S_E))
    A.e("s_and_b32 s%d, s%d, 1" % (S_RH, S_WAVE))
    A.e("s_and_b32 s%d, s%d, 1" % (S_TYP, S_CG))
    A.e("s_lshr_b32 s%d, s%d, 1" % (S_PI, S_CG))
    A.e("s_lshl_b32 s%d, s%d, 3" % (S_R0T, S_RB))
    A.e("s_lshl_b32 s%d, s%d, 2" % (S_T0, S_RH))
    A.e("s_add_u32 s%d, s%d, s%d" % (S_R0T, S_R0T, S_T0))
    A.e("s_waitcnt lgkmcnt(0)")
    if "pf0" in EXP:
        A.e("s_cmp_ge_u32 s%d, 4" % S_WAVE)
        A.e("s_cbranch_scc1 K1_NOPF0")
        A.e("s_and_b32 s%d, s%d, 3" % (S_T0, S_WAVE))
        A.e("s_cmp_eq_u32 s%d, 0" % S_T0); A.e("s_cselect_b64 s[%d:%d], s[4:5], s[6:7]" % (S_R, S_R + 1))
        A.e("s_cselect_b32 s%d, 56, 37" % S_T1)
        A.e("s_mov_b32 s%d, %d" % (S_T3, 2048 * 896 - 4)); A.e("s_cselect_b32 s%d, s%d, %d" % (S_T2, S_T3, SZQ - 4))
        A.e("s_cmp_eq_u32 s%d, 2" % S_T0); A.e("s_cselect_b64 s[%d:%d], s[8:9], s[%d:%d]" % (S_R, S_R + 1, S_R, S_R + 1))
        A.e("s_cmp_eq_u32 s%d, 3" % S_T0); A.e("s_cselect_b64 s[%d:%d], s[10:11], s[%d:%d]" % (S_R, S_R + 1, S_R, S_R + 1))
        A.e("s_cmp_ge_u32 s%d, 2" % S_T0); A.e("s_cselect_b32 s%d, 49, s%d" % (S_T1, S_T1))
        A.e("s_mov_b32 s%d, %d" % (S_T3, SZG - 4)); A.e("s_cselect_b32 s%d, s%d, s%d" % (S_T2, S_T3, S_T2))
        A.e("s_mul_i32 s%d, s2, s%d" % (S_T3, S_T1))
        A.e("v_min_u32 v%d, s%d, v%d" % (V_T, S_T1, V_LANE))
        A.e("v_add_u32 v%d, s%d, v%d" % (V_T, S_T3, V_T))
        A.e("v_lshlrev_b32 v%d, 7, v%d" % (V_T, V_T))
        A.e("v_min_u32 v%d, s%d, v%d" % (V_T, S_T2, V_T))
        A.e("global_load_dword v%d, v%d, s[%d:%d]" % (V_DUMP, V_T, S_R, S_R + 1))
        A.label("K1_NOPF0")
    srd(A, S_X, 4, 2048 * 896)
    srd(A, S_W, 14, WS_SIZE)
    srd(A, S_GW, 12, 896)
    A.e("s_lshl_b32 s%d, s%d, 7" % (S_T0, S_RB))
    A.e("s_lshl_b32 s%d, s%d, 3" % (S_T1, S_CG))
    A.e("s_add_u32 s%d, s%d, s%d" % (S_T0, S_T0, S_T1))
    A.e("s_add_u32 s%d, s%d, s%d" % (S_T0, S_T0, S_WAVE))
    A.e("s_mul_i32 s%d, s%d, 896" % (S_T1, S_T0))
    A.e("v_lshlrev_b32 v%d, 4, v%d" % (V_T, V_LANE))
    A.e("v_mov_b32 v%d, 0x7ffffff0" % (V_T + 1))
    A.e("v_cmp_gt_u32 vcc, 56, v%d" % V_LANE)
    A.e("s_nop 1")
    A.e("v_cndmask_b32 v%d, v%d, v%d, vcc" % (V_T, V_T + 1, V_T))
    A.vmem("buffer_load_dwordx4 v[96:99], v%d, s[%d:%d], s%d offen" % (V_T, S_X, S_X + 3, S_T1), "gate")
    A.vmem("buffer_load_dwordx4 v[100:103], v%d, s[%d:%d], 0 offen" % (V_T, S_GW, S_GW + 3), "gate")
    A.e("s_lshl_b32 s%d, s%d, 2" % (S_GOFF, S_T0))
    A.e("s_cmp_eq_u32 s%d, 0" % S_TYP)
    sel_srd(A, S_R + 0, 6, 8, SZQ, SZG)
    A.e("s_cmp_eq_u32 s%d, 0" % S_TYP)
    sel_srd(A, S_R + 4, 6, 8, SZQ, SZG)
    A.e("s_cmp_eq_u32 s%d, 0" % S_TYP)
    sel_srd(A, S_R + 8, 6, 10, SZQ, SZG)
    A.e("s_cmp_eq_u32 s%d, 0" % S_TYP)
    sel_srd(A, S_R + 12, 8, 10, SZG, SZG)
    A.e("s_lshr_b32 s%d, s%d, 1" % (S_T0, S_WAVE))
    A.e("s_and_b32 s%d, s%d, 1" % (S_T0, S_T0))
    A.e("s_xor_b32 s%d, s%d, 1" % (S_T0, S_T0))
    A.e("s_and_b32 s%d, s%d, s%d" % (S_T0, S_T0, S_TYP))
    A.e("s_cmp_eq_u32 s%d, 1" % S_T0)
    sel_srd(A, S_R + 16, 8, 10, SZG, SZG)
    t0, t1, t2 = V_T, V_T + 1, V_T + 2
    A.e("v_and_b32 v%d, 15, v%d" % (t0, V_LANE))
    A.e("v_lshrrev_b32 v%d, 1, v%d" % (t1, t0))
    A.e("v_lshrrev_b32 v%d, 4, v%d" % (t2, V_LANE))
    A.e("v_xor_b32 v%d, v%d, v%d" % (t1, t1, t2))
    A.e("s_lshl_b32 s%d, s%d, 6" % (S_T0, S_RH))
    A.e("v_add_u32 v%d, s%d, v%d" % (t0, S_T0, t0))
    A.e("v_lshlrev_b32 v%d, 7, v%d" % (t0, t0))
    A.e("v_lshl_add_u32 v%d, v%d, 4, v%d" % (t0, t1, t0))
    A.e("v_add_u32 v%d, %d, v%d" % (V_XA, XBASE, t0))
    A.e("v_xor_b32 v%d, 64, v%d" % (V_XA + 1, V_XA))
    A.e("s_cmp_ge_u32 s%d, 4" % S_WAVE)
    A.e("s_cbranch_scc1 K1_DMAW")
    A.e("s_cmp_eq_u32 s%d, 0" % S_TYP)
    A.e("s_cbranch_scc1 K1_QKV6")
    base_vm = list(A.vm)
    for var in ("FFN6", "QKV6"):
        A.vm = list(base_vm)
        A.label("K1_" + var)
        gen_k1_var(A, var)
        A.e("s_branch K1_END")
    A.vm = list(base_vm)
    A.label("K1_DMAW")
    k1_dma_setup(A)
    gen_k1_var(A, "FFN4")
    A.label("K1_END")
    A.e("s_endpgm")

def k1_dma_setup(A):
    t0, t1, t2, t3 = V_T, V_T + 1, V_T + 2, V_T + 3
    SJ = S_T2
    A.e("s_and_b32 s%d, s%d, 3" % (SJ, S_WAVE))
    A.e("v_lshrrev_b32 v%d, 3, v%d" % (t0, V_LANE))
    A.e("v_lshrrev_b32 v%d, 4, v%d" % (t1, V_LANE))
    A.e("v_and_b32 v%d, 1, v%d" % (t1, t1))
    A.e("s_and_b32 s%d, s%d, 1" % (S_T3, SJ))
    A.e("s_lshl_b32 s%d, s%d, 1" % (S_T3, S_T3))
    A.e("v_or_b32 v%d, s%d, v%d" % (t1, S_T3, t1))
    A.e("v_lshrrev_b32 v%d, 1, v%d" % (t2, V_LANE))
    A.e("v_and_b32 v%d, 3, v%d" % (t2, t2))
    A.e("v_xor_b32 v%d, v%d, v%d" % (t1, t1, t2))
    A.e("v_and_b32 v%d, 1, v%d" % (t2, V_LANE))
    A.e("v_lshlrev_b32 v%d, 4, v%d" % (t2, t2))
    A.e("s_lshl_b32 s%d, s%d, 3" % (S_T3, SJ))
    A.e("v_add_u32 v%d, s%d, v%d" % (t0, S_T3, t0))
    A.e("v_lshl_add_u32 v%d, v%d, 5, v%d" % (t3, t1, t2))
    A.e("v_lshrrev_b32 v%d, 1, v%d" % (t1, t1))
    A.e("v_lshlrev_b32 v%d, 3, v%d" % (t1, t1))
    A.e("v_sub_u32 v%d, v%d, v%d" % (t1, t3, t1))
    A.e("v_mul_u32_u24 v%d, 2688, v%d" % (t2, t0))
    A.e("v_add_u32 v%d, v%d, v%d" % (t1, t1, t2))
    A.e("v_mul_u32_u24 v%d, 3584, v%d" % (t2, t0))
    A.e("v_add_u32 v%d, v%d, v%d" % (t3, t3, t2))
    A.e("s_mul_i32 s%d, s%d, 112" % (S_T0, S_PI))
    A.e("s_mul_i32 s%d, s%d, 320" % (S_T1, S_PI))
    A.e("s_add_u32 s%d, s%d, 1024" % (S_T1, S_T1))
    A.e("s_cmp_eq_u32 s%d, 0" % S_TYP)
    A.e("s_cselect_b64 vcc, -1, 0")
    for r in range(3):
        A.e("v_add_u32 v%d, s%d, v%d" % (V_DOFF + r, S_T0, t1))
        A.e("v_add_u32 v%d, %d, v%d" % (V_DOFF + r, r * 896, V_DOFF + r))
        A.e("v_add_u32 v%d, s%d, v%d" % (t2, S_T1, t3))
        if r == 1:
            A.e("v_add_u32 v%d, 128, v%d" % (t2, t2))
        A.e("v_cndmask_b32 v%d, v%d, v%d, vcc" % (V_DOFF + r, t2, V_DOFF + r))
    A.e("s_lshl_b32 s%d, s%d, 7" % (S_T0, S_PI))
    A.e("v_add_u32 v%d, s%d, v%d" % (V_DOFF + 3, S_T0, t3))
    A.e("v_add_u32 v%d, s%d, v%d" % (t2, S_T1, t3))
    A.e("v_add_u32 v%d, 128, v%d" % (t2, t2))
    A.e("v_cndmask_b32 v%d, v%d, v%d, vcc" % (V_DOFF + 3, t2, V_DOFF + 3))
    A.e("v_add_u32 v%d, s%d, v%d" % (V_DOFF + 4, S_T0, t3))
    A.e("v_lshrrev_b32 v%d, 2, v%d" % (t0, V_LANE))
    A.e("s_and_b32 s%d, s%d, 1" % (S_T3, SJ))
    A.e("s_lshl_b32 s%d, s%d, 4" % (S_T3, S_T3))
    A.e("v_add_u32 v%d, s%d, v%d" % (t0, S_T3, t0))
    A.e("v_mul_u32_u24 v%d, 3584, v%d" % (t0, t0))
    A.e("v_lshrrev_b32 v%d, 1, v%d" % (t1, V_LANE))
    A.e("v_lshrrev_b32 v%d, 5, v%d" % (t2, V_LANE))
    A.e("v_xor_b32 v%d, v%d, v%d" % (t1, t1, t2))
    A.e("v_and_b32 v%d, 1, v%d" % (t1, t1))
    A.e("v_lshl_add_u32 v%d, v%d, 5, v%d" % (t0, t1, t0))
    A.e("v_and_b32 v%d, 1, v%d" % (t1, V_LANE))
    A.e("v_lshl_add_u32 v%d, v%d, 4, v%d" % (t0, t1, t0))
    A.e("v_add_u32 v%d, s%d, v%d" % (t0, S_T1, t0))
    A.e("v_add_u32 v%d, 256, v%d" % (t0, t0))
    A.e("v_cndmask_b32 v%d, v%d, v%d, vcc" % (V_DOFF + 4, t0, V_DOFF + 4))
    A.e("s_cmp_eq_u32 s%d, 0" % S_TYP)
    A.e("s_mov_b32 s%d, %d" % (S_T3, 32 * 2688))
    A.e("s_cselect_b32 s%d, s%d, %d" % (S_STR, S_T3, 32 * 3584))
    for r in range(5):
        A.e("s_mov_b32 s%d, 0" % (S_SOFF + r))
    A.e("v_lshrrev_b32 v%d, 3, v%d" % (t0, V_LANE))
    A.e("v_lshrrev_b32 v%d, 4, v%d" % (t1, V_LANE))
    A.e("v_and_b32 v%d, 7, v%d" % (t2, V_LANE))
    A.e("v_xor_b32 v%d, v%d, v%d" % (t1, t1, t2))
    A.e("v_mul_u32_u24 v%d, 896, v%d" % (t0, t0))
    A.e("v_lshl_add_u32 v%d, v%d, 4, v%d" % (V_XD, t1, t0))
    A.e("v_xor_b32 v%d, 64, v%d" % (V_XD + 1, V_XD))
    A.e("s_lshl_b32 s%d, s%d, 7" % (S_T0, S_RB))
    A.e("s_lshl_b32 s%d, s%d, 5" % (S_T1, SJ))
    A.e("s_add_u32 s%d, s%d, s%d" % (S_T0, S_T0, S_T1))
    A.e("s_mul_i32 s%d, s%d, 896" % (S_XO, S_T0))
    A.e("s_lshl_b32 s%d, s%d, 10" % (S_STR + 1, SJ))
    A.e("s_lshl_b32 s%d, s%d, 12" % (S_STR + 2, SJ))
    A.e("s_add_u32 s%d, s%d, %d" % (S_STR + 2, S_STR + 2, XBASE))

def k1_touch_setup(A):
    t0, t1, t2, t3 = V_T, V_T + 1, V_T + 2, V_T + 3
    A.e("v_lshrrev_b32 v%d, 3, v%d" % (t0, V_LANE))
    A.e("v_and_b32 v%d, 7, v%d" % (t1, V_LANE))
    A.e("v_mov_b32 v%d, 0x7ffffff0" % (V_T + 4))
    A.e("s_cmp_eq_u32 s%d, 3" % S_WAVE)
    A.e("s_cbranch_scc1 K1_TS_X%d" % A.uid)
    A.e("s_cmp_eq_u32 s%d, 0" % S_TYP)
    A.e("s_cbranch_scc0 K1_TS_F%d" % A.uid)
    A.e("s_cmp_eq_u32 s%d, 0" % S_WAVE)
    A.e("s_cbranch_scc0 K1_TS_PG%d" % A.uid)
    srd(A, S_R, 6, SZQ)
    A.e("v_lshrrev_b32 v%d, 1, v%d" % (t2, t1))
    A.e("v_mul_u32_u24 v%d, 896, v%d" % (t2, t2))
    A.e("v_and_b32 v%d, 1, v%d" % (t3, t1))
    A.e("v_mul_u32_u24 v%d, 116, v%d" % (t3, t3))
    A.e("v_mul_u32_u24 v%d, 2688, v%d" % (t0, t0))
    A.e("v_add3_u32 v%d, v%d, v%d, v%d" % (V_DOFF, t0, t2, t3))
    A.e("v_cmp_gt_u32 vcc, 6, v%d" % t1)
    A.e("s_mul_i32 s%d, s%d, 112" % (S_SOFF, S_PI))
    A.e("s_mul_i32 s%d, s%d, %d" % (S_T0, S_E, 8 * 2688))
    A.e("s_add_u32 s%d, s%d, s%d" % (S_SOFF, S_SOFF, S_T0))
    A.e("s_mov_b32 s%d, %d" % (S_STR, 64 * 2688))
    A.e("s_branch K1_TS_END%d" % A.uid)
    A.label("K1_TS_PG%d" % A.uid)
    A.e("s_cmp_eq_u32 s%d, 1" % S_WAVE)
    sel_srd(A, S_R, 8, 10, SZG, SZG)
    A.e("v_mul_u32_u24 v%d, 3584, v%d" % (V_DOFF, t0))
    if "t64" in EXP:
        A.e("v_lshl_add_u32 v%d, v%d, 6, v%d" % (V_DOFF, t1, V_DOFF))
        A.e("v_cmp_gt_u32 vcc, 2, v%d" % t1)
    else:
        A.e("v_cmp_gt_u32 vcc, 1, v%d" % t1)
    A.e("s_lshl_b32 s%d, s%d, 7" % (S_SOFF, S_PI))
    A.e("s_mul_i32 s%d, s%d, %d" % (S_T0, S_E, 8 * 3584))
    A.e("s_add_u32 s%d, s%d, s%d" % (S_SOFF, S_SOFF, S_T0))
    A.e("s_mov_b32 s%d, %d" % (S_STR, 64 * 3584))
    A.e("s_branch K1_TS_END%d" % A.uid)
    A.label("K1_TS_F%d" % A.uid)
    A.e("s_cmp_eq_u32 s%d, 0" % S_WAVE)
    sel_srd(A, S_R, 8, 10, SZG, SZG)
    A.e("v_lshlrev_b32 v%d, %d, v%d" % (t2, 6 if "t64" in EXP else 7, t1))
    A.e("v_min_u32 v%d, 316, v%d" % (t2, t2))
    A.e("v_mul_u32_u24 v%d, 3584, v%d" % (t0, t0))
    A.e("v_add_u32 v%d, v%d, v%d" % (V_DOFF, t0, t2))
    A.e("s_cmp_lt_u32 s%d, 2" % S_WAVE)
    A.e("s_cselect_b32 s%d, %d, 0" % (S_T0, 6 if "t64" in EXP else 4))
    A.e("v_cmp_gt_u32 vcc, s%d, v%d" % (S_T0, t1))
    A.e("s_mul_i32 s%d, s%d, 320" % (S_SOFF, S_PI))
    A.e("s_add_u32 s%d, s%d, 1024" % (S_SOFF, S_SOFF))
    A.e("s_mul_i32 s%d, s%d, %d" % (S_T0, S_E, 8 * 3584))
    A.e("s_add_u32 s%d, s%d, s%d" % (S_SOFF, S_SOFF, S_T0))
    A.e("s_mov_b32 s%d, %d" % (S_STR, 64 * 3584))
    A.e("s_branch K1_TS_END%d" % A.uid)
    A.label("K1_TS_X%d" % A.uid)
    srd(A, S_R, 4, 2048 * 896)
    if "t64" in EXP:
        A.e("v_lshrrev_b32 v%d, 1, v%d" % (t2, V_LANE))
        A.e("v_mul_u32_u24 v%d, 896, v%d" % (V_DOFF, t2))
        A.e("v_and_b32 v%d, 1, v%d" % (t2, V_LANE))
        A.e("v_lshl_add_u32 v%d, v%d, 6, v%d" % (V_DOFF, t2, V_DOFF))
        A.e("v_cmp_gt_u32 vcc, 64, v%d" % V_LANE)
    else:
        A.e("v_mul_u32_u24 v%d, 896, v%d" % (V_DOFF, V_LANE))
        A.e("v_cmp_gt_u32 vcc, 32, v%d" % V_LANE)
    A.e("s_lshl_b32 s%d, s%d, 7" % (S_T0, S_RB))
    A.e("s_and_b32 s%d, s%d, 3" % (S_T1, S_IDX))
    A.e("s_lshl_b32 s%d, s%d, 5" % (S_T1, S_T1))
    A.e("s_add_u32 s%d, s%d, s%d" % (S_T0, S_T0, S_T1))
    A.e("s_mul_i32 s%d, s%d, 896" % (S_SOFF, S_T0))
    A.e("s_mov_b32 s%d, 128" % S_STR)
    A.label("K1_TS_END%d" % A.uid)
    A.e("s_nop 1")
    A.e("v_cndmask_b32 v%d, v%d, v%d, vcc" % (V_DOFF, V_T + 4, V_DOFF))
    A.uid += 1

def k1_cwr_setup(A):
    T = V_T
    A.e("s_cmp_eq_u32 s%d, 0" % S_WAVE); A.e("s_cselect_b32 s%d, s4, s6" % S_T1); A.e("s_cselect_b32 s%d, s5, s7" % S_T2)
    A.e("s_cmp_eq_u32 s%d, 2" % S_WAVE); A.e("s_cselect_b32 s%d, s8, s%d" % (S_T1, S_T1)); A.e("s_cselect_b32 s%d, s9, s%d" % (S_T2, S_T2))
    A.e("s_cmp_eq_u32 s%d, 3" % S_WAVE); A.e("s_cselect_b32 s%d, s10, s%d" % (S_T1, S_T1)); A.e("s_cselect_b32 s%d, s11, s%d" % (S_T2, S_T2))
    A.e("s_mov_b32 s%d, s%d" % (S_R, S_T1))
    A.e("s_and_b32 s%d, s%d, 0xffff" % (S_R + 1, S_T2))
    A.e("s_mov_b32 s%d, %d" % (S_T3, SZQ))
    A.e("s_cmp_eq_u32 s%d, 1" % S_WAVE); A.e("s_cselect_b32 s%d, s%d, %d" % (S_R + 2, S_T3, SZG))
    A.e("s_mov_b32 s%d, %d" % (S_T3, 2048 * 896))
    A.e("s_cmp_eq_u32 s%d, 0" % S_WAVE); A.e("s_cselect_b32 s%d, s%d, s%d" % (S_R + 2, S_T3, S_R + 2))
    A.e("s_mov_b32 s%d, 0x00020000" % (S_R + 3))
    A.e("s_mov_b32 s%d, 7" % S_T3)
    A.e("s_cmp_eq_u32 s%d, 1" % S_WAVE); A.e("s_cselect_b32 s%d, 6, s%d" % (S_T3, S_T3))
    A.e("s_cmp_eq_u32 s%d, 0" % S_WAVE); A.e("s_cselect_b32 s%d, 8, s%d" % (S_T3, S_T3))
    A.e("s_mul_i32 s%d, s2, s%d" % (S_T0, S_T3))
    A.e("s_mul_i32 s%d, s2, 21" % S_T1)
    A.e("s_lshr_b32 s%d, s%d, 2" % (S_T1, S_T1))
    A.e("s_cmp_eq_u32 s%d, 1" % S_WAVE); A.e("s_cselect_b32 s%d, s%d, s%d" % (S_T0, S_T1, S_T0))
    A.e("s_mov_b32 s%d, 128" % S_T1)
    A.e("s_cmp_eq_u32 s%d, 0" % S_WAVE); A.e("s_cselect_b32 s%d, 896, s%d" % (S_T1, S_T1))
    A.e("v_add_u32 v%d, s%d, v%d" % (T, S_T0, V_LANE))
    A.e("v_mul_lo_u32 v%d, v%d, s%d" % (T, T, S_T1))
    A.e("v_mov_b32 v%d, 0x7ffffff0" % (T + 1))
    A.e("v_cmp_gt_u32 vcc, s%d, v%d" % (S_T3, V_LANE))
    A.e("s_nop 1")
    A.e("v_cndmask_b32 v%d, v%d, v%d, vcc" % (V_DOFF, T + 1, T))
    A.e("s_mov_b32 s%d, %d" % (S_T3, 64 * 3584))
    A.e("s_mov_b32 s%d, %d" % (S_T1, 64 * 2688))
    A.e("s_cmp_eq_u32 s%d, 1" % S_WAVE); A.e("s_cselect_b32 s%d, s%d, s%d" % (S_T3, S_T1, S_T3))
    A.e("s_cmp_eq_u32 s%d, 0" % S_WAVE); A.e("s_cselect_b32 s%d, 128, s%d" % (S_STR, S_T3))
    A.e("s_mov_b32 s%d, 0" % S_SOFF)

def k1_prefetch0(A):
    T = V_T
    A.e("s_lshl_b32 s%d, s%d, 1" % (S_T0, S_WAVE))
    A.e("s_cmp_eq_u32 s%d, 0" % S_WAVE); A.e("s_cselect_b32 s%d, s4, s6" % S_T1); A.e("s_cselect_b32 s%d, s5, s7" % S_T2)
    A.e("s_cmp_eq_u32 s%d, 2" % S_WAVE); A.e("s_cselect_b32 s%d, s8, s%d" % (S_T1, S_T1)); A.e("s_cselect_b32 s%d, s9, s%d" % (S_T2, S_T2))
    A.e("s_cmp_eq_u32 s%d, 3" % S_WAVE); A.e("s_cselect_b32 s%d, s10, s%d" % (S_T1, S_T1)); A.e("s_cselect_b32 s%d, s11, s%d" % (S_T2, S_T2))
    A.e("s_mov_b32 s%d, s%d" % (S_R + 4, S_T1))
    A.e("s_and_b32 s%d, s%d, 0xffff" % (S_R + 5, S_T2))
    A.e("s_mov_b32 s%d, %d" % (S_T3, SZQ))
    A.e("s_cmp_eq_u32 s%d, 1" % S_WAVE); A.e("s_cselect_b32 s%d, s%d, %d" % (S_R + 6, S_T3, SZG))
    A.e("s_mov_b32 s%d, %d" % (S_T3, 2048 * 896))
    A.e("s_cmp_eq_u32 s%d, 0" % S_WAVE); A.e("s_cselect_b32 s%d, s%d, s%d" % (S_R + 6, S_T3, S_R + 6))
    A.e("s_mov_b32 s%d, 0x00020000" % (S_R + 7))
    A.e("s_mov_b32 s%d, 49" % S_T3)
    A.e("s_cmp_eq_u32 s%d, 1" % S_WAVE); A.e("s_cselect_b32 s%d, 37, s%d" % (S_T3, S_T3))
    A.e("s_cmp_eq_u32 s%d, 0" % S_WAVE); A.e("s_cselect_b32 s%d, 56, s%d" % (S_T3, S_T3))
    A.e("s_mul_i32 s%d, s%d, s2" % (S_T1, S_T3))
    A.e("s_lshl_b32 s%d, s%d, 7" % (S_T1, S_T1))
    A.e("v_lshlrev_b32 v%d, 7, v%d" % (T, V_LANE))
    A.e("v_mov_b32 v%d, 0x7ffffff0" % (T + 1))
    A.e("v_cmp_gt_u32 vcc, s%d, v%d" % (S_T3, V_LANE))
    A.e("s_nop 1")
    A.e("v_cndmask_b32 v%d, v%d, v%d, vcc" % (T, T + 1, T))
    A.vmem("buffer_load_dword v%d, v%d, s[%d:%d], s%d offen" % (V_DUMP, T, S_R + 4, S_R + 7, S_T1), "pf")

def k1_prefetch2(A):
    T = V_T
    srd(A, S_GW, 96, 1792 * 896)
    if "pf2chip" in EXP:
        A.e("s_lshl_b32 s%d, s2, 2" % S_T0)
        A.e("s_add_u32 s%d, s%d, s%d" % (S_T0, S_T0, S_WAVE))
        A.e("s_mul_i32 s%d, s%d, %d" % (S_T1, S_T0, 13 * 128))
        A.e("v_lshlrev_b32 v%d, 7, v%d" % (T, V_LANE))
        A.e("v_mov_b32 v%d, 0x7ffffff0" % (T + 1))
        A.e("v_cmp_gt_u32 vcc, 13, v%d" % V_LANE)
        A.e("s_nop 1")
        A.e("v_cndmask_b32 v%d, v%d, v%d, vcc" % (T + 2, T + 1, T))
        A.vmem("buffer_load_dword v%d, v%d, s[%d:%d], s%d offen" % (V_DUMP, T + 2, S_GW, S_GW + 3, S_T1), "pf")
        srd(A, S_R + 4, 98, 448 * 896)
        A.e("s_mul_i32 s%d, s%d, %d" % (S_T1, S_T0, 4 * 128))
        A.e("v_cmp_gt_u32 vcc, 4, v%d" % V_LANE)
        A.e("s_nop 1")
        A.e("v_cndmask_b32 v%d, v%d, v%d, vcc" % (T + 2, T + 1, T))
        A.vmem("buffer_load_dword v%d, v%d, s[%d:%d], s%d offen" % (V_DUMP + 2, T + 2, S_R + 4, S_R + 7, S_T1), "pf")
        return
    A.e("s_lshl_b32 s%d, s%d, 2" % (S_T0, S_IDX))
    A.e("s_add_u32 s%d, s%d, s%d" % (S_T0, S_T0, S_WAVE))
    A.e("s_mul_i32 s%d, s%d, %d" % (S_T1, S_T0, 98 * 128))
    A.e("v_lshlrev_b32 v%d, 7, v%d" % (T, V_LANE))
    A.vmem("buffer_load_dword v%d, v%d, s[%d:%d], s%d offen" % (V_DUMP, T, S_GW, S_GW + 3, S_T1), "pf")
    A.e("v_mov_b32 v%d, 0x7ffffff0" % (T + 1))
    A.e("v_cmp_gt_u32 vcc, 34, v%d" % V_LANE)
    A.e("s_nop 1")
    A.e("v_cndmask_b32 v%d, v%d, v%d, vcc" % (T + 2, T + 1, T))
    A.e("s_add_u32 s%d, s%d, %d" % (S_T1, S_T1, 64 * 128))
    A.vmem("buffer_load_dword v%d, v%d, s[%d:%d], s%d offen" % (V_DUMP + 1, T + 2, S_GW, S_GW + 3, S_T1), "pf")
    srd(A, S_R + 4, 98, 448 * 896)
    A.e("s_mul_i32 s%d, s%d, %d" % (S_T1, S_T0, 25 * 128))
    A.e("v_cmp_gt_u32 vcc, 25, v%d" % V_LANE)
    A.e("s_nop 1")
    A.e("v_cndmask_b32 v%d, v%d, v%d, vcc" % (T + 2, T + 1, T))
    A.vmem("buffer_load_dword v%d, v%d, s[%d:%d], s%d offen" % (V_DUMP + 2, T + 2, S_R + 4, S_R + 7, S_T1), "pf")

def gen_k1_var(A, var):
    dma = var.startswith("FFN4")
    nt = 6 if var.endswith("6") else 4
    poffs = [512] * 6
    if var == "FFN6":
        poffs = [512, 512, 512, 512, 256, 256]
    if var == "QKV6":
        A.e("s_and_b32 s%d, s%d, 2" % (S_T0, S_WAVE))
        for i in range(2):
            A.e("s_add_u32 s%d, s%d, %d" % (S_T1, S_T0, i))
            emit_raddr(A, V_WA + i, "T4", "s%d" % S_T1)
        for m in (1, 2):
            for i in range(2):
                A.e("v_add_u32 v%d, %d, v%d" % (V_WA + 2 * m + i, m * 4096, V_WA + i))
    elif var == "FFN6":
        A.e("s_and_b32 s%d, s%d, 2" % (S_T0, S_WAVE))
        for p in range(2):
            A.e("s_add_u32 s%d, s%d, %d" % (S_T1, S_T0, p))
            emit_raddr(A, V_WA + 2 * p, "T4", "s%d" % S_T1)
            A.e("v_add_u32 v%d, 8192, v%d" % (V_WA + 2 * p + 1, V_WA + 2 * p))
        A.e("s_lshr_b32 s%d, s%d, 1" % (S_T1, S_WAVE))
        emit_raddr(A, V_WA + 4, "T2", "s%d" % S_T1)
        A.e("v_add_u32 v%d, 16384, v%d" % (V_WA + 4, V_WA + 4))
        A.e("v_add_u32 v%d, 2048, v%d" % (V_WA + 5, V_WA + 4))
    elif var == "FFN4":
        A.e("s_and_b32 s%d, s%d, 2" % (S_T0, S_WAVE))
        A.e("s_cmp_eq_u32 s%d, 0" % S_TYP)
        A.e("s_cselect_b32 s%d, 3, 1" % S_T3)
        A.e("s_cselect_b32 s%d, 1, 2" % S_T2)
        A.e("s_lshl_b32 s%d, s%d, 12" % (S_STR + 4, S_T3))
        A.e("s_lshl_b32 s%d, s%d, 12" % (S_STR + 3, S_T2))
        for p in range(2):
            A.e("s_add_u32 s%d, s%d, %d" % (S_T1, S_T0, p))
            emit_raddr(A, V_WA + 2 * p, "T4", "s%d" % S_T1)
            A.e("v_add_u32 v%d, s%d, v%d" % (V_WA + 2 * p, S_STR + 4, V_WA + 2 * p))
            A.e("v_add_u32 v%d, s%d, v%d" % (V_WA + 2 * p + 1, S_STR + 3, V_WA + 2 * p))
    for i in range(nt):
        A.e("v_add_u32 v%d, %d, v%d" % (V_WA + 6 + i, WHI, V_WA + i))
    if not dma:
        if "cwr" in EXP:
            k1_cwr_setup(A)
        elif "nopf" not in EXP:
            k1_touch_setup(A)

    def issue_w(stage):
        slot = stage % 4
        for r in range(5):
            A.e("s_add_u32 m0, s%d, %d" % (S_STR + 1, slot * WSTG + r * 4096))
            A.e("s_nop 0")
            A.vmem("buffer_load_dwordx4 v%d, s[%d:%d], s%d offen lds" % (V_DOFF + r, S_R + 4 * r, S_R + 4 * r + 3, S_SOFF + r), ("st", stage))
            if r < 3:
                A.e("s_add_u32 s%d, s%d, s%d" % (S_SOFF + r, S_SOFF + r, S_STR))
            else:
                A.e("s_add_u32 s%d, s%d, %d" % (S_SOFF + r, S_SOFF + r, 32 * 3584))
    def issue_x(d):
        for i in range(4):
            A.e("s_add_u32 m0, s%d, %d" % (S_STR + 2, (d % 2) * XSLOT + i * 1024))
            A.e("s_add_u32 s%d, s%d, %d" % (S_T0, S_XO, i * 8 * 896 + d * 128))
            A.vmem("buffer_load_dwordx4 v%d, s[%d:%d], s%d offen lds" % (V_XD + (i & 1), S_X, S_X + 3, S_T0), ("x", d))
    def touch(d):
        A.e("s_mul_i32 s%d, s%d, %d" % (S_T0, S_STR, d))
        A.e("s_add_u32 s%d, s%d, s%d" % (S_T0, S_T0, S_SOFF))
        A.vmem("buffer_load_dword v%d, v%d, s[%d:%d], s%d offen" % (V_DUMP + 3, V_DOFF, S_R, S_R + 3, S_T0), "pf")
    def read_list(stage):
        slot = stage % 4
        st = stage & 1
        hi = 1 if slot >= 2 else 0
        base = (slot - 2 * hi) * WSTG
        out = []
        d = stage // 2
        for rt in range(4):
            out.append("ds_read_b128 v[%d:%d], v%d offset:%d" % (V_XF + st * 16 + rt * 4, V_XF + st * 16 + rt * 4 + 3, V_XA + (stage & 1), (d % 2) * XSLOT + rt * 2048))
        for ti in range(nt):
            dd = V_WF + st * 24 + ti * 4
            for p in range(2):
                out.append("ds_read_b64_tr_b16 v[%d:%d], v%d offset:%d" % (dd + 2 * p, dd + 2 * p + 1, V_WA + ti + 6 * hi, base + p * poffs[ti]))
        return out

    A.nst = 0
    A.stamp()
    if STAMP:
        A.e("s_memrealtime s[100:101]")
    NK = 14
    if dma:
        if "prio" in EXP:
            A.e("s_setprio 1")
        if "dly" in EXP:
            A.e("s_sleep %d" % int(os.environ.get("DLY", "32")))
        issue_x(0); issue_w(0); issue_w(1); issue_x(1); issue_w(2)
    else:
        if "cwr" in EXP:
            for d in range(CW0):
                touch(d)
        elif "nopf" not in EXP and "latepf" not in EXP:
            for d in (1, 2, 3):
                touch(d)
    A.wait_vm("gate")
    T = V_T
    A.e("v_mov_b32 v%d, 0" % V_GATE)
    for d in range(4):
        unpack2(A, T, T + 1, 96 + d)
        unpack2(A, T + 2, T + 3, 100 + d)
        A.e("v_pk_mul_f32 v[%d:%d], v[%d:%d], v[%d:%d]" % (T, T + 1, T, T + 1, T + 2, T + 3))
        A.e("v_cvt_pk_bf16_f32 v%d, v%d, v%d" % (T + 4, T, T + 1))
        unpack2(A, T, T + 1, T + 4)
        A.e("v_add_f32 v%d, v%d, v%d" % (V_GATE, V_GATE, T))
        A.e("v_add_f32 v%d, v%d, v%d" % (V_GATE, V_GATE, T + 1))
    for mod in ("quad_perm:[1,0,3,2]", "quad_perm:[2,3,0,1]", "row_half_mirror", "row_mirror"):
        A.e("s_nop 1")
        A.e("v_add_f32_dpp v%d, v%d, v%d %s row_mask:0xf bank_mask:0xf" % (V_GATE, V_GATE, V_GATE, mod))
    A.e("s_nop 1")
    A.e("v_readlane_b32 s%d, v%d, 16" % (S_T0, V_GATE))
    A.e("v_readlane_b32 s%d, v%d, 32" % (S_T1, V_GATE))
    A.e("v_readlane_b32 s%d, v%d, 48" % (S_T2, V_GATE))
    A.e("s_nop 1")
    A.e("v_add_f32 v%d, s%d, v%d" % (V_GATE, S_T0, V_GATE))
    A.e("v_add_f32 v%d, s%d, v%d" % (V_GATE, S_T1, V_GATE))
    A.e("v_add_f32 v%d, s%d, v%d" % (V_GATE, S_T2, V_GATE))
    A.e("v_cvt_pk_bf16_f32 v%d, v%d, v%d" % (V_GATE, V_GATE, V_GATE))
    A.e("v_lshlrev_b32 v%d, 16, v%d" % (V_GATE, V_GATE))
    A.e("v_mul_f32 v%d, s%d, v%d" % (V_GATE, S_NL2E, V_GATE))
    A.e("v_exp_f32 v%d, v%d" % (V_GATE, V_GATE))
    A.e("s_nop 0")
    A.e("v_add_f32 v%d, 1.0, v%d" % (V_GATE, V_GATE))
    A.e("v_rcp_f32 v%d, v%d" % (V_GATE, V_GATE))
    A.e("s_nop 0")
    A.e("v_cvt_pk_bf16_f32 v%d, v%d, v%d" % (V_GATE, V_GATE, V_GATE))
    A.e("v_lshlrev_b32 v%d, 16, v%d" % (V_GATE, V_GATE))

    def wait_stage(stage, extra=""):
        if dma:
            tags = [("st", stage), ("x", stage // 2)]
            idx = None
            for i, t in enumerate(A.vm):
                if t in tags: idx = i
            if idx is None:
                if extra: A.e("s_waitcnt " + extra)
            else:
                n = len(A.vm) - 1 - idx
                A.e("s_waitcnt vmcnt(%d) %s" % (n, extra))
                A.vm = A.vm[idx + 1:]
        elif extra:
            A.e("s_waitcnt " + extra)

    wait_stage(0)
    A.e("s_barrier")
    if not dma and "latepf" in EXP:
        for d in (1, 2, 3):
            touch(d)
    for r in read_list(0):
        A.e(r)
    for s in range(NK):
        A.c("---- step %d ----" % s)
        if s in (1, 8):
            A.stamp()
        if s + 1 < NK:
            wait_stage(s + 1, "lgkmcnt(0)")
            A.e("s_barrier")
        else:
            A.e("s_waitcnt lgkmcnt(0)")
        if "prio2" in EXP and s == PSW:
            A.e("s_setprio %d" % (0 if dma else 2))
        if dma:
            if s + 3 < NK:
                issue_w(s + 3)
            if s % 2 == 1 and (s + 3) // 2 < 7:
                issue_x((s + 3) // 2)
        else:
            if "cwr" in EXP:
                if s + CW0 < 7:
                    touch(s + CW0)
            elif s % 2 == 0 and s // 2 + 4 < 7 and "nopf" not in EXP:
                touch(s // 2 + 4)
            if s == PF2STEP and "nopf2" not in EXP:
                k1_prefetch2(A)
        reads = read_list(s + 1) if s + 1 < NK else []
        st = s & 1
        mf = []
        for ti in range(nt):
            for rt in range(4):
                acc = V_ACC + (ti * 4 + rt) * 4
                xf = V_XF + st * 16 + rt * 4
                wf = V_WF + st * 24 + ti * 4
                cin = "0" if s == 0 else "v[%d:%d]" % (acc, acc + 3)
                if var == "QKV6" and ti >= 2:
                    a, b = xf, wf
                else:
                    a, b = wf, xf
                mf.append("v_mfma_f32_16x16x32_bf16 v[%d:%d], v[%d:%d], v[%d:%d], %s" % (acc, acc + 3, a, a + 3, b, b + 3, cin))
        ri = 0
        for m in mf:
            A.e(m)
            if ri < len(reads):
                A.e(reads[ri]); ri += 1
        while ri < len(reads):
            A.e(reads[ri]); ri += 1

    A.c("---- epilogue ----")
    A.stamp()
    A.e("s_mov_b32 s%d, 0x%x" % (S_L2E2, LOG2E))
    A.e("s_mov_b32 s%d, 0x%x" % (S_L2E2 + 1, LOG2E))
    A.e("s_mov_b32 s%d, 0x%x" % (S_EPS2, EPS))
    A.e("s_mov_b32 s%d, 0x%x" % (S_EPS2 + 1, EPS))
    A.nop(6)
    A.e("v_mov_b32 v%d, 0x7ffffff0" % (V_T + 1))
    A.e("v_mov_b32 v%d, %d" % (V_T, WS_G))
    A.e("v_cmp_eq_u32 vcc, 0, v%d" % V_LANE)
    A.e("s_nop 1")
    A.e("v_cndmask_b32 v%d, v%d, v%d, vcc" % (V_T, V_T + 1, V_T))
    A.vmem("buffer_store_dword v%d, v%d, s[%d:%d], s%d offen" % (V_GATE, V_T, S_W, S_W + 3, S_GOFF), "out")
    VL16 = 9
    A.e("v_lshlrev_b32 v%d, 4, v%d" % (VL16, V_LANE))
    TMP = 32
    if var == "QKV6":
        S_HEAD = S_T3
        A.e("s_lshl_b32 s%d, s%d, 1" % (S_HEAD, S_PI))
        A.e("s_lshr_b32 s%d, s%d, 1" % (S_T0, S_WAVE))
        A.e("s_add_u32 s%d, s%d, s%d" % (S_HEAD, S_HEAD, S_T0))
        M48, M12, ONE12 = 2, 3, 4
        A.e("v_cmp_gt_u32 vcc, 48, v%d" % V_LANE)
        A.e("s_nop 1")
        A.e("v_cndmask_b32 v%d, 0, -1, vcc" % M48)
        A.e("v_and_b32 v%d, 15, v%d" % (V_T, V_LANE))
        A.e("v_cmp_gt_u32 vcc, 12, v%d" % V_T)
        A.e("s_nop 1")
        A.e("v_cndmask_b32 v%d, 0, -1, vcc" % M12)
        A.e("v_mov_b32 v%d, 0x3f803f80" % (V_T + 1))
        A.e("v_cmp_eq_u32 vcc, 12, v%d" % V_T)
        A.e("s_nop 1")
        A.e("v_cndmask_b32 v%d, 0, v%d, vcc" % (ONE12, V_T + 1))
        QF = 48
        for rt in range(4):
            for dt in range(2):
                acc = V_ACC + ((0 + dt) * 4 + rt) * 4
                emit_phi4(A, acc, QF + rt * 4 + dt * 2, TMP)
            A.e("v_and_b32 v%d, v%d, v%d" % (QF + rt * 4 + 2, QF + rt * 4 + 2, M48))
            A.e("v_and_b32 v%d, v%d, v%d" % (QF + rt * 4 + 3, QF + rt * 4 + 3, M48))
            A.e("s_add_u32 s%d, s%d, %d" % (S_T0, S_R0T, rt))
            A.e("s_lshl_b32 s%d, s%d, 4" % (S_T0, S_T0))
            A.e("s_add_u32 s%d, s%d, s%d" % (S_T0, S_T0, S_HEAD))
            A.e("s_lshl_b32 s%d, s%d, 10" % (S_T0, S_T0))
            A.e("s_add_u32 s%d, s%d, %d" % (S_T0, S_T0, WS_PQ))
            A.vmem("buffer_store_dwordx4 v[%d:%d], v%d, s[%d:%d], s%d offen %s" % (QF + rt * 4, QF + rt * 4 + 3, VL16, S_W, S_W + 3, S_T0, STF), "out")
        KP, VP = 64, 80
        for dt in range(2):
            for rt in range(4):
                acc = V_ACC + ((2 + dt) * 4 + rt) * 4
                d = KP + dt * 8 + rt * 2
                emit_phi4(A, acc, d, TMP)
                if dt == 1:
                    A.e("v_and_b32 v%d, v%d, v%d" % (d, d, M12))
                    A.e("v_and_b32 v%d, v%d, v%d" % (d + 1, d + 1, M12))
        for et in range(2):
            for rt in range(4):
                acc = V_ACC + ((4 + et) * 4 + rt) * 4
                d = VP + et * 8 + rt * 2
                for h in range(2):
                    A.e("v_cvt_pk_bf16_f32 v%d, v%d, v%d" % (d + h, acc + 2 * h, acc + 2 * h + 1))
                    if et == 1:
                        A.e("v_and_or_b32 v%d, v%d, v%d, v%d" % (d + h, d + h, M12, ONE12))
        A.nop(2)
        KV = 96
        for blk in range(2):
            for dt in range(2):
                for et in range(2):
                    acc = KV + (dt * 2 + et) * 4
                    a = KP + dt * 8 + blk * 4
                    b = VP + et * 8 + blk * 4
                    cin = "0" if blk == 0 else "v[%d:%d]" % (acc, acc + 3)
                    A.e("v_mfma_f32_16x16x32_bf16 v[%d:%d], v[%d:%d], v[%d:%d], %s" % (acc, acc + 3, a, a + 3, b, b + 3, cin))
        A.nop(10)
        A.e("s_lshl_b32 s%d, s%d, 5" % (S_T0, S_HEAD))
        A.e("s_lshl_b32 s%d, s%d, 1" % (S_T1, S_RB))
        A.e("s_add_u32 s%d, s%d, s%d" % (S_T0, S_T0, S_T1))
        A.e("s_add_u32 s%d, s%d, s%d" % (S_T0, S_T0, S_RH))
        A.e("s_lshl_b32 s%d, s%d, 12" % (S_T0, S_T0))
        A.e("s_add_u32 s%d, s%d, %d" % (S_T0, S_T0, WS_KVP))
        for t in range(4):
            A.vmem("buffer_store_dwordx4 v[%d:%d], v%d, s[%d:%d], s%d offen offset:%d %s" % (KV + t * 4, KV + t * 4 + 3, VL16, S_W, S_W + 3, S_T0, t * 1024, STF), "out")
    else:
        S_FT = S_T3
        if var == "FFN6":
            A.e("s_mul_i32 s%d, s%d, 10" % (S_FT, S_PI))
            A.e("s_and_b32 s%d, s%d, 2" % (S_T0, S_WAVE))
            A.e("s_add_u32 s%d, s%d, s%d" % (S_FT, S_FT, S_T0))
            A.e("s_add_u32 s%d, s%d, 32" % (S_FT, S_FT))
        else:
            A.e("s_lshl_b32 s%d, s%d, 2" % (S_T0, S_PI))
            A.e("s_mul_i32 s%d, s%d, 10" % (S_T1, S_PI))
            A.e("s_add_u32 s%d, s%d, 36" % (S_T1, S_T1))
            A.e("s_cmp_eq_u32 s%d, 0" % S_TYP)
            A.e("s_cselect_b32 s%d, s%d, s%d" % (S_FT, S_T0, S_T1))
            A.e("s_and_b32 s%d, s%d, 2" % (S_T1, S_WAVE))
            A.e("s_add_u32 s%d, s%d, s%d" % (S_FT, S_FT, S_T1))
        HP = 48
        A.e("s_lshr_b32 s%d, s%d, 1" % (S_T1, S_FT))
        A.e("s_lshl_b32 s%d, s%d, 10" % (S_T1, S_T1))
        k = 0
        for rt in range(4):
            d = HP + rt * 4
            for p in range(2):
                g = V_ACC + ((2 * p) * 4 + rt) * 4
                u = V_ACC + ((2 * p + 1) * 4 + rt) * 4
                emit_swiglu4(A, g, u, d + 2 * p, TMP + (k % 2) * 4)
                k += 1
            A.e("s_add_u32 s%d, s%d, %d" % (S_T0, S_R0T, rt))
            A.e("s_mul_i32 s%d, s%d, %d" % (S_T0, S_T0, 56 * 1024))
            A.e("s_add_u32 s%d, s%d, s%d" % (S_T0, S_T0, S_T1))
            A.vmem("buffer_store_dwordx4 v[%d:%d], v%d, s[%d:%d], s%d offen %s" % (d, d + 3, VL16, S_W, S_W + 3, S_T0, STF), "out")
        if var == "FFN6":
            A.e("s_mul_i32 s%d, s%d, 5" % (S_T1, S_PI))
            A.e("s_add_u32 s%d, s%d, 20" % (S_T1, S_T1))
            A.e("s_lshl_b32 s%d, s%d, 10" % (S_T1, S_T1))
            A.e("s_lshr_b32 s%d, s%d, 1" % (S_T2, S_WAVE))
            A.e("s_lshl_b32 s%d, s%d, 3" % (S_T2, S_T2))
            A.e("s_add_u32 s%d, s%d, s%d" % (S_T1, S_T1, S_T2))
            for rt in range(4):
                g = V_ACC + (4 * 4 + rt) * 4
                u = V_ACC + (5 * 4 + rt) * 4
                d = 64 + rt * 2
                emit_swiglu4(A, g, u, d, TMP + (k % 2) * 4)
                k += 1
                A.e("s_add_u32 s%d, s%d, %d" % (S_T0, S_R0T, rt))
                A.e("s_mul_i32 s%d, s%d, %d" % (S_T0, S_T0, 56 * 1024))
                A.e("s_add_u32 s%d, s%d, s%d" % (S_T0, S_T0, S_T1))
                A.vmem("buffer_store_dwordx2 v[%d:%d], v%d, s[%d:%d], s%d offen %s" % (d, d + 1, VL16, S_W, S_W + 3, S_T0, STF), "out")
    A.stamp()
    A.stamp(True)
    A.stamp_flush(S_W, S_WAVE, 8, WS_STAMP)

P_SW2, P_SWO, P_SOUT, P_SDBG = 28, 32, 36, 40
P_MT, P_NT = 44, 45
P_LB = 46
P_W2B = 47
P_WOB = 68
P_HB = 69
P_PB = 70
P_KVB = 71
Q_DOFF = 31
Q_L16 = 2
Q_RA = 3
Q_FLAG = 7
Q_ZOFF = 8
Q_G = 9
Q_BA = 10
Q_T = 11
Q_AF = 32
Q_BF = 64
Q_KV = 96
Q_OF = 120
Q_ACC = 128
KVSTEP = int(os.environ.get("KVSTEP", "12"))
RING = int(os.environ.get("RING", "4"))
DEP = RING - 1
SLOT = 8192
NS = 18
BFL = os.environ.get("BFL", "")

def p2_issue_w(A, step):
    slot = step % RING
    if step < 14:
        srdw = P_SW2; base = P_W2B; rowoff = (step % 3 if "k2same" in EXP else step) * 32 * 896
    else:
        srdw = P_SWO; base = P_WOB; rowoff = (step - 14) * 28 * 896
    for o in range(4):
        A.e("s_add_u32 m0, s%d, %d" % (P_LB, slot * SLOT + o * 1024))
        A.e("s_add_u32 s%d, s%d, %d" % (S_T0, base, rowoff + o * 8 * 896))
        A.vmem("buffer_load_dwordx4 v%d, s[%d:%d], s%d offen lds" % (Q_DOFF, srdw, srdw + 3, S_T0), ("w", step))

def p2_issue_b(A, step):
    slot = step % RING
    for rt in range(4):
        A.e("s_add_u32 m0, s%d, %d" % (P_LB, slot * SLOT + 4096 + rt * 1024))
        if step < 14:
            A.e("s_add_u32 s%d, s%d, %d" % (S_T0, P_HB, rt * 56 * 1024 + (step % 3 if "k2same" in EXP else step) * 1024))
        else:
            A.e("s_add_u32 s%d, s%d, %d" % (S_T0, P_PB, rt * 16 * 1024 + (step - 14) * 1024))
        A.vmem("buffer_load_dwordx4 v%d, s[%d:%d], s%d offen lds" % (Q_L16, S_W, S_W + 3, S_T0), ("b", step))

def gen_k2(A):
    A.vm = []
    A.label("k2_kernel")
    if STAMP:
        A.e("s_memrealtime s[92:93]")
    A.e("s_cmp_ge_u32 s2, 240")
    A.e("s_cbranch_scc1 K2_END")
    A.e("s_load_dwordx2 s[98:99], s[0:1], 16")
    A.e("s_load_dwordx2 s[96:97], s[0:1], 48")
    A.e("s_load_dwordx4 s[8:11], s[0:1], 64")
    A.e("s_load_dwordx2 s[14:15], s[0:1], 80")
    if "nocw" not in EXP:
        A.e("s_getpc_b64 s[100:101]")
        A.label("K2_PC")
        A.e("s_sub_u32 s100, s100, K2_PC-k2_kernel")
        A.e("s_subb_u32 s101, s101, 0")
        A.e("v_lshlrev_b32 v%d, 7, v0" % Q_T)
        A.e("v_min_u32 v%d, K2_END-k2_kernel, v%d" % (Q_T, Q_T))
        A.vmem("global_load_dword v%d, v%d, s[100:101]" % (Q_FLAG, Q_T), "cw")
    A.e("v_and_b32 v%d, 63, v0" % V_LANE)
    A.e("v_lshrrev_b32 v%d, 6, v0" % Q_T)
    A.e("s_nop 0")
    A.e("v_readfirstlane_b32 s%d, v%d" % (S_WAVE, Q_T))
    A.e("v_lshlrev_b32 v%d, 4, v%d" % (Q_L16, V_LANE))
    k1_consts(A)
    A.e("s_and_b32 s%d, s2, 7" % S_T0)
    A.e("s_lshr_b32 s%d, s2, 3" % S_IDX)
    A.e("s_sub_u32 s%d, s%d, 2" % (S_T1, S_IDX))
    A.e("s_lshl_b32 s%d, s%d, 2" % (S_T2, S_T0))
    A.e("s_and_b32 s%d, s%d, 3" % (S_T3, S_T1))
    A.e("s_add_u32 s%d, s%d, s%d" % (P_MT, S_T2, S_T3))
    A.e("s_lshr_b32 s%d, s%d, 2" % (P_NT, S_T1))
    A.e("s_waitcnt lgkmcnt(0)")
    srd(A, P_SW2, 96, 1792 * 896)
    srd(A, P_SWO, 98, 448 * 896)
    srd(A, S_W, 14, WS_SIZE)
    srd(A, P_SOUT, 8, 2048 * 896)
    srd(A, P_SDBG, 10, 256)
    A.e("s_cmp_lt_u32 s%d, 2" % S_IDX)
    A.e("s_cbranch_scc1 K2_RED")
    A.e("s_mul_i32 s%d, s%d, %d" % (P_LB, S_WAVE, RING * SLOT))
    A.e("s_mul_i32 s%d, s%d, %d" % (S_T0, S_WAVE, 448 * 896))
    A.e("s_lshl_b32 s%d, s%d, 7" % (S_T1, P_NT))
    A.e("s_add_u32 s%d, s%d, s%d" % (P_W2B, S_T0, S_T1))
    A.e("s_mul_i32 s%d, s%d, %d" % (S_T0, S_WAVE, 112 * 896))
    A.e("s_add_u32 s%d, s%d, s%d" % (P_WOB, S_T0, S_T1))
    A.e("s_mul_i32 s%d, s%d, %d" % (S_T0, P_MT, 4 * 56 * 1024))
    A.e("s_mul_i32 s%d, s%d, %d" % (S_T1, S_WAVE, 14 * 1024))
    A.e("s_add_u32 s%d, s%d, s%d" % (P_HB, S_T0, S_T1))
    A.e("s_lshl_b32 s%d, s%d, 16" % (S_T0, P_MT))
    A.e("s_lshl_b32 s%d, s%d, 12" % (S_T1, S_WAVE))
    A.e("s_add_u32 s%d, s%d, s%d" % (S_T0, S_T0, S_T1))
    A.e("s_add_u32 s%d, s%d, %d" % (P_PB, S_T0, WS_PQ))
    A.e("s_lshl_b32 s%d, s%d, 13" % (S_T0, S_WAVE))
    A.e("s_add_u32 s%d, s%d, %d" % (P_KVB, S_T0, WS_KVF))
    t0, t1, t2 = Q_T, Q_T + 1, Q_T + 2
    A.e("v_lshrrev_b32 v%d, 3, v%d" % (t0, V_LANE))
    A.e("v_lshrrev_b32 v%d, 4, v%d" % (t1, V_LANE))
    A.e("v_lshrrev_b32 v%d, 1, v%d" % (t2, V_LANE))
    A.e("v_xor_b32 v%d, v%d, v%d" % (t1, t1, t2))
    A.e("v_and_b32 v%d, 3, v%d" % (t1, t1))
    A.e("v_lshlrev_b32 v%d, 5, v%d" % (t1, t1))
    A.e("v_mul_u32_u24 v%d, 896, v%d" % (t0, t0))
    A.e("v_and_b32 v%d, 1, v%d" % (t2, V_LANE))
    A.e("v_lshlrev_b32 v%d, 4, v%d" % (t2, t2))
    A.e("v_add3_u32 v%d, v%d, v%d, v%d" % (Q_DOFF, t0, t1, t2))
    A.nst = 0
    A.stamp()
    if STAMP:
        A.e("s_memrealtime s[100:101]")
    for st in range(DEP):
        p2_issue_w(A, st)
        p2_issue_b(A, st)
    global V_T
    sv = V_T
    V_T = Q_T
    for t in range(4):
        emit_raddr(A, Q_RA + t, "T4K2", t)
        A.e("v_add_u32 v%d, s%d, v%d" % (Q_RA + t, P_LB, Q_RA + t))
    V_T = sv
    A.e("v_add_u32 v%d, s%d, v%d" % (Q_BA, P_LB, Q_L16))
    A.e("v_lshrrev_b32 v%d, 4, v%d" % (Q_T, V_LANE))
    A.e("v_lshlrev_b32 v%d, 8, v%d" % (Q_T, Q_T))
    A.e("v_add_u32 v%d, %d, v%d" % (Q_ZOFF, 1024 + 12 * 16, Q_T))
    def reads(step):
        slot = step % RING
        st = step & 1
        out = []
        for rt in range(4):
            d = Q_BF + st * 16 + rt * 4
            out.append("ds_read_b128 v[%d:%d], v%d offset:%d" % (d, d + 3, Q_BA, slot * SLOT + 4096 + rt * 1024))
        for t in range(4):
            d = Q_AF + st * 16 + t * 4
            for p in range(2):
                out.append("ds_read_b64_tr_b16 v[%d:%d], v%d offset:%d" % (d + 2 * p, d + 2 * p + 1, Q_RA + t, slot * SLOT + p * 2048))
        return out
    A.wait_vm(("b", 0))
    A.stamp()
    for r in reads(0):
        A.e(r)
    for s in range(NS):
        A.c("---- k2 step %d ----" % s)
        if s in (8, 11, 14):
            A.stamp()
        rd = []
        if s + 1 < NS:
            A.wait_vm(("b", s + 1), "lgkmcnt(0)")
            rd = reads(s + 1)
        else:
            A.e("s_waitcnt lgkmcnt(0)")
        if s + DEP < NS:
            if "k2now" not in EXP: p2_issue_w(A, s + DEP)
            if "k2nob" not in EXP: p2_issue_b(A, s + DEP)
        if "k2nord" in EXP: rd = []
        if s == KVSTEP - 3:
            A.e("v_mov_b32 v%d, 0" % (Q_T + 2))
            A.vmem("buffer_load_dword v%d, v%d, s[%d:%d], 0 offen sc1" % (Q_FLAG, Q_T + 2, P_SDBG, P_SDBG + 3), "flag")
            A.e("v_and_b32 v%d, 15, v%d" % (Q_T + 1, V_LANE))
            A.e("v_lshlrev_b32 v%d, 2, v%d" % (Q_T + 1, Q_T + 1))
            A.e("s_lshl_b32 s%d, s%d, 8" % (S_T0, P_MT))
            A.e("s_lshl_b32 s%d, s%d, 6" % (S_T1, S_WAVE))
            A.e("s_add_u32 s%d, s%d, s%d" % (S_T0, S_T0, S_T1))
            A.e("s_add_u32 s%d, s%d, %d" % (S_T0, S_T0, WS_G))
            A.vmem("buffer_load_dword v%d, v%d, s[%d:%d], s%d offen" % (Q_G, Q_T + 1, S_W, S_W + 3, S_T0), "gate")
        if s == KVSTEP:
            A.wait_vm("gate")
            A.label("K2_CHK")
            A.e("v_readfirstlane_b32 s%d, v%d" % (S_T2, Q_FLAG))
            A.e("s_cmp_ge_u32 s%d, 16" % S_T2)
            A.e("s_cbranch_scc1 K2_KVOK")
            A.e("s_sleep 8")
            A.e("buffer_load_dword v%d, v%d, s[%d:%d], 0 offen sc1" % (Q_FLAG, Q_T + 2, P_SDBG, P_SDBG + 3))
            A.e("s_waitcnt vmcnt(0)")
            A.e("s_branch K2_CHK")
            A.label("K2_KVOK")
        def kvload(h):
            d = Q_KV + (h & 1) * 12
            A.e("s_add_u32 s%d, s%d, %d" % (S_T0, P_KVB, h * 2048))
            A.vmem("buffer_load_dwordx4 v[%d:%d], v%d, s[%d:%d], s%d offen sc1" % (d, d + 3, Q_L16, S_W, S_W + 3, S_T0), ("kv", h))
            A.vmem("buffer_load_dwordx4 v[%d:%d], v%d, s[%d:%d], s%d offen offset:1024 sc1" % (d + 4, d + 7, Q_L16, S_W, S_W + 3, S_T0), ("kv", h))
            A.vmem("buffer_load_dwordx4 v[%d:%d], v%d, s[%d:%d], s%d offen sc1" % (d + 8, d + 11, Q_ZOFF, S_W, S_W + 3, S_T0), ("kv", h))
        if s == KVSTEP:
            kvload(0); kvload(1)
        st = s & 1
        if s < 14:
            mf = []
            for t in range(4):
                for rt in range(4):
                    acc = Q_ACC + (t * 4 + rt) * 4
                    a = Q_AF + st * 16 + t * 4
                    b = Q_BF + st * 16 + rt * 4
                    cin = "0" if s == 0 else "v[%d:%d]" % (acc, acc + 3)
                    mf.append("v_mfma_f32_16x16x32_bf16 v[%d:%d], v[%d:%d], v[%d:%d], %s" % (acc, acc + 3, a, a + 3, b, b + 3, cin))
            ri = 0
            if "k2nomf" in EXP and s > 0: mf = []
            for m in mf:
                A.e(m)
                if ri < len(rd):
                    A.e(rd[ri]); ri += 1
            while ri < len(rd):
                A.e(rd[ri]); ri += 1
        else:
            h = s - 14
            A.wait_vm(("kv", h))
            if h == 0:
                A.e("v_cmp_gt_u32 vcc, 48, v%d" % V_LANE)
                A.e("s_nop 1")
                A.e("v_cndmask_b32 v%d, 0, -1, vcc" % Q_FLAG)
            kv = Q_KV + (h & 1) * 12
            ri = 0
            for half in range(2):
                for k in range(2):
                    rt = half * 2 + k
                    b = Q_BF + st * 16 + rt * 4
                    N = 12 + k * 8
                    A.e("v_mfma_f32_16x16x32_bf16 v[%d:%d], v[%d:%d], v[%d:%d], 0" % (N, N + 3, kv, kv + 3, b, b + 3))
                    if ri < len(rd): A.e(rd[ri]); ri += 1
                    A.e("v_mfma_f32_16x16x32_bf16 v[%d:%d], v[%d:%d], v[%d:%d], 0" % (N + 4, N + 7, kv + 4, kv + 7, b, b + 3))
                    if ri < len(rd): A.e(rd[ri]); ri += 1
                for k in range(2):
                    rt = half * 2 + k
                    b = Q_BF + st * 16 + rt * 4
                    N = 12 + k * 8
                    DN = Q_OF + k * 4
                    OF = Q_OF + k * 4
                    A.e("v_mfma_f32_16x16x32_bf16 v[%d:%d], v[%d:%d], v[%d:%d], 0" % (DN, DN + 3, kv + 8, kv + 11, b, b + 3))
                    if ri < len(rd): A.e(rd[ri]); ri += 1
                A.nop(8)
                for k in range(2):
                    N = 12 + k * 8
                    DN = Q_OF + k * 4
                    A.e("v_add_f32 v%d, s%d, v%d" % (28 + k, S_EPS, DN))
                for k in range(2):
                    A.e("v_rcp_f32 v%d, v%d" % (28 + k, 28 + k))
                A.e("s_nop 0")
                for k in range(2):
                    N = 12 + k * 8
                    OF = Q_OF + k * 4
                    for i in range(4):
                        A.e("v_pk_mul_f32 v[%d:%d], v[%d:%d], v[28:29] op_sel:[0,%d] op_sel_hi:[1,%d]" % (N + 2 * i, N + 2 * i + 1, N + 2 * i, N + 2 * i + 1, k, k))
                    for i in range(4):
                        A.e("v_cvt_pk_bf16_f32 v%d, v%d, v%d" % (OF + i, N + 2 * i, N + 2 * i + 1))
                    A.e("v_and_b32 v%d, v%d, v%d" % (OF + 2, OF + 2, Q_FLAG))
                    A.e("v_and_b32 v%d, v%d, v%d" % (OF + 3, OF + 3, Q_FLAG))
                A.nop(2)
                for k in range(2):
                    rt = half * 2 + k
                    OF = Q_OF + k * 4
                    for t in range(4):
                        acc = Q_ACC + 64 + (t * 4 + rt) * 4
                        a = Q_AF + st * 16 + t * 4
                        cin = "0" if h == 0 else "v[%d:%d]" % (acc, acc + 3)
                        A.e("v_mfma_f32_16x16x32_bf16 v[%d:%d], v[%d:%d], v[%d:%d], %s" % (acc, acc + 3, a, a + 3, OF, OF + 3, cin))
                if half == 0:
                    A.nop(4)
            while ri < len(rd):
                A.e(rd[ri]); ri += 1
            if h + 2 < 4:
                kvload(h + 2)
    A.c("---- k2 epilogue ----")
    A.stamp()
    A.nop(10)
    A.e("s_barrier")
    A.e("s_lshl_b32 s%d, s%d, 13" % (S_T0, S_WAVE))
    A.e("v_add_u32 v%d, s%d, v%d" % (Q_T, S_T0, Q_L16))
    for rt in range(4):
        A.e("s_cmp_eq_u32 s%d, %d" % (S_WAVE, rt))
        A.e("s_cbranch_scc1 K2_SKIPW%d" % rt)
        A.e("v_add_u32 v%d, %d, v%d" % (Q_T + 1, rt * 32768, Q_T))
        for part in range(2):
            for t in range(4):
                acc = Q_ACC + part * 64 + (t * 4 + rt) * 4
                A.e("ds_write_b128 v%d, v[%d:%d] offset:%d" % (Q_T + 1, acc, acc + 3, part * 4096 + t * 1024))
        A.label("K2_SKIPW%d" % rt)
    for rt in range(4):
        A.e("s_cmp_lg_u32 s%d, %d" % (S_WAVE, rt))
        A.e("s_cbranch_scc1 K2_SKIPM%d" % rt)
        for part in range(2):
            for t in range(4):
                acc = Q_ACC + part * 64 + (t * 4 + rt) * 4
                for i in range(2):
                    A.e("v_pk_mov_b32 v[%d:%d], v[%d:%d], v[%d:%d] op_sel:[0,1]" % (32 + (part * 4 + t) * 4 + 2 * i, 33 + (part * 4 + t) * 4 + 2 * i, acc + 2 * i, acc + 2 * i + 1, acc + 2 * i, acc + 2 * i + 1))
        A.label("K2_SKIPM%d" % rt)
    A.e("s_waitcnt lgkmcnt(0)")
    A.e("s_barrier")
    A.e("s_lshl_b32 s%d, s%d, 15" % (S_T0, S_WAVE))
    A.e("v_add_u32 v%d, s%d, v%d" % (Q_T, S_T0, Q_L16))
    for k in range(1, 4):
        A.e("s_add_u32 s%d, s%d, %d" % (S_T1, S_WAVE, k))
        A.e("s_and_b32 s%d, s%d, 3" % (S_T1, S_T1))
        A.e("s_lshl_b32 s%d, s%d, 13" % (S_T1, S_T1))
        A.e("v_add_u32 v%d, s%d, v%d" % (Q_T + k, S_T1, Q_T))
        for q in range(8):
            A.e("ds_read_b128 v[%d:%d], v%d offset:%d" % (64 + (k - 1) * 32 + q * 4, 64 + (k - 1) * 32 + q * 4 + 3, Q_T + k, q * 1024))
    for k in range(1, 4):
        A.e("s_waitcnt lgkmcnt(%d)" % min(15, 8 * (3 - k)))
        for q in range(16):
            A.e("v_pk_add_f32 v[%d:%d], v[%d:%d], v[%d:%d]" % (32 + 2 * q, 33 + 2 * q, 32 + 2 * q, 33 + 2 * q, 64 + (k - 1) * 32 + 2 * q, 65 + (k - 1) * 32 + 2 * q))
    A.e("v_sub_f32 v14, 1.0, v%d" % Q_G)
    A.e("v_cvt_pk_bf16_f32 v14, v14, v14")
    A.e("v_lshlrev_b32 v14, 16, v14")
    A.e("v_mov_b32 v15, v14")
    A.e("v_mov_b32 v16, v%d" % Q_G)
    A.e("v_mov_b32 v17, v%d" % Q_G)
    A.e("v_and_b32 v18, 15, v%d" % V_LANE)
    A.e("v_mul_u32_u24 v18, 896, v18")
    A.e("v_lshrrev_b32 v19, 4, v%d" % V_LANE)
    A.e("v_lshl_add_u32 v18, v19, 3, v18")
    A.e("s_lshl_b32 s%d, s%d, 6" % (S_T0, P_MT))
    A.e("s_lshl_b32 s%d, s%d, 4" % (S_T1, S_WAVE))
    A.e("s_add_u32 s%d, s%d, s%d" % (S_T0, S_T0, S_T1))
    A.e("s_mul_i32 s%d, s%d, 896" % (S_T0, S_T0))
    A.e("s_lshl_b32 s%d, s%d, 7" % (S_T1, P_NT))
    A.e("s_add_u32 s%d, s%d, s%d" % (S_T0, S_T0, S_T1))
    X = 64
    for t in range(4):
        for h in range(2):
            bq = 32 + t * 4 + 2 * h
            aq = 48 + t * 4 + 2 * h
            A.e("v_pk_mul_f32 v[%d:%d], v[%d:%d], v[14:15]" % (bq, bq + 1, bq, bq + 1))
            A.e("v_pk_fma_f32 v[%d:%d], v[%d:%d], v[16:17], v[%d:%d]" % (bq, bq + 1, aq, aq + 1, bq, bq + 1))
            A.e("v_cvt_pk_bf16_f32 v%d, v%d, v%d" % (X + 8 + t * 2 + h, bq, bq + 1))
        A.e("buffer_store_dwordx2 v[%d:%d], v18, s[%d:%d], s%d offen offset:%d" % (X + 8 + t * 2, X + 9 + t * 2, P_SOUT, P_SOUT + 3, S_T0, t * 32))
    A.stamp()
    A.stamp(True)
    A.stamp_flush(S_W, S_WAVE, 4, WS_STAMP + 0x40000)
    A.e("s_branch K2_END")

    A.label("K2_RED")
    A.vm = []
    P_HEAD = S_T3
    A.e("s_and_b32 s%d, s2, 7" % S_T0)
    A.e("s_lshl_b32 s%d, s%d, 1" % (P_HEAD, S_T0))
    A.e("s_add_u32 s%d, s%d, s%d" % (P_HEAD, P_HEAD, S_IDX))
    A.e("s_lshl_b32 s%d, s%d, 17" % (S_T0, P_HEAD))
    A.e("s_lshl_b32 s%d, s%d, 10" % (S_T1, S_WAVE))
    A.e("s_add_u32 s%d, s%d, s%d" % (S_T0, S_T0, S_T1))
    A.e("s_add_u32 s%d, s%d, %d" % (S_T0, S_T0, WS_KVP))
    for p in range(32):
        A.e("s_add_u32 s%d, s%d, %d" % (S_T1, S_T0, p * 4096))
        A.vmem("buffer_load_dwordx4 v[%d:%d], v%d, s[%d:%d], s%d offen" % (32 + p * 4, 35 + p * 4, Q_L16, S_W, S_W + 3, S_T1), ("p", p))
    A.wait_vm(("p", 1))
    A.e("v_pk_add_f32 v[32:33], v[32:33], v[36:37]")
    A.e("v_pk_add_f32 v[34:35], v[34:35], v[38:39]")
    for p in range(2, 32):
        A.wait_vm(("p", p))
        A.e("v_pk_add_f32 v[32:33], v[32:33], v[%d:%d]" % (32 + p * 4, 33 + p * 4))
        A.e("v_pk_add_f32 v[34:35], v[34:35], v[%d:%d]" % (34 + p * 4, 35 + p * 4))
    A.e("v_cvt_pk_bf16_f32 v20, v32, v33")
    A.e("v_cvt_pk_bf16_f32 v21, v34, v35")
    A.e("s_lshl_b32 s%d, s%d, 11" % (S_T0, P_HEAD))
    A.e("s_and_b32 s%d, s%d, 1" % (S_T1, S_WAVE))
    A.e("s_lshl_b32 s%d, s%d, 10" % (S_T1, S_T1))
    A.e("s_add_u32 s%d, s%d, s%d" % (S_T0, S_T0, S_T1))
    A.e("s_lshr_b32 s%d, s%d, 1" % (S_T1, S_WAVE))
    A.e("s_lshl_b32 s%d, s%d, 3" % (S_T1, S_T1))
    A.e("s_add_u32 s%d, s%d, s%d" % (S_T0, S_T0, S_T1))
    A.e("s_add_u32 s%d, s%d, %d" % (S_T0, S_T0, WS_KVF))
    A.e("buffer_store_dwordx2 v[20:21], v%d, s[%d:%d], s%d offen sc1" % (Q_L16, S_W, S_W + 3, S_T0))
    A.e("s_waitcnt vmcnt(0)")
    A.e("s_barrier")
    A.e("v_mov_b32 v22, 0x7ffffff0")
    A.e("v_cmp_eq_u32 vcc, 0, v0")
    A.e("s_nop 1")
    A.e("v_cndmask_b32 v22, v22, 0, vcc")
    A.e("v_mov_b32 v23, 1")
    A.e("buffer_atomic_add v23, v22, s[%d:%d], 0 offen sc1" % (P_SDBG, P_SDBG + 3))
    A.label("K2_END")
    A.e("s_endpgm")

def main():
    out = []
    hdr = open("cdna_kernels/%s.s.ref" % NAME).read().splitlines()
    for l in hdr:
        if l.startswith(";") and "@launch" not in l:
            out.append(l)
        elif not l.startswith(";"):
            break
    out.append("; @launch kernel=k1_kernel grid=(256,1,1) block=(512,1,1) lds=%d" % K1_LDS)
    out.append("; @launch kernel=k2_kernel grid=(240,1,1) block=(256,1,1) lds=%d" % max(131072, 4 * RING * SLOT))
    out.append('.amdgcn_target "amdgcn-amd-amdhsa--gfx950"')
    out.append(".text")
    A = Asm()
    A.lines.append(".globl k1_kernel\n.p2align 8\n.type k1_kernel,@function")
    gen_k1(A)
    A.lines.append(".globl k2_kernel\n.p2align 8\n.type k2_kernel,@function")
    gen_k2(A)
    out += A.lines
    out.append('.section .rodata,"a"')
    for nm, nv in (("k1_kernel", 212), ("k2_kernel", 256)):
        out.append(".p2align 6")
        out.append(".amdhsa_kernel %s" % nm)
        out.append("  .amdhsa_next_free_vgpr %d" % nv)
        out.append("  .amdhsa_next_free_sgpr 102")
        out.append("  .amdhsa_accum_offset %d" % nv)
        out.append("  .amdhsa_group_segment_fixed_size 0")
        out.append("  .amdhsa_kernarg_size 88")
        out.append("  .amdhsa_user_sgpr_count 2")
        out.append("  .amdhsa_user_sgpr_kernarg_segment_ptr 1")
        out.append("  .amdhsa_system_sgpr_workgroup_id_x 1")
        out.append(".end_amdhsa_kernel")
    dst = sys.argv[1] if len(sys.argv) > 1 else "cdna_kernels/%s.s" % NAME
    open(dst, "w").write("\n".join(out) + "\n")

main()
```
